```python
import torch

def _softmax(x, axis=-1):
    return torch.softmax(x, dim=axis)
def _gelu(x):
    return torch.nn.functional.gelu(x, approximate="tanh")
def _silu(x):
    return torch.nn.functional.silu(x)
def _sigmoid(x):
    return torch.sigmoid(x)
def _layernorm(x, axis=-1, eps=1e-5):
    m = x.mean(dim=axis, keepdim=True)
    v = x.var(dim=axis, keepdim=True, unbiased=False)
    return (x - m) / torch.sqrt(v + eps)
def _scatter_add(tgt, idx, src, axis=0):
    return tgt.clone().index_add_(axis, idx, src)
def _segment_sum(src, seg, n):
    out = torch.zeros((n,) + src.shape[1:], dtype=src.dtype)
    return out.index_add_(0, seg, src)
def _pad(x, pw):
    flat = tuple(v for pair in reversed(pw) for v in pair)
    return torch.nn.functional.pad(x, flat)

kernel_name = 'sequential_preLN__softmax_full_mha__dense_activation_gelu__prompt'

def setup_inputs():

    _w = (lambda a: (lambda t: t.to(torch.bfloat16) if t.is_floating_point() else t)(torch.as_tensor(a)))
    def _A_setup():
        B, S, D = 1, 2048, 640
        return {
            "x": _w((lambda *s: torch.randn(*s, dtype=torch.bfloat16) * 0.05)(B, S, D)),
            "wqkv": _w((lambda *s: torch.randn(*s, dtype=torch.bfloat16) * 0.05)(D, 3 * D)),
            "wo": _w((lambda *s: torch.randn(*s, dtype=torch.bfloat16) * 0.05)(D, D)),
        }
    _A_in = _A_setup()

    def _B_setup():
        B, S, D, F = 1, 2048, 640, 1728
        return {
            "x": _w((lambda *s: torch.randn(*s, dtype=torch.bfloat16) * 0.05)(B, S, D)),
            "w1": _w((lambda *s: torch.randn(*s, dtype=torch.bfloat16) * 1.6)(D, F) * (D ** -0.5)),
            "b1": _w((lambda *s: torch.randn(*s, dtype=torch.bfloat16) * 1.6)(F) * 0.01),
            "w2": _w((lambda *s: torch.randn(*s, dtype=torch.bfloat16) * 0.2)(F, D) * (F ** -0.5)),
            "b2": _w((lambda *s: torch.randn(*s, dtype=torch.bfloat16) * 0.2)(D) * 0.01),
        }
    _B_in = _B_setup()

    return {
        "A_x": _A_in["x"],
        "A_wqkv": _A_in["wqkv"],
        "A_wo": _A_in["wo"],
        "B_x": _B_in["x"],
        "B_w1": _B_in["w1"],
        "B_b1": _B_in["b1"],
        "B_w2": _B_in["w2"],
        "B_b2": _B_in["b2"],
    }

def reference(A_x, A_wqkv, A_wo, B_x, B_w1, B_b1, B_w2, B_b2):
    def _A_ref(x, wqkv, wo):
        B, S, D = x.shape
        H = 32; Dh = D // H
        qkv = (lambda x, *d: x.permute(*d))((x @ wqkv).reshape(B, S, 3, H, Dh), 2, 0, 3, 1, 4)
        q, k, v = qkv[0], qkv[1], qkv[2]
        scale = Dh ** -0.5
        scores = torch.einsum("bhqd,bhkd->bhqk", q, k) * scale
        p = _softmax(scores, axis=-1)
        o = torch.einsum("bhqk,bhkd->bhqd", p, v)
        return (lambda x, *d: x.permute(*d))(o, 0, 2, 1, 3).reshape(B, S, D) @ wo

    def _B_ref(x, w1, b1, w2, b2):
        h = torch.einsum("bsd,df->bsf", x, w1) + b1
        h = _gelu(h)
        return torch.einsum("bsf,fd->bsd", h, w2) + b2

    x = A_x
    h = x + _A_ref(_layernorm(x, axis=-1), A_wqkv, A_wo)
    h2 = h + _B_ref(_layernorm(h, axis=-1), B_w1, B_b1, B_w2, B_b2)
    return h2
```

```python
import re

class Asm:
    def __init__(self):
        self.lines = []
    def __call__(self, s):
        for l in s.split("\n"):
            l = l.strip()
            if l:
                self.lines.append(l)
    def label(self, n):
        self.lines.append(n + ":")
    def c(self, s):
        self.lines.append("; " + s)
    def text(self):
        out = []
        for l in self.lines:
            if l.endswith(":") or l.startswith(".") or l.startswith(";"):
                out.append(l)
            else:
                out.append("    " + l)
        return "\n".join(out) + "\n"

def vr(b, n=1):
    return f"v{b}" if n == 1 else f"v[{b}:{b+n-1}]"
def sr(b, n=1):
    return f"s{b}" if n == 1 else f"s[{b}:{b+n-1}]"

_REG = re.compile(r"\b([vsa])(\d+)\b|\b([vsa])\[(\d+):(\d+)\]|\b(vcc|exec|m0|scc)\b")
def regs_of(op):
    out = set()
    for m in _REG.finditer(op):
        if m.group(1):
            out.add((m.group(1), int(m.group(2))))
        elif m.group(3):
            for i in range(int(m.group(4)), int(m.group(5)) + 1):
                out.add((m.group(3), i))
        else:
            out.add((m.group(6), 0))
    return out

TRANS = ("v_exp_", "v_log_", "v_rcp_", "v_rsq_", "v_sqrt_", "v_sin_", "v_cos_")
class Ins:
    def __init__(self, line):
        self.line = line
        line = line.split(";")[0].strip()
        p = line.split(None, 1)
        self.op = p[0]
        ops = [x.strip() for x in re.split(r",(?![^\[]*\])", p[1])] if len(p) > 1 else []
        self.ops = ops
        op = self.op
        self.mfma = op.startswith("v_mfma") or op.startswith("v_smfmac")
        self.valu = op.startswith("v_") and not self.mfma
        self.trans = op.startswith(TRANS)
        self.dot = op.startswith("v_dot")
        self.vmem = op.startswith(("buffer_", "global_"))
        self.ds = op.startswith("ds_")
        self.salu = op.startswith("s_")
        self.passes = 0
        self.w = set(); self.r = set(); self.srcc = set(); self.ab = set()
        R = [regs_of(o) for o in ops]
        if self.mfma:
            self.passes = 8 if "32x32" in op else 4
            self.w = R[0]
            if op.startswith("v_smfmac"):
                self.srcc = R[0]; self.ab = R[1] | R[2] | R[3]
            else:
                self.srcc = R[3]; self.ab = R[1] | R[2]
            self.r = self.srcc | self.ab
        elif self.valu:
            if op.startswith("v_cmp"):
                self.w = R[0]; self.r = set().union(*R[1:])
            elif op.startswith(("v_permlane32_swap", "v_permlane16_swap", "v_swap")):
                self.w = R[0] | R[1]; self.r = R[0] | R[1]
            elif op.startswith(("v_add_co", "v_sub_co", "v_addc_co", "v_subb_co")):
                self.w = R[0] | R[1]; self.r = set().union(*R[2:])
            else:
                self.w = R[0]; self.r = set().union(*R[1:]) if len(R) > 1 else set()
                if op.startswith(("v_fmac", "v_dot2c", "v_pk_fmac")) or "dpp" in op or "row_" in line or "quad_perm" in line or "sdwa" in op:
                    self.r |= R[0]
        elif self.vmem:
            lds = re.search(r"\blds\b", line) is not None or "_lds_" in op
            self.lds = lds
            if "store" in op or "atomic" in op or lds or op in ("buffer_wbl2", "buffer_inv"):
                self.r = set().union(*R) if R else set()
                if lds: self.r.add(("m0", 0))
                if "atomic" in op and "sc0" in line: self.w = R[0]
            else:
                self.w = R[0]; self.r = set().union(*R[1:])
            self.wide = ("store" in op) and op.endswith(("x3", "x4"))
            self.data = (R[0] if op.startswith("buffer") else (R[1] if len(R) > 1 else set())) if "store" in op else set()
        elif self.ds:
            if op.startswith(("ds_read", "ds_bpermute", "ds_permute", "ds_swizzle")):
                self.w = R[0]; self.r = set().union(*R[1:])
            else:
                self.r = set().union(*R)
        elif self.salu:
            if op.startswith(("s_cmp", "s_cbranch", "s_branch", "s_waitcnt", "s_barrier", "s_nop", "s_endpgm", "s_setprio", "s_sleep")):
                self.r = set().union(*R) if R else set()
            else:
                self.w = R[0] if R else set(); self.r = set().union(*R[1:]) if len(R) > 1 else set()
                if "saveexec" in op: self.w |= {("exec", 0)}
        self.dpp = self.valu and ("dpp" in op or "row_" in line or "quad_perm" in line)
        self.states = 1
        if op == "s_nop":
            self.states = int(ops[0], 0) + 1

def isv(s): return {x for x in s if x[0] in "va"}
def iss(s): return {x for x in s if x[0] == "s" or x[0] == "vcc"}

def need(p, c):
    n = 0
    if p.valu:
        pw = isv(p.w)
        if c.mfma and pw & c.r: n = max(n, 2)
        if p.trans and c.valu and not c.trans and pw & c.r: n = max(n, 1)
        if p.dot and (c.valu or c.mfma or c.vmem or c.ds) and pw & (c.r | c.w):
            same = c.op == p.op and not (pw & set().union(*[regs_of(o) for o in c.ops[1:3]]))
            if not same: n = max(n, 3)
        if c.valu and c.op.startswith(("v_readlane", "v_readfirstlane")) and pw & c.r: n = max(n, 1)
        if c.valu and c.op.startswith("v_permlane") and pw & c.r: n = max(n, 2)
        if c.dpp and pw & c.r: n = max(n, 2)
        if "sdwa" in p.op and c.valu and pw & (c.r | c.w): n = max(n, 1)
        sw = iss(p.w)
        if sw:
            cr = set(c.r)
            if c.valu and (c.op.startswith("v_cndmask") and len(c.ops) == 3): cr.add(("vcc", 0))
            if c.vmem and sw & cr: n = max(n, 5)
            if c.valu and sw & cr: n = max(n, 4 if c.op.startswith(("v_readlane", "v_writelane", "v_div_fmas")) else 2)
            if c.salu and sw & cr: n = max(n, 1)
            if c.op.startswith("s_cbranch_vcc") and ("vcc", 0) in sw: n = max(n, 5)
        if ("exec", 0) in p.w or p.op.startswith("v_cmpx"):
            if c.mfma or c.op.startswith(("v_readlane", "v_readfirstlane", "v_writelane", "v_permlane")): n = max(n, 4)
            if c.dpp: n = max(n, 5)
    if p.mfma:
        P = p.passes
        if c.mfma:
            if p.w & c.ab: n = max(n, P + 4)
            if p.w & c.srcc:
                if not (p.w == c.srcc and c.passes == P): n = max(n, P + 2)
            elif p.w & c.w and p.w != c.w: n = max(n, P + 2)
        elif (c.valu or c.vmem or c.ds) and p.w & (c.r | c.w): n = max(n, P + 4)
        if c.valu and p.srcc & c.w: n = max(n, P - 1)
    if p.salu and ("m0", 0) in p.w and c.vmem and getattr(c, "lds", False): n = max(n, 1)
    if p.vmem and getattr(p, "wide", False) and p.data & c.w:
        n = max(n, 2 if c.valu else 1)
    return n

def check(asm_lines, window=24):
    ins = []; labels = {}
    for l in asm_lines:
        s = l.split(";")[0].strip()
        if not s or s.startswith("."): continue
        if s.endswith(":"):
            labels[s[:-1]] = len(ins); continue
        ins.append(Ins(s))
    errs = []
    def succ(i):
        x = ins[i]
        if x.op == "s_endpgm": return []
        if x.op == "s_branch": return [labels[x.ops[0]]]
        if x.op.startswith("s_cbranch"): return [i + 1, labels[x.ops[0]]]
        return [i + 1]
    for i, p in enumerate(ins):
        if not (p.valu or p.mfma or p.vmem or (p.salu and ("m0", 0) in p.w)): continue
        stack = [(j, 0) for j in succ(i)]
        seen = {}
        while stack:
            j, d = stack.pop()
            if j >= len(ins) or d >= 20: continue
            if seen.get(j, 99) <= d: continue
            seen[j] = d
            c = ins[j]
            n = need(p, c)
            if n > d:
                errs.append(f"hazard: need {n} have {d}:\n    {p.line}\n    {c.line}")
            for k in succ(j): stack.append((k, d + c.states))
    return errs
```

```python
import sys, math, struct
from asmlib import Asm, vr, sr, check

NAME = "sequential_preLN__softmax_full_mha__dense_activation_gelu__prompt"
KX, KWQKV, KWO, KW1, KB1, KW2, KB2, KOUT, KDBG, KWS = 0, 8, 16, 32, 40, 48, 56, 64, 72, 80
UNIT = 163840
OFF_QKV = 0
OFF_O = 64 * UNIT
OFF_H = OFF_O + 2621440
OFF_G = OFF_H + 2621440
OFF_WO = OFF_G + 128 * 54 * 1024
OFF_W2 = OFF_WO + 640 * 1280
WS_END = OFF_W2 + 1728 * 1280
WS_SIZE = WS_END + 65536

def f32(x):
    return "0x%08x" % struct.unpack("<I", struct.pack("<f", x))[0]

CFG = dict(rot1=0, rot4=0)

def srd(a, d, p, size, off=0):
    if off:
        a(f"s_add_u32 s{d}, s{p}, {off}")
        a(f"s_addc_u32 s{d+1}, s{p+1}, 0")
    else:
        a(f"s_mov_b32 s{d}, s{p}")
        a(f"s_mov_b32 s{d+1}, s{p+1}")
    a(f"s_mov_b32 s{d+2}, {size}")
    a(f"s_mov_b32 s{d+3}, 0x20000")

def header(a, name):
    a(f".globl {name}")
    a(".p2align 8")
    a(f".type {name},@function")
    a.label(name)

def desc(name, nv, ns=96):
    nv = (nv + 7) // 8 * 8
    return f""".p2align 6
.amdhsa_kernel {name}
  .amdhsa_next_free_vgpr {nv}
  .amdhsa_next_free_sgpr {ns}
  .amdhsa_accum_offset {min(nv, 256)}
  .amdhsa_group_segment_fixed_size 0
  .amdhsa_kernarg_size 88
  .amdhsa_user_sgpr_count 2
  .amdhsa_user_sgpr_kernarg_segment_ptr 1
  .amdhsa_system_sgpr_workgroup_id_x 1
.end_amdhsa_kernel
"""

def bf16_round(a, dst, src):
    a(f"v_cvt_pk_bf16_f32 v{dst}, v{src}, v{src}")
    a(f"v_lshlrev_b32 v{dst}, 16, v{dst}")

STAT = 131072
LDS_LN = STAT + 4096

def gemm_ln(a, name, kind):
    k1 = kind == "qkv"
    P = name + "_"
    WS = 3840 if k1 else 3456
    header(a, name)
    a(f"s_cmp_ge_u32 s2, 256")
    a(f"s_cbranch_scc1 {P}end")
    if k1:
        a(f"s_load_dwordx4 s[4:7], s[0:1], {KX}")
        a(f"s_load_dwordx2 s[8:9], s[0:1], {KWS}")
    else:
        a(f"s_load_dwordx4 s[40:43], s[0:1], {KW1}")
        a(f"s_load_dwordx2 s[8:9], s[0:1], {KWS}")
    a("v_lshrrev_b32 v1, 6, v0")
    a("v_and_b32 v0, 63, v0")
    a("s_and_b32 s31, s2, 7")
    a("v_readfirstlane_b32 s28, v1")
    a("s_lshr_b32 s32, s2, 3")
    if k1:
        a("s_cmp_ge_u32 s32, 30")
        a(f"s_cbranch_scc1 {P}relayout")
        a("s_and_b32 s33, s31, 1")
        a("s_mul_i32 s33, s33, 30")
        a("s_add_u32 s33, s33, s32")
        a("s_lshr_b32 s30, s33, 2")
        a("s_and_b32 s33, s33, 3")
        a("s_lshr_b32 s29, s31, 1")
        a("s_lshl_b32 s29, s29, 2")
        a("s_add_u32 s29, s29, s33")
    else:
        a("s_cmp_ge_u32 s32, 28")
        a(f"s_cbranch_scc1 {P}end")
        a("s_lshr_b32 s30, s32, 1")
        a("s_and_b32 s33, s32, 1")
        a("s_lshl_b32 s29, s31, 1")
        a("s_add_u32 s29, s29, s33")
    a("s_cmp_lt_u32 s28, 4")
    a(f"s_cbranch_scc1 {P}compute")

    a("s_sub_u32 s28, s28, 4")
    a("v_lshrrev_b32 v2, 3, v0")
    a("v_and_b32 v3, 7, v0")
    a("v_lshrrev_b32 v4, 4, v0")
    a("v_xor_b32 v3, v3, v4")
    a("v_mul_u32_u24 v2, 1280, v2")
    a("v_lshl_add_u32 v2, v3, 4, v2")
    a("v_xor_b32 v5, 64, v2")
    a("v_mov_b32 v10, v2")
    a(f"v_add_u32 v11, {10240-1024}, v5")
    a(f"v_add_u32 v12, {2*(10240-1024)}, v2")
    a(f"v_add_u32 v13, {3*(10240-1024)}, v5")
    a("v_and_b32 v3, 15, v0")
    a("v_lshlrev_b32 v5, 2, v4")
    a("v_xor_b32 v3, v3, v5")
    a(f"v_mul_u32_u24 v14, {WS}, v4")
    a("v_lshl_add_u32 v14, v3, 4, v14")
    for i in range(1, 4):
        a(f"v_add_u32 v{14+i}, {i*(4*WS-1024)}, v14")
    a("s_mul_i32 s34, s29, 163840")
    a("s_mul_i32 s33, s28, 40960")
    a("s_add_u32 s34, s34, s33")
    a("s_lshl_b32 s35, s30, 8")
    a(f"s_mul_i32 s33, s28, {16*WS}")
    a("s_add_u32 s35, s35, s33")
    rot = CFG["rot1"] if k1 else CFG["rot4"]
    if rot:
        a("s_mul_i32 s38, s29, 3")
        a("s_add_u32 s38, s38, s30")
        a("s_mul_i32 s33, s38, 6554")
        a("s_lshr_b32 s33, s33, 16")
        a("s_mul_i32 s33, s33, 10")
        a("s_sub_u32 s38, s38, s33")
        a("s_lshl_b32 s36, s38, 7")
        a("s_add_u32 s36, s36, s34")
        a(f"s_mul_i32 s37, s38, {64*WS}")
        a("s_add_u32 s37, s37, s35")
    else:
        a("s_mov_b32 s36, s34")
        a("s_mov_b32 s37, s35")
    a("s_lshl_b32 s39, s28, 12")
    a("s_waitcnt lgkmcnt(0)")
    if k1:
        srd(a, 12, 4, 2048 * 1280)
        srd(a, 16, 6, 640 * 3840)
    else:
        srd(a, 12, 8, 2048 * 1280, OFF_H)
        srd(a, 16, 40, 640 * 3456)
        srd(a, 24, 42, 1728 * 2)
    def issue(s):
        slot = (s & 3) * 32768
        a(f"s_add_u32 m0, s39, {slot}")
        a("s_nop 0")
        for i in range(4):
            a(f"buffer_load_dwordx4 v{10+i}, s[12:15], s36 offen offset:{1024*i} lds")
        a(f"s_add_u32 m0, s39, {slot+16384}")
        a("s_add_u32 s36, s36, 128")
        for i in range(4):
            a(f"buffer_load_dwordx4 v{14+i}, s[16:19], s37 offen offset:{1024*i} lds")
        a(f"s_add_u32 s37, s37, {64*WS}")
        if rot:
            a("s_add_u32 s38, s38, 1")
            a("s_cmp_eq_u32 s38, 10")
            a("s_cselect_b32 s36, s34, s36")
            a("s_cselect_b32 s37, s35, s37")
    if not k1:
        a("v_and_b32 v6, 31, v0")
        a("v_lshlrev_b32 v6, 1, v6")
        a("s_lshl_b32 s33, s30, 2")
        a("s_add_u32 s33, s33, s28")
        a("s_lshl_b32 s33, s33, 6")
        a("buffer_load_ushort v9, v6, s[24:27], s33 offen")
    for s in range(4):
        issue(s)
    a("v_and_b32 v2, 31, v0")
    a("v_lshrrev_b32 v3, 5, v0")
    a("v_bfe_u32 v4, v0, 1, 3")
    a("v_xor_b32 v4, v4, v3")
    a("v_lshlrev_b32 v4, 4, v4")
    a("v_lshl_add_u32 v4, v2, 7, v4")
    a("v_add_u32 v20, s39, v4")
    for i in range(1, 4):
        a(f"v_xor_b32 v{20+i}, {32*i}, v20")
    for i in range(4):
        a(f"v_add_u32 v{24+i}, 0x10000, v{20+i}")
    a("v_bfe_u32 v4, v0, 2, 2")
    a("v_lshl_add_u32 v5, v3, 3, v4")
    a("v_lshlrev_b32 v5, 8, v5")
    a("v_xor_b32 v4, s28, v4")
    a("v_lshl_add_u32 v5, v4, 6, v5")
    a("v_bfe_u32 v4, v0, 4, 1")
    a("v_lshl_add_u32 v5, v4, 5, v5")
    a("v_and_b32 v4, 3, v0")
    a("v_lshl_add_u32 v5, v4, 3, v5")
    a("v_add_u32 v28, 16384, v5")
    a("v_add_u32 v29, 0x10000, v28")
    a("v_mov_b32 v30, 0x3f803f80")
    for i in range(6):
        a(f"v_mov_b32 v{32+i}, 0")
    for s in range(10):
        n = 24 if s == 0 else 8 * (min(s + 2, 9) - s)
        a(f"s_waitcnt vmcnt({n})")
        a("s_barrier")
        if s >= 1 and s + 3 <= 9:
            issue(s + 3)
        st = (s >> 1) & 1
        io = (s & 1) * 32768
        for i in range(4):
            a(f"ds_read_b128 {vr(40+4*i,4)}, v{20+4*st+i} offset:{io}")
        for i in range(8):
            a(f"ds_read_b64_tr_b16 {vr(56+2*i,2)}, v{28+st} offset:{io + (i>>1)*4096 + (i&1)*1024}")
        a("s_waitcnt lgkmcnt(8)")
        for i in range(16):
            a(f"v_dot2_f32_bf16 v{32+(i&1)}, v{40+i}, v30, v{32+(i&1)}")
            a(f"v_dot2_f32_bf16 v{34+(i&1)}, v{40+i}, v{40+i}, v{34+(i&1)}")
        a("s_waitcnt lgkmcnt(0)")
        for i in range(16):
            a(f"v_dot2_f32_bf16 v{36+(i&1)}, v{56+i}, v30, v{36+(i&1)}")
    a("v_add_f32 v32, v32, v33")
    a("v_add_f32 v34, v34, v35")
    a("v_mov_b32 v33, v32")
    a("v_mov_b32 v35, v34")
    a("v_add_f32 v36, v36, v37")
    a("v_mov_b32 v37, v36")
    a("v_permlane32_swap_b32 v32, v33")
    a("v_permlane32_swap_b32 v34, v35")
    a("v_permlane32_swap_b32 v36, v37")
    a("v_add_f32 v32, v32, v33")
    a("v_add_f32 v34, v34, v35")
    a("v_add_f32 v36, v36, v37")
    a(f"v_mul_f32 v32, {f32(1/640)}, v32")
    a(f"v_mul_f32 v34, {f32(1/640)}, v34")
    a("v_fma_f32 v34, -v32, v32, v34")
    a("v_max_f32 v34, 0, v34")
    bf16_round(a, 34, 34)
    a(f"v_add_f32 v34, {f32(1e-5)}, v34")
    bf16_round(a, 34, 34)
    a("v_sqrt_f32 v34, v34")
    a("v_mul_f32 v32, -0.5, v32")
    bf16_round(a, 34, 34)
    a("v_cvt_pk_bf16_f32 v40, v32, v32")
    a("v_rcp_f32 v42, v34")
    a("v_mul_f32 v34, 0.5, v34")
    a("v_lshrrev_b32 v41, 16, v34")
    bf16_round(a, 37, 36)
    a("v_sub_f32 v36, v36, v37")
    a("v_cvt_pk_bf16_f32 v44, v37, v36")
    if k1:
        a("v_mov_b32 v45, 0")
    else:
        a("v_mov_b32 v45, v9")
    a("s_lshl_b32 s33, s28, 5")
    a("v_add_u32 v2, s33, v2")
    a("v_lshlrev_b32 v3, 3, v2")
    a(f"v_add_u32 v3, {STAT}, v3")
    a("v_lshlrev_b32 v4, 2, v2")
    a(f"v_add_u32 v4, {STAT+1024}, v4")
    a("ds_write_b64 v3, v[40:41]")
    a("ds_write_b32 v4, v42")
    a("ds_write_b64 v3, v[44:45] offset:2048")
    a("s_waitcnt lgkmcnt(0)")
    a("s_barrier")
    a("s_endpgm")

    a.label(P + "compute")
    ACC = 64
    FR = 32
    AD = 128
    a("s_and_b32 s34, s28, 1")
    a("s_lshr_b32 s35, s28, 1")
    a("v_and_b32 v2, 31, v0")
    a("v_lshrrev_b32 v3, 5, v0")
    a("v_bfe_u32 v4, v0, 1, 3")
    a("v_xor_b32 v4, v4, v3")
    a("v_lshlrev_b32 v4, 4, v4")
    a("v_lshl_add_u32 v4, v2, 7, v4")
    a("s_lshl_b32 s33, s34, 13")
    a("v_add_u32 v10, s33, v4")
    for i in range(1, 4):
        a(f"v_xor_b32 v{10+i}, {32*i}, v10")
    for i in range(4):
        a(f"v_add_u32 v{14+i}, 0x10000, v{10+i}")
    a("v_bfe_u32 v4, v0, 2, 2")
    a("v_lshl_add_u32 v5, v3, 3, v4")
    a("v_lshlrev_b32 v5, 8, v5")
    a("v_bfe_u32 v6, v0, 4, 1")
    a("v_lshl_add_u32 v5, v6, 5, v5")
    a("v_and_b32 v6, 3, v0")
    a("v_lshl_add_u32 v5, v6, 3, v5")
    a("v_add_u32 v5, 16384, v5")
    a("s_lshl_b32 s33, s35, 1")
    a("v_xor_b32 v4, s33, v4")
    a("v_lshl_add_u32 v18, v4, 6, v5")
    a("v_xor_b32 v19, 64, v18")
    a("v_add_u32 v20, 0x10000, v18")
    a("v_add_u32 v21, 0x10000, v19")
    a("s_lshl_b32 s33, s34, 6")
    a("v_add_u32 v22, s33, v2")
    a("v_lshlrev_b32 v23, 2, v22")
    a(f"v_add_u32 v23, {STAT+1024}, v23")
    a("v_lshlrev_b32 v22, 3, v22")
    a(f"v_add_u32 v22, {STAT}, v22")
    a("s_lshl_b32 s33, s35, 6")
    a("v_add_u32 v24, s33, v2")
    a("v_lshlrev_b32 v24, 3, v24")
    a(f"v_add_u32 v24, {STAT+2048}, v24")
    a("s_waitcnt lgkmcnt(0)")
    srd(a, 20, 8, WS_SIZE)

    def reads(t):
        s, st = t >> 2, t & 3
        se = (s >> 1) & 1
        io = (s & 1) * 32768
        F = FR + 16 * (t & 1)
        r = []
        r.append(f"ds_read_b128 {vr(F,4)}, v{10+4*se+st} offset:{io}")
        r.append(f"ds_read_b64_tr_b16 {vr(F+8,2)}, v{18+2*se} offset:{io+st*4096}")
        r.append(f"ds_read_b64_tr_b16 {vr(F+10,2)}, v{18+2*se} offset:{io+st*4096+1024}")
        r.append(f"ds_read_b64_tr_b16 {vr(F+12,2)}, v{19+2*se} offset:{io+st*4096}")
        r.append(f"ds_read_b64_tr_b16 {vr(F+14,2)}, v{19+2*se} offset:{io+st*4096+1024}")
        r.append(f"ds_read_b128 {vr(F+4,4)}, v{10+4*se+st} offset:{io+4096}")
        return r
    def mainloop(T):
        a("s_barrier")
        for r in reads(0): a(r)
        for t in range(40):
            F = FR + 16 * (t & 1)
            a("s_waitcnt lgkmcnt(0)")
            if t < 39 and (t & 3) == 3:
                a("s_barrier")
            rd = reads(t + 1) if t < 39 else []
            for i, (x, w) in enumerate(((0, 0), (0, 1), (1, 0), (1, 1))):
                d = vr(ACC + 32 * x + 16 * w, 16)
                xa, wa = vr(F + 4 * x, 4), vr(F + 8 + 4 * w, 4)
                c = "0" if t == 0 else d
                if T: a(f"v_mfma_f32_32x32x16_bf16 {d}, {wa}, {xa}, {c}")
                else: a(f"v_mfma_f32_32x32x16_bf16 {d}, {xa}, {wa}, {c}")
                if i < 2:
                    for r in rd[3*i:3*i+3]: a(r)
        a("s_barrier")
        a("ds_read_b64 v[32:33], v22")
        a("ds_read_b64 v[34:35], v22 offset:256")
        a("ds_read_b64 v[36:37], v24")
        a("ds_read_b64 v[38:39], v24 offset:256")
        if T:
            a("ds_read_b32 v40, v23")
            a("ds_read_b32 v41, v23 offset:128")
        else:
            for x in range(2):
                for j in range(4):
                    a(f"ds_read_b128 {vr(144+16*x+4*j,4)}, v25 offset:{128*x+32*j}")
        a("s_waitcnt lgkmcnt(0)")
        for x, w in ((0, 0), (0, 1), (1, 0), (1, 1)):
            d = vr(ACC + 32 * x + 16 * w, 16)
            xa, wa = vr(32 + 2 * x, 2), vr(36 + 2 * w, 2)
            if T: a(f"v_mfma_f32_32x32x8_bf16 {d}, {wa}, {xa}, {d}")
            else: a(f"v_mfma_f32_32x32x8_bf16 {d}, {xa}, {wa}, {d}")

    if k1:
        a("s_mul_i32 s36, s29, 10240")
        a("s_cmp_ge_u32 s30, 10")
        a(f"s_cbranch_scc1 {P}vpart")
        a("v_and_b32 v4, 19, v0")
        a("v_bfe_u32 v5, v0, 2, 1")
        a("v_lshl_add_u32 v4, v5, 3, v4")
        a("v_bfe_u32 v5, v0, 3, 1")
        a("v_lshl_add_u32 v4, v5, 2, v4")
        a("s_lshl_b32 s33, s34, 11")
        a("v_lshl_add_u32 v5, v4, 4, s33")
        a("s_lshl_b32 s33, s34, 9")
        a("s_add_u32 s33, s33, 4096")
        a("v_lshl_add_u32 v6, v4, 3, s33")
        a("s_lshl_b32 s33, s30, 5")
        a("s_lshl_b32 s37, s35, 4")
        a("s_add_u32 s33, s33, s37")
        a("v_add_u32 v7, s33, v3")
        a("v_mov_b32 v26, 1024")
        a("v_mov_b32 v27, 256")
        for q in range(8):
            a(f"v_add_u32 v8, {2*q}, v7")
            a("v_mul_u32_u24 v9, 52429, v8")
            a("v_lshrrev_b32 v9, 18, v9")
            a("v_mul_u32_u24 v28, 5, v9")
            a("v_sub_u32 v8, v8, v28")
            a("v_cmp_gt_u32 vcc, 4, v8")
            a("v_lshrrev_b32 v28, 1, v8")
            a("v_lshl_add_u32 v28, v28, 9, v5")
            a("v_and_b32 v8, 1, v8")
            a("v_lshl_add_u32 v28, v8, 3, v28")
            a("v_cndmask_b32 v28, v6, v28, vcc")
            a("v_cndmask_b32 v29, v27, v26, vcc")
            a(f"v_mul_u32_u24 v9, {UNIT}, v9")
            a(f"v_add_u32 v{AD+q}, v9, v28")
            a(f"v_add_u32 v{AD+8+q}, v{AD+q}, v29")
        c = (20 ** -0.5) * math.log2(math.e)
        a("s_cmp_lt_u32 s30, 5")
        a(f"s_cselect_b32 s37, {f32(c)}, 1.0")
        mainloop(True)
        a("v_mul_f32 v40, s37, v40")
        a("v_mul_f32 v41, s37, v41")
        a("s_nop 7")
        for x in range(2):
            for w in range(2):
                b = ACC + 32 * x + 16 * w
                for j in range(4):
                    for i in range(4):
                        a(f"v_mul_f32 v{b+4*j+i}, v{40+x}, v{b+4*j+i}")
                    t = 44 + 2 * (j + 4 * w)
                    a(f"v_cvt_pk_bf16_f32 v{t}, v{b+4*j}, v{b+4*j+1}")
                    a(f"v_cvt_pk_bf16_f32 v{t+1}, v{b+4*j+2}, v{b+4*j+3}")
                    a(f"buffer_store_dwordx2 {vr(t,2)}, v{AD+8*x+4*w+j}, s[20:23], s36 offen")
        a("s_endpgm")
        a.label(P + "vpart")
        a("s_sub_u32 s33, s30, 10")
        a("s_lshl_b32 s33, s33, 7")
        a("s_lshl_b32 s37, s35, 6")
        a("s_add_u32 s33, s33, s37")
        a("v_mul_u32_u24 v5, 320, v3")
        a("s_mul_i32 s37, s34, 2560")
        a(f"s_add_u32 s37, s37, {32*UNIT+5120}")
        a("v_add_u32 v5, s37, v5")
        for w in range(2):
            a(f"v_add_u32 v7, s33, v2")
            if w: a("v_add_u32 v7, 32, v7")
            a("v_mul_u32_u24 v9, 52429, v7")
            a("v_lshrrev_b32 v9, 20, v9")
            a("v_mul_u32_u24 v8, 20, v9")
            a("v_sub_u32 v8, v7, v8")
            a(f"v_mul_u32_u24 v9, {UNIT}, v9")
            a("v_lshl_add_u32 v9, v8, 4, v9")
            a(f"v_add_u32 v{AD+w}, v9, v5")
        a("s_lshl_b32 s33, s34, 8")
        a(f"s_add_u32 s33, s33, {STAT+1024}")
        a("v_lshl_add_u32 v25, v3, 4, s33")
        mainloop(False)
        a("s_nop 9")
        for x in range(2):
            for w in range(2):
                b = ACC + 32 * x + 16 * w
                for g in range(2):
                    for i in range(8):
                        a(f"v_mul_f32 v{b+8*g+i}, v{144+16*x+8*g+i}, v{b+8*g+i}")
                    t = 44 + 4 * (g + 2 * w)
                    for i in range(4):
                        a(f"v_cvt_pk_bf16_f32 v{t+i}, v{b+8*g+2*i}, v{b+8*g+2*i+1}")
                    a(f"buffer_store_dwordx4 {vr(t,4)}, v{AD+w}, s[20:23], s36 offen offset:{1280*x+640*g}")
        a("s_endpgm")
        relayout(a, P)
    else:
        a("v_bfe_u32 v4, v0, 4, 1")
        a(f"v_mul_u32_u24 v4, {54*1024}, v4")
        a("v_lshl_add_u32 v4, v3, 8, v4")
        a("v_and_b32 v5, 15, v0")
        a(f"v_lshl_add_u32 v{AD}, v5, 4, v4")
        a(f"v_add_u32 v{AD+1}, {2*54*1024}, v{AD}")
        a("s_lshl_b32 s36, s29, 3")
        a("s_lshl_b32 s33, s34, 2")
        a("s_add_u32 s36, s36, s33")
        a("s_mul_i32 s36, s36, 54")
        a("s_lshl_b32 s33, s30, 1")
        a("s_add_u32 s38, s33, s35")
        a("s_lshl_b32 s33, s38, 1")
        a("s_add_u32 s36, s36, s33")
        a("s_lshl_b32 s36, s36, 10")
        a(f"s_add_u32 s36, s36, {OFF_G}")
        k0 = -2 * math.sqrt(2 / math.pi) * math.log2(math.e)
        a(f"s_mov_b32 s44, {f32(k0)}")
        a(f"s_mov_b32 s45, {f32(k0 * 0.044715)}")
        a("v_mov_b32 v26, s44")
        mainloop(True)
        a("s_cmp_ge_u32 s38, 27")
        a(f"s_cbranch_scc1 {P}end")
        a("s_nop 7")
        for x in range(2):
            for w in range(2):
                b = ACC + 32 * x + 16 * w
                for g in range(2):
                    r = b + 8 * g
                    T0 = 144
                    for i in range(8): a(f"v_mul_f32 v{r+i}, v{40+x}, v{r+i}")
                    for i in range(8): a(f"v_mul_f32 v{T0+i}, v{r+i}, v{r+i}")
                    for i in range(8): a(f"v_fma_f32 v{T0+i}, v{T0+i}, s45, v26")
                    for i in range(8): a(f"v_mul_f32 v{T0+i}, v{T0+i}, v{r+i}")
                    for i in range(8): a(f"v_exp_f32 v{T0+i}, v{T0+i}")
                    for i in range(8): a(f"v_add_f32 v{T0+i}, 1.0, v{T0+i}")
                    for i in range(8): a(f"v_rcp_f32 v{T0+i}, v{T0+i}")
                    for i in range(8): a(f"v_mul_f32 v{r+i}, v{r+i}, v{T0+i}")
                    t = 44 + 4 * (g + 2 * w)
                    for i in range(4):
                        a(f"v_cvt_pk_bf16_f32 v{t+i}, v{r+2*i}, v{r+2*i+1}")
                    a(f"buffer_store_dwordx4 {vr(t,4)}, v{AD+x}, s[20:23], s36 offen offset:{1024*w+512*g}")
    a.label(P + "end")
    a("s_endpgm")
    return desc(name, 176)

def relayout(a, P):
    a.label(P + "relayout")
    a(f"s_load_dwordx2 s[40:41], s[0:1], {KWO}")
    a(f"s_load_dwordx2 s[42:43], s[0:1], {KW2}")
    a("s_sub_u32 s32, s32, 30")
    a("s_lshl_b32 s32, s32, 3")
    a("s_add_u32 s32, s32, s31")
    a("s_lshl_b32 s33, s28, 4")
    a("s_add_u32 s32, s32, s33")
    a("s_cmp_ge_u32 s32, 119")
    a(f"s_cbranch_scc1 {P}end")
    a("s_cmp_lt_u32 s32, 32")
    a(f"s_mov_b32 s35, {1728*160}")
    a(f"s_cselect_b32 s34, {640*160}, s35")
    a("v_lshlrev_b32 v1, 4, v0")
    for i in range(5):
        a(f"v_add_u32 v2, {64*i}, v0")
        a("v_mul_u32_u24 v3, 52429, v2")
        a("v_lshrrev_b32 v4, 22, v3")
        a("v_lshrrev_b32 v3, 19, v3")
        a("v_mul_u32_u24 v5, 10, v3")
        a("v_sub_u32 v5, v2, v5")
        a("v_and_b32 v3, 7, v3")
        a("v_mul_lo_u32 v3, v3, s34")
        a("v_mul_u32_u24 v4, 160, v4")
        a("v_lshl_add_u32 v4, v5, 4, v4")
        a(f"v_add_u32 v{10+i}, v3, v4")
    a("s_waitcnt lgkmcnt(0)")
    srd(a, 20, 8, WS_SIZE)
    a("s_cmp_lt_u32 s32, 32")
    a("s_cselect_b32 s12, s40, s42")
    a("s_cselect_b32 s13, s41, s43")
    a(f"s_mov_b32 s14, {1728*1280}")
    a(f"s_cselect_b32 s14, {640*1280}, s14")
    a("s_mov_b32 s15, 0x20000")
    a(f"s_cbranch_scc0 {P}rl_w2")
    for u in range(5):
        a(f"s_mul_i32 s{50+u}, s32, 25600")
        a(f"s_add_u32 s{50+u}, s{50+u}, {u*5120}")
        if u < 4:
            a(f"s_mul_i32 s{56+u}, s32, {16*160}")
            a(f"s_add_u32 s{56+u}, s{56+u}, {OFF_WO + u*640}")
        else:
            a(f"s_mul_i32 s{56+u}, s32, 640")
            a(f"s_add_u32 s{56+u}, s{56+u}, {OFF_WO + 512*160}")
    a(f"s_branch {P}rl_go")
    a.label(P + "rl_w2")
    a("s_sub_u32 s32, s32, 32")
    a("s_mul_i32 s32, s32, 5")
    for u in range(5):
        a(f"s_add_u32 s33, s32, {u}")
        a("s_min_u32 s33, s33, 431")
        a(f"s_mul_i32 s{50+u}, s33, 5120")
        a(f"s_mul_i32 s{56+u}, s33, 640")
        a(f"s_add_u32 s{56+u}, s{56+u}, {OFF_W2}")
    a.label(P + "rl_go")
    a("v_add_u32 v2, 4096, v1")
    for u in range(5):
        for i in range(5):
            r = 16 + 4 * (5 * u + i)
            if i < 4: a(f"buffer_load_dwordx4 {vr(r,4)}, v1, s[12:15], s{50+u} offen offset:{1024*i}")
            else: a(f"buffer_load_dwordx4 {vr(r,4)}, v2, s[12:15], s{50+u} offen")
    for u in range(5):
        a(f"s_waitcnt vmcnt(20)")
        for i in range(5):
            r = 16 + 4 * (5 * u + i)
            a(f"buffer_store_dwordx4 {vr(r,4)}, v{10+i}, s[20:23], s{56+u} offen")
    a("s_endpgm")

def attention(a, name):
    P = name + "_"
    header(a, name)
    QA, QBA, QBB, IDX = 4, 8, 10, 12
    AK, AB, AV = 13, 14, 15
    C, O = 16, 32
    S = [48, 64, 80, 96]
    KA = [112, 116]; KB = [120, 122]; V = [124, 132]
    a("s_cmp_ge_u32 s2, 256")
    a(f"s_cbranch_scc1 {P}end")
    a(f"s_load_dwordx2 s[8:9], s[0:1], {KWS}")
    a("v_lshrrev_b32 v1, 6, v0")
    a("v_and_b32 v0, 63, v0")
    a("s_and_b32 s31, s2, 7")
    a("v_readfirstlane_b32 s28, v1")
    a("s_bfe_u32 s32, s2, 0x20003")
    a("s_lshl_b32 s29, s31, 2")
    a("s_add_u32 s29, s29, s32")
    a("s_lshr_b32 s30, s2, 5")
    a(f"v_lshlrev_b32 v{AK}, 4, v0")
    a("v_and_b32 v2, 31, v0")
    a("v_lshlrev_b32 v3, 3, v2")
    a(f"s_mul_i32 s33, s29, {UNIT}")
    a("s_lshl_b32 s34, s30, 1")
    a("s_lshr_b32 s35, s28, 2")
    a("s_add_u32 s34, s34, s35")
    a("s_mul_i32 s34, s34, 10240")
    a("s_add_u32 s34, s34, s33")
    a("s_and_b32 s35, s28, 3")
    a("s_lshl_b32 s36, s35, 10")
    a("s_add_u32 s36, s36, s34")
    a("s_lshl_b32 s37, s35, 8")
    a("s_add_u32 s37, s37, s34")
    a("s_add_u32 s37, s37, 4096")
    a("s_lshl_b32 s38, s28, 10")
    a(f"s_add_u32 s39, s33, {32*UNIT}")
    a("s_add_u32 s39, s39, s38")
    a("s_mov_b32 m0, s38")
    a("s_waitcnt lgkmcnt(0)")
    srd(a, 20, 8, WS_SIZE)
    a(f"buffer_load_dwordx4 {vr(QA,4)}, v{AK}, s[20:23], s36 offen")
    a(f"buffer_load_dwordx2 {vr(QBA,2)}, v3, s[20:23], s37 offen")
    for i in range(20):
        a(f"buffer_load_dwordx4 v{AK}, s[20:23], s39 offen lds")
        if i < 19:
            a("s_add_u32 m0, m0, 8192")
            a("s_add_u32 s39, s39, 8192")
    a(f"v_mov_b32 v{IDX}, 0xdddddddd")
    a("s_mov_b32 s40, 0xfffff")
    a("s_mov_b32 s41, 0xfffff")
    a("s_mov_b32 s42, 1")
    for i in range(16):
        a(f"v_mov_b32 v{C+i}, 0")
    for i in range(16):
        a(f"v_mov_b32 v{V[0]+i}, 0x3f803f80")
    a("v_cmp_gt_u32 vcc, 32, v0")
    a("v_lshrrev_b32 v1, 5, v0")
    a("s_mov_b64 s[46:47], -1")
    a("s_waitcnt vmcnt(20)")
    a(f"v_cndmask_b32 v{QBB}, v{QBA}, v{C}, vcc")
    a(f"v_cndmask_b32 v{QBB+1}, v{QBA+1}, v{C}, vcc")
    a(f"v_cndmask_b32 v{QBA}, v{C}, v{QBA}, vcc")
    a(f"v_cndmask_b32 v{QBA+1}, v{C}, v{QBA+1}, vcc")
    a("s_waitcnt vmcnt(18)")
    a("s_barrier")
    a.label(P + "pass")
    a(f"v_lshlrev_b32 v{AK}, 4, v0")
    a(f"v_lshlrev_b32 v{AB}, 3, v0")
    a(f"v_mul_u32_u24 v{AV}, 320, v1")
    a(f"v_lshl_add_u32 v{AV}, v2, 4, v{AV}")
    def ka_off(t): return (t >> 2) * 10240 + (t & 3) * 1024
    def kb_off(p): return (p >> 1) * 10240 + 4096 + (p & 1) * 512
    def v_off(t, g): return (t >> 2) * 10240 + 5120 + (2 * (t & 3) + g) * 640
    a(f"ds_read_b128 {vr(KA[0],4)}, v{AK} offset:{ka_off(0)}")
    a(f"ds_read_b64 {vr(KB[0],2)}, v{AB} offset:{kb_off(0)}")
    a(f"ds_read_b128 {vr(KA[1],4)}, v{AK} offset:{ka_off(1)}")
    for i in range(16):
        a(f"v_mov_b32 v{O+i}, 0")
    for i in range(16):
        a(f"v_mov_b32 v{S[3]+i}, 0")
    a("s_mov_b32 s43, 4")
    a("s_waitcnt lgkmcnt(0)")
    a(f"v_mfma_f32_32x32x16_bf16 {vr(S[0],16)}, {vr(KA[0],4)}, {vr(QA,4)}, {vr(C,16)}")
    a(f"v_mfma_f32_32x32x8_bf16 {vr(S[0],16)}, {vr(KB[0],2)}, {vr(QBA,2)}, {vr(S[0],16)}")
    a("s_nop 7")
    a(".p2align 6")
    a.label(P + "loop")
    for t in range(16):
        s, sn, sp = S[t & 3], S[(t + 1) & 3], S[(t - 1) & 3]
        if t in (2, 6, 14):
            a("s_cmp_eq_u32 s42, 0")
            a(f"s_cbranch_scc1 {P}nosync{t}")
            a(f"s_waitcnt vmcnt({ {2: 17, 6: 15, 14: 0}[t] })")
            a("s_barrier")
            a.label(P + f"nosync{t}")
        a("s_waitcnt lgkmcnt(0)")
        a(f"v_mfma_f32_32x32x16_bf16 {vr(sn,16)}, {vr(KA[(t+1)&1],4)}, {vr(QA,4)}, {vr(C,16)}")
        a(f"ds_read_b128 {vr(KA[t&1],4)}, v{AK} offset:{ka_off(t+2)}")
        if t % 2 == 0:
            p = (t + 2) >> 1
            a(f"ds_read_b64 {vr(KB[p&1],2)}, v{AB} offset:{kb_off(p)}")
        a("s_mov_b64 exec, s[40:41]")
        a(f"ds_read_b128 {vr(V[t&1],4)}, v{AV} offset:{v_off(t,0)}")
        a(f"ds_read_b128 {vr(V[t&1]+4,4)}, v{AV} offset:{v_off(t,1)}")
        a("s_mov_b64 exec, -1")
        for i in range(0, 4): a(f"v_exp_f32 v{s+i}, v{s+i}")
        q = QBB if (t + 1) & 1 else QBA
        a(f"v_mfma_f32_32x32x8_bf16 {vr(sn,16)}, {vr(KB[((t+1)>>1)&1],2)}, {vr(q,2)}, {vr(sn,16)}")
        for i in range(4, 8): a(f"v_exp_f32 v{s+i}, v{s+i}")
        a(f"v_smfmac_f32_32x32x32_bf16 {vr(O,16)}, {vr(V[(t-1)&1],4)}, {vr(sp,8)}, v{IDX}")
        for i in range(8, 12): a(f"v_exp_f32 v{s+i}, v{s+i}")
        a(f"v_smfmac_f32_32x32x32_bf16 {vr(O,16)}, {vr(V[(t-1)&1]+4,4)}, {vr(sp+8,8)}, v{IDX}")
        for i in range(12, 16): a(f"v_exp_f32 v{s+i}, v{s+i}")
    a(f"v_add_u32 v{AK}, 40960, v{AK}")
    a(f"v_add_u32 v{AB}, 40960, v{AB}")
    a(f"v_add_u32 v{AV}, 40960, v{AV}")
    a("s_mov_b32 s42, 0")
    a("s_sub_u32 s43, s43, 1")
    a("s_cmp_lg_u32 s43, 0")
    a(f"s_cbranch_scc1 {P}loop")
    a("s_waitcnt lgkmcnt(0)")
    a(f"v_smfmac_f32_32x32x32_bf16 {vr(O,16)}, {vr(V[1],4)}, {vr(S[3],8)}, v{IDX}")
    a(f"v_smfmac_f32_32x32x32_bf16 {vr(O,16)}, {vr(V[1]+4,4)}, {vr(S[3]+8,8)}, v{IDX}")
    a("v_and_b32 v140, 19, v0")
    a("v_bfe_u32 v141, v0, 2, 1")
    a("v_lshl_add_u32 v140, v141, 3, v140")
    a("v_bfe_u32 v141, v0, 3, 1")
    a("v_lshl_add_u32 v140, v141, 2, v140")
    a("v_lshrrev_b32 v141, 4, v140")
    a("v_mul_u32_u24 v141, 20480, v141")
    a("v_and_b32 v140, 15, v140")
    a("v_lshl_add_u32 v140, v140, 4, v141")
    a("v_lshl_add_u32 v141, v1, 8, v140")
    a("s_lshl_b32 s33, s30, 4")
    a("s_lshl_b32 s34, s28, 1")
    a("s_add_u32 s33, s33, s34")
    a("s_mul_i32 s33, s33, 20480")
    a(f"s_add_u32 s33, s33, {OFF_O}")
    a("s_lshl_b32 s34, s29, 9")
    a("s_add_u32 s34, s34, s33")
    a("s_lshr_b32 s35, s29, 2")
    a("s_lshl_b32 s35, s35, 9")
    a("s_and_b32 s36, s29, 1")
    a("s_lshl_b32 s36, s36, 8")
    a("s_add_u32 s35, s35, s36")
    a("s_and_b32 s36, s29, 2")
    a("s_lshl_b32 s36, s36, 2")
    a("s_add_u32 s35, s35, s36")
    a("s_add_u32 s35, s35, s33")
    a("s_add_u32 s35, s35, 16384")
    a(f"v_rcp_f32 v142, v{O+12}")
    a(f"v_add_f32 v144, v{O}, v{O+1}")
    for i in range(2, 12):
        a(f"v_add_f32 v144, v144, v{O+i}")
    a(f"v_mul_f32 v144, 0, v144")
    a(f"v_add_f32 v144, v144, v{O+12}")
    a(f"s_mov_b32 s36, {f32(2.0**-64)}")
    a(f"s_mov_b32 s37, {f32(2.0**100)}")
    a("v_cmp_nle_f32 vcc, s36, v144")
    a("v_cmp_nge_f32 s[44:45], s37, v144")
    a("s_nop 1")
    a("s_or_b64 s[44:45], s[44:45], vcc")
    a("s_and_b64 s[44:45], s[44:45], s[46:47]")
    a(f"s_cbranch_scc1 {P}fallback")
    for i in range(12):
        a(f"v_mul_f32 v{O+i}, v142, v{O+i}")
    for i in range(6):
        a(f"v_cvt_pk_bf16_f32 v{S[0]+i}, v{O+2*i}, v{O+2*i+1}")
    a(f"buffer_store_dwordx4 {vr(S[0],4)}, v141, s[20:23], s34 offen")
    a("s_mov_b32 exec_hi, 0")
    a(f"buffer_store_dwordx2 {vr(S[0]+4,2)}, v140, s[20:23], s35 offen")
    a.label(P + "end")
    a("s_endpgm")
    a.label(P + "fallback")
    a("s_mov_b64 s[46:47], 0")
    a(f"v_lshlrev_b32 v{AK}, 4, v0")
    a(f"v_lshlrev_b32 v{AB}, 3, v0")
    a(f"v_mov_b32 v143, 0xff800000")
    a("s_mov_b32 s43, 16")
    a.label(P + "maxloop")
    for p in range(2):
        a(f"ds_read_b128 {vr(KA[0],4)}, v{AK} offset:{ka_off(2*p)}")
        a(f"ds_read_b128 {vr(KA[1],4)}, v{AK} offset:{ka_off(2*p+1)}")
        a(f"ds_read_b64 {vr(KB[0],2)}, v{AB} offset:{kb_off(p)}")
        a("s_waitcnt lgkmcnt(0)")
        a(f"v_mfma_f32_32x32x16_bf16 {vr(S[0],16)}, {vr(KA[0],4)}, {vr(QA,4)}, 0")
        a(f"v_mfma_f32_32x32x8_bf16 {vr(S[0],16)}, {vr(KB[0],2)}, {vr(QBA,2)}, {vr(S[0],16)}")
        a(f"v_mfma_f32_32x32x16_bf16 {vr(S[1],16)}, {vr(KA[1],4)}, {vr(QA,4)}, 0")
        a(f"v_mfma_f32_32x32x8_bf16 {vr(S[1],16)}, {vr(KB[0],2)}, {vr(QBB,2)}, {vr(S[1],16)}")
        a("s_nop 15")
        for i in range(16):
            a(f"v_max3_f32 v143, v143, v{S[0]+i}, v{S[1]+i}")
    a(f"v_add_u32 v{AK}, 10240, v{AK}")
    a(f"v_add_u32 v{AB}, 10240, v{AB}")
    a("s_sub_u32 s43, s43, 1")
    a("s_cmp_lg_u32 s43, 0")
    a(f"s_cbranch_scc1 {P}maxloop")
    a("v_mov_b32 v144, v143")
    a("s_nop 1")
    a("v_permlane32_swap_b32 v143, v144")
    a("v_max_f32 v143, v143, v144")
    for i in range(16):
        a(f"v_sub_f32 v{C+i}, 0, v143")
    a(f"s_branch {P}pass")
    return desc(name, 152)

def gemm_res(a, name, kind):
    k3 = kind == "wo"
    P = name + "_"
    NS = 20 if k3 else 54
    NST = (NS + 3) // 4
    R = 5
    header(a, name)
    a("s_cmp_ge_u32 s2, 256")
    a(f"s_cbranch_scc1 {P}end")
    a(f"s_load_dwordx2 s[8:9], s[0:1], {KWS}")
    if k3:
        a(f"s_load_dwordx2 s[4:5], s[0:1], {KX}")
    else:
        a(f"s_load_dwordx4 s[4:7], s[0:1], {KB2}")
    a("v_lshrrev_b32 v1, 6, v0")
    a("v_and_b32 v0, 63, v0")
    a("s_and_b32 s31, s2, 7")
    a("v_readfirstlane_b32 s28, v1")
    a("s_bfe_u32 s32, s2, 0x20003")
    a("s_lshl_b32 s29, s31, 2")
    a("s_add_u32 s29, s29, s32")
    a("s_lshr_b32 s30, s2, 5")
    a("v_lshlrev_b32 v1, 4, v0")
    a("v_add_u32 v2, 4096, v1")
    a("s_lshl_b32 s33, s29, 2")
    a("s_add_u32 s33, s33, s28")
    a(f"s_mul_i32 s34, s33, {NS*1024}")
    a(f"s_add_u32 s34, s34, {OFF_O if k3 else OFF_G}")
    a(f"s_mul_i32 s35, s30, {NS*32*160}")
    a("s_mul_i32 s36, s28, 5120")
    a("s_add_u32 s35, s35, s36")
    a(f"s_add_u32 s35, s35, {OFF_WO if k3 else OFF_W2}")
    a("v_and_b32 v3, 15, v0")
    a("v_lshrrev_b32 v4, 4, v0")
    a("v_mul_u32_u24 v3, 1280, v3")
    a("v_mul_u32_u24 v5, 40, v4")
    a("v_add_u32 v3, v3, v5")
    a("s_mul_i32 s37, s33, 20480")
    a("s_mul_i32 s38, s30, 160")
    a("s_add_u32 s37, s37, s38")
    a("s_waitcnt lgkmcnt(0)")
    srd(a, 20, 8, WS_SIZE)
    if k3:
        srd(a, 12, 4, 2048 * 1280)
        srd(a, 16, 8, 2048 * 1280, OFF_H)
    else:
        srd(a, 12, 8, 2048 * 1280, OFF_H)
        srd(a, 16, 6, 2048 * 1280)
        srd(a, 24, 4, 1280)
    ACC, AR, WF, RS = 12, 32, 112, 152
    a(f"buffer_load_dwordx4 {vr(RS,4)}, v3, s[12:15], s37 offen")
    a(f"buffer_load_dwordx4 {vr(RS+4,4)}, v3, s[12:15], s37 offen offset:16")
    a(f"buffer_load_dwordx2 {vr(RS+8,2)}, v3, s[12:15], s37 offen offset:32")
    if not k3:
        a(f"buffer_load_dwordx4 {vr(RS+12,4)}, v5, s[24:27], s38 offen")
        a(f"buffer_load_dwordx4 {vr(RS+16,4)}, v5, s[24:27], s38 offen offset:16")
        a(f"buffer_load_dwordx2 {vr(RS+20,2)}, v5, s[24:27], s38 offen offset:32")
    cnt = []
    def issue(s):
        n = min(4, NS - 4 * s)
        slot = (s % R) * 20480
        k = 0
        if n == 4:
            a(f"s_add_u32 m0, s36, {slot}")
            for i in range(n):
                a(f"buffer_load_dwordx4 {vr(AR+16*(s%R)+4*i,4)}, v1, s[20:23], s34 offen offset:{1024*i}"); k += 1
            for i in range(4):
                a(f"buffer_load_dwordx4 v1, s[20:23], s35 offen offset:{1024*i} lds"); k += 1
            a(f"s_add_u32 m0, s36, {slot+4096}")
            a("s_add_u32 s34, s34, 4096")
            a(f"buffer_load_dwordx4 v2, s[20:23], s35 offen lds"); k += 1
            a("s_add_u32 s35, s35, 20480")
        else:
            a("s_mul_i32 s39, s28, 3072")
            a("s_sub_u32 s35, s35, s36")
            a("s_add_u32 s35, s35, s39")
            a(f"s_add_u32 m0, s39, {slot}")
            for i in range(n):
                a(f"buffer_load_dwordx4 {vr(AR+16*(s%R)+4*i,4)}, v1, s[20:23], s34 offen offset:{1024*i}"); k += 1
            for i in range(3):
                a(f"buffer_load_dwordx4 v1, s[20:23], s35 offen offset:{1024*i} lds"); k += 1
        cnt.append(k)
    for s in range(min(R, NST)):
        issue(s)
    a("v_lshrrev_b32 v6, 5, v0")
    a("v_lshlrev_b32 v6, 4, v6")
    a("v_bfe_u32 v7, v0, 2, 3")
    a("v_add_u32 v6, v6, v7")
    a("v_mul_u32_u24 v6, 160, v6")
    a("v_and_b32 v7, 3, v0")
    a("v_mul_u32_u24 v7, 40, v7")
    a("v_add_u32 v6, v6, v7")
    a(f"v_add_u32 v7, {3*20480}, v6")
    a(f"s_waitcnt vmcnt({sum(cnt)})")
    for i in range(10):
        a(f"v_lshlrev_b32 v{ACC+2*i}, 16, v{RS+i}")
        a(f"v_and_b32 v{ACC+2*i+1}, 0xffff0000, v{RS+i}")
        if not k3:
            a(f"v_lshlrev_b32 v8, 16, v{RS+12+i}")
            a(f"v_and_b32 v9, 0xffff0000, v{RS+12+i}")
            a(f"v_add_f32 v{ACC+2*i}, v8, v{ACC+2*i}")
            a(f"v_add_f32 v{ACC+2*i+1}, v9, v{ACC+2*i+1}")
    def reads(t):
        s, st = t >> 2, t & 3
        sl = s % R
        ad, io = (6, sl * 20480) if sl < 3 else (7, (sl - 3) * 20480)
        F = WF + 20 * (t & 1)
        r = []
        for tt in range(5):
            r.append(f"ds_read_b64_tr_b16 {vr(F+4*tt,2)}, v{ad} offset:{io+st*5120+8*tt}")
            r.append(f"ds_read_b64_tr_b16 {vr(F+4*tt+2,2)}, v{ad} offset:{io+st*5120+8*tt+1280}")
        return r
    def sync(s):
        a(f"s_waitcnt vmcnt({sum(cnt[s+1:])})")
        a("s_barrier")
    sync(0)
    for r in reads(0): a(r)
    for t in range(NS):
        s, st = t >> 2, t & 3
        F = WF + 20 * (t & 1)
        a("s_waitcnt lgkmcnt(0)")
        nxt = t + 1 < NS
        if nxt and st == 3:
            sync(s + 1)
        rd = reads(t + 1) if nxt else []
        for tt in range(5):
            d = vr(ACC + 4 * tt, 4)
            a(f"v_mfma_f32_16x16x32_bf16 {d}, {vr(F+4*tt,4)}, {vr(AR+16*(s%R)+4*st,4)}, {d}")
            for r in rd[2*tt:2*tt+2]: a(r)
        if nxt and st == 3 and s + R < NST:
            issue(s + R)
    a("s_nop 7")
    for i in range(10):
        a(f"v_cvt_pk_bf16_f32 v{RS+i}, v{ACC+2*i}, v{ACC+2*i+1}")
    a(f"buffer_store_dwordx4 {vr(RS,4)}, v3, s[16:19], s37 offen")
    a(f"buffer_store_dwordx4 {vr(RS+4,4)}, v3, s[16:19], s37 offen offset:16")
    a(f"buffer_store_dwordx2 {vr(RS+8,2)}, v3, s[16:19], s37 offen offset:32")
    a.label(P + "end")
    a("s_endpgm")
    return desc(name, 176)

def build():
    a = Asm()
    launches = [
        ("qkv_kernel", 256, 512, LDS_LN),
        ("attn_kernel", 256, 512, 163840),
        ("wo_kernel", 256, 256, 102400 + 2048),
        ("ffn1_kernel", 256, 512, LDS_LN),
        ("ffn2_kernel", 256, 256, 102400 + 2048),
    ]
    d = []
    d.append(gemm_ln(a, "qkv_kernel", "qkv"))
    d.append(attention(a, "attn_kernel"))
    d.append(gemm_res(a, "wo_kernel", "wo"))
    d.append(gemm_ln(a, "ffn1_kernel", "ffn1"))
    d.append(gemm_res(a, "ffn2_kernel", "ffn2"))
    errs = check(a.lines)
    for e in errs: print(e, file=sys.stderr)
    head = "".join(f"; @launch kernel={n} grid=({g},1,1) block=({b},1,1) lds={l}\n" for n, g, b, l in launches)
    txt = head + '.amdgcn_target "amdgcn-amd-amdhsa--gfx950"\n.text\n' + a.text() + '.section .rodata,"a"\n' + "".join(d)
    return txt, errs

if __name__ == "__main__":
    out = sys.argv[1] if len(sys.argv) > 1 else f"cdna_kernels/{NAME}.s"
    for kv in sys.argv[2:]:
        k, v = kv.split("="); CFG[k] = int(v)
    txt, errs = build()
    open(out, "w").write(txt)
    print("written", out, len(txt), "bytes; hazards:", len(errs))
```

```python
import re

class Asm:
    def __init__(self):
        self.lines = []
    def __call__(self, s):
        for l in s.split("\n"):
            l = l.strip()
            if l:
                self.lines.append(l)
    def label(self, n):
        self.lines.append(n + ":")
    def c(self, s):
        self.lines.append("; " + s)
    def text(self):
        out = []
        for l in self.lines:
            if l.endswith(":") or l.startswith(".") or l.startswith(";"):
                out.append(l)
            else:
                out.append("    " + l)
        return "\n".join(out) + "\n"

def vr(b, n=1):
    return f"v{b}" if n == 1 else f"v[{b}:{b+n-1}]"
def sr(b, n=1):
    return f"s{b}" if n == 1 else f"s[{b}:{b+n-1}]"

_REG = re.compile(r"\b([vsa])(\d+)\b|\b([vsa])\[(\d+):(\d+)\]|\b(vcc|exec|m0|scc)\b")
def regs_of(op):
    out = set()
    for m in _REG.finditer(op):
        if m.group(1):
            out.add((m.group(1), int(m.group(2))))
        elif m.group(3):
            for i in range(int(m.group(4)), int(m.group(5)) + 1):
                out.add((m.group(3), i))
        else:
            out.add((m.group(6), 0))
    return out

TRANS = ("v_exp_", "v_log_", "v_rcp_", "v_rsq_", "v_sqrt_", "v_sin_", "v_cos_")
class Ins:
    def __init__(self, line):
        self.line = line
        line = line.split(";")[0].strip()
        p = line.split(None, 1)
        self.op = p[0]
        ops = [x.strip() for x in re.split(r",(?![^\[]*\])", p[1])] if len(p) > 1 else []
        self.ops = ops
        op = self.op
        self.mfma = op.startswith("v_mfma") or op.startswith("v_smfmac")
        self.valu = op.startswith("v_") and not self.mfma
        self.trans = op.startswith(TRANS)
        self.dot = op.startswith("v_dot")
        self.vmem = op.startswith(("buffer_", "global_"))
        self.ds = op.startswith("ds_")
        self.salu = op.startswith("s_")
        self.passes = 0
        self.w = set(); self.r = set(); self.srcc = set(); self.ab = set()
        R = [regs_of(o) for o in ops]
        if self.mfma:
            self.passes = 8 if "32x32" in op else (2 if "4x4x4" in op else 4)
            self.w = R[0]
            if op.startswith("v_smfmac"):
                self.srcc = R[0]; self.ab = R[1] | R[2] | R[3]
            else:
                self.srcc = R[3]; self.ab = R[1] | R[2]
            self.r = self.srcc | self.ab
        elif self.valu:
            if op.startswith("v_cmp"):
                self.w = R[0]; self.r = set().union(*R[1:])
            elif op.startswith(("v_permlane32_swap", "v_permlane16_swap", "v_swap")):
                self.w = R[0] | R[1]; self.r = R[0] | R[1]
            elif op.startswith(("v_add_co", "v_sub_co", "v_addc_co", "v_subb_co")):
                self.w = R[0] | R[1]; self.r = set().union(*R[2:])
            else:
                self.w = R[0]; self.r = set().union(*R[1:]) if len(R) > 1 else set()
                if op.startswith(("v_fmac", "v_dot2c", "v_pk_fmac")) or "dpp" in op or "row_" in line or "quad_perm" in line or "sdwa" in op:
                    self.r |= R[0]
        elif self.vmem:
            lds = re.search(r"\blds\b", line) is not None or "_lds_" in op
            self.lds = lds
            if "store" in op or "atomic" in op or lds or op in ("buffer_wbl2", "buffer_inv"):
                self.r = set().union(*R) if R else set()
                if lds: self.r.add(("m0", 0))
                if "atomic" in op and "sc0" in line: self.w = R[0]
            else:
                self.w = R[0]; self.r = set().union(*R[1:])
            self.wide = ("store" in op) and op.endswith(("x3", "x4"))
            self.data = (R[0] if op.startswith("buffer") else (R[1] if len(R) > 1 else set())) if "store" in op else set()
        elif self.ds:
            if op.startswith(("ds_read", "ds_bpermute", "ds_permute", "ds_swizzle")):
                self.w = R[0]; self.r = set().union(*R[1:])
            else:
                self.r = set().union(*R)
        elif self.salu:
            if op.startswith(("s_cmp", "s_cbranch", "s_branch", "s_waitcnt", "s_barrier", "s_nop", "s_endpgm", "s_setprio", "s_sleep")):
                self.r = set().union(*R) if R else set()
            else:
                self.w = R[0] if R else set(); self.r = set().union(*R[1:]) if len(R) > 1 else set()
                if "saveexec" in op: self.w |= {("exec", 0)}
        self.dpp = self.valu and ("dpp" in op or "row_" in line or "quad_perm" in line)
        self.states = 1
        if op == "s_nop":
            self.states = int(ops[0], 0) + 1

def isv(s): return {x for x in s if x[0] in "va"}
def iss(s): return {x for x in s if x[0] == "s" or x[0] == "vcc"}

def need(p, c):
    n = 0
    if p.valu:
        pw = isv(p.w)
        if c.mfma and pw & c.r: n = max(n, 2)
        if p.trans and c.valu and not c.trans and pw & c.r: n = max(n, 1)
        if p.dot and (c.valu or c.mfma or c.vmem or c.ds) and pw & (c.r | c.w):
            same = c.op == p.op and not (pw & set().union(*[regs_of(o) for o in c.ops[1:3]]))
            if not same: n = max(n, 3)
        if c.valu and c.op.startswith(("v_readlane", "v_readfirstlane")) and pw & c.r: n = max(n, 1)
        if c.valu and c.op.startswith("v_permlane") and pw & c.r: n = max(n, 2)
        if c.dpp and pw & c.r: n = max(n, 2)
        if "sdwa" in p.op and c.valu and pw & (c.r | c.w): n = max(n, 1)
        sw = iss(p.w)
        if sw:
            cr = set(c.r)
            if c.valu and (c.op.startswith("v_cndmask") and len(c.ops) == 3): cr.add(("vcc", 0))
            if c.vmem and sw & cr: n = max(n, 5)
            if c.valu and sw & cr: n = max(n, 4 if c.op.startswith(("v_readlane", "v_writelane", "v_div_fmas")) else 2)
            if c.salu and sw & cr: n = max(n, 1)
            if c.op.startswith("s_cbranch_vcc") and ("vcc", 0) in sw: n = max(n, 5)
        if ("exec", 0) in p.w or p.op.startswith("v_cmpx"):
            if c.mfma or c.op.startswith(("v_readlane", "v_readfirstlane", "v_writelane", "v_permlane")): n = max(n, 4)
            if c.dpp: n = max(n, 5)
    if p.mfma:
        P = p.passes
        if c.mfma:
            if p.w & c.ab: n = max(n, P + 4 if P > 2 else 5)
            if p.w & c.srcc:
                if not (p.w == c.srcc and c.passes == P): n = max(n, P + 2)
                elif P == 2: n = max(n, 2)
            elif p.w & c.w and p.w != c.w: n = max(n, P + 2)
        elif (c.valu or c.vmem or c.ds) and p.w & (c.r | c.w): n = max(n, P + 4 if P > 2 else 5)
        if c.valu and p.srcc & c.w: n = max(n, P - 1)
    if p.salu and ("m0", 0) in p.w and c.vmem and getattr(c, "lds", False): n = max(n, 1)
    if p.vmem and getattr(p, "wide", False) and p.data & c.w:
        n = max(n, 2 if c.valu else 1)
    return n

def check(asm_lines, window=24):
    ins = []; labels = {}
    for l in asm_lines:
        s = l.split(";")[0].strip()
        if not s or s.startswith("."): continue
        if s.endswith(":"):
            labels[s[:-1]] = len(ins); continue
        ins.append(Ins(s))
    errs = []
    def succ(i):
        x = ins[i]
        if x.op == "s_endpgm": return []
        if x.op == "s_branch": return [labels[x.ops[0]]]
        if x.op.startswith("s_cbranch"): return [i + 1, labels[x.ops[0]]]
        return [i + 1]
    for i, p in enumerate(ins):
        if not (p.valu or p.mfma or p.vmem or (p.salu and ("m0", 0) in p.w)): continue
        stack = [(j, 0) for j in succ(i)]
        seen = {}
        while stack:
            j, d = stack.pop()
            if j >= len(ins) or d >= 20: continue
            if seen.get(j, 99) <= d: continue
            seen[j] = d
            c = ins[j]
            n = need(p, c)
            if n > d:
                errs.append(f"hazard: need {n} have {d}:\n    {p.line}\n    {c.line}")
            for k in succ(j): stack.append((k, d + c.states))
    return errs
```

```python
import sys, math, struct
from asmlib import Asm, vr, sr, check

NAME = "sequential_preLN__softmax_full_mha__dense_activation_gelu__prompt"
KX, KWQKV, KWO, KW1, KB1, KW2, KB2, KOUT, KDBG, KWS = 0, 8, 16, 32, 40, 48, 56, 64, 72, 80
UNIT = 163840
OFF_QKV = 0
OFF_O = 64 * UNIT
OFF_H = OFF_O + 2621440
OFF_G = OFF_H + 2621440
OFF_WO = OFF_G + 128 * 54 * 1024
OFF_W2 = OFF_WO + 640 * 1280
WS_END = OFF_W2 + 1728 * 1280
WS_SIZE = WS_END + 65536

def f32(x):
    return "0x%08x" % struct.unpack("<I", struct.pack("<f", x))[0]

CFG = dict(rot1=0, rot4=0, prof=0, dummy=0, nocomp=0, rot3=0, rot5=0, pf2=0, xp=0, n01=20, n04=20, n03=22, n05=22, pf4=0, pfk=0, prio=1, wsoff=0)
OFF_PROF = 64 << 20

def ST(k):
    return " sc1" if CFG.get(k) else ""

def srd(a, d, p, size, off=0):
    if p == 8: off += CFG["wsoff"] << 20
    if off:
        a(f"s_add_u32 s{d}, s{p}, {off}")
        a(f"s_addc_u32 s{d+1}, s{p+1}, 0")
    else:
        a(f"s_mov_b32 s{d}, s{p}")
        a(f"s_mov_b32 s{d+1}, s{p+1}")
    a(f"s_mov_b32 s{d+2}, {size}")
    a(f"s_mov_b32 s{d+3}, 0x20000")

def header(a, name):
    a(f".globl {name}")
    a(".p2align 8")
    a(f".type {name},@function")
    a.label(name)
    if CFG["prof"]:
        a("s_memrealtime s[90:91]")
        a("s_memtime s[80:81]")
        a("v_readfirstlane_b32 s89, v0")
        a("s_waitcnt lgkmcnt(0)")
        for i in range(4): a(f"s_mov_b32 s{72+2*i}, s80")

def stamp(a, i):
    if CFG["prof"]:
        a(f"s_memtime s[{72+2*i}:{73+2*i}]")

def instrument(a):
    out = []; kid = -1
    for l in a.lines:
        if l.startswith(".globl"): kid += 1
        if l == "s_endpgm":
            out += f"""s_waitcnt vmcnt(0) lgkmcnt(0)
s_memrealtime s[92:93]
s_memtime s[82:83]
s_load_dwordx2 s[84:85], s[0:1], {KWS}
s_mov_b64 exec, 1
s_lshr_b32 s89, s89, 6
s_add_u32 s88, s2, {kid*272}
s_lshl_b32 s88, s88, 3
s_add_u32 s88, s88, s89
s_lshl_b32 s88, s88, 5
s_add_u32 s88, s88, {OFF_PROF}
s_waitcnt lgkmcnt(0)
s_mov_b32 s86, 0x8000000
s_mov_b32 s87, 0x20000
v_mov_b32 v0, s90
v_mov_b32 v1, s92
v_mov_b32 v2, s80
v_mov_b32 v3, s82
v_mov_b32 v4, 0
v_mov_b32 v8, s72
v_mov_b32 v9, s74
v_mov_b32 v10, s76
v_mov_b32 v11, s78
buffer_store_dwordx4 v[0:3], v4, s[84:87], s88 offen
buffer_store_dwordx4 v[8:11], v4, s[84:87], s88 offen offset:16""".split("\n")
        out.append(l)
    a.lines = out

def desc(name, nv, ns=96):
    nv = (nv + 7) // 8 * 8
    return f""".p2align 6
.amdhsa_kernel {name}
  .amdhsa_next_free_vgpr {nv}
  .amdhsa_next_free_sgpr {ns}
  .amdhsa_accum_offset {min(nv, 256)}
  .amdhsa_group_segment_fixed_size 0
  .amdhsa_kernarg_size 88
  .amdhsa_user_sgpr_count 2
  .amdhsa_user_sgpr_kernarg_segment_ptr 1
  .amdhsa_system_sgpr_workgroup_id_x 1
.end_amdhsa_kernel
"""

def bf16_round(a, dst, src):
    a(f"v_cvt_pk_bf16_f32 v{dst}, v{src}, v{src}")
    a(f"v_lshlrev_b32 v{dst}, 16, v{dst}")

STAT = 131072
LDS_LN = STAT + 4096

def gemm_ln(a, name, kind):
    k1 = kind == "qkv"
    P = name + "_"
    WS = 3840 if k1 else 3456
    header(a, name)
    a(f"s_cmp_ge_u32 s2, 256")
    a(f"s_cbranch_scc1 {P}end")
    if k1:
        a(f"s_load_dwordx4 s[4:7], s[0:1], {KX}")
        a(f"s_load_dwordx2 s[8:9], s[0:1], {KWS}")
    else:
        a(f"s_load_dwordx4 s[40:43], s[0:1], {KW1}")
        a(f"s_load_dwordx2 s[8:9], s[0:1], {KWS}")
    a("v_lshrrev_b32 v1, 6, v0")
    a("v_and_b32 v0, 63, v0")
    a("s_and_b32 s31, s2, 7")
    a("v_readfirstlane_b32 s28, v1")
    a("s_lshr_b32 s32, s2, 3")
    if k1:
        a("s_cmp_ge_u32 s32, 30")
        a(f"s_cbranch_scc1 {P}relayout")
        a("s_and_b32 s33, s31, 1")
        a("s_mul_i32 s33, s33, 30")
        a("s_add_u32 s33, s33, s32")
        a("s_lshr_b32 s30, s33, 2")
        a("s_and_b32 s33, s33, 3")
        a("s_lshr_b32 s29, s31, 1")
        a("s_lshl_b32 s29, s29, 2")
        a("s_add_u32 s29, s29, s33")
    else:
        a("s_cmp_ge_u32 s32, 28")
        a(f"s_cbranch_scc1 {P}{'spare' if CFG['pf4'] else 'end'}")
        a("s_lshr_b32 s30, s32, 1")
        a("s_and_b32 s33, s32, 1")
        a("s_lshl_b32 s29, s31, 1")
        a("s_add_u32 s29, s29, s33")
    a("s_cmp_lt_u32 s28, 4")
    a(f"s_cbranch_scc1 {P}compute")

    a("s_sub_u32 s28, s28, 4")
    if CFG["prio"]: a("s_setprio 3")
    a("v_lshrrev_b32 v2, 3, v0")
    a("v_and_b32 v3, 7, v0")
    a("v_lshrrev_b32 v4, 4, v0")
    a("v_xor_b32 v3, v3, v4")
    a("v_mul_u32_u24 v2, 1280, v2")
    a("v_lshl_add_u32 v2, v3, 4, v2")
    a("v_xor_b32 v5, 64, v2")
    a("v_mov_b32 v10, v2")
    a(f"v_add_u32 v11, {10240-1024}, v5")
    a(f"v_add_u32 v12, {2*(10240-1024)}, v2")
    a(f"v_add_u32 v13, {3*(10240-1024)}, v5")
    a("v_and_b32 v3, 15, v0")
    a("v_lshlrev_b32 v5, 2, v4")
    a("v_xor_b32 v3, v3, v5")
    a(f"v_mul_u32_u24 v14, {WS}, v4")
    a("v_lshl_add_u32 v14, v3, 4, v14")
    for i in range(1, 4):
        a(f"v_add_u32 v{14+i}, {i*(4*WS-1024)}, v14")
    a("s_mul_i32 s34, s29, 163840")
    a("s_mul_i32 s33, s28, 40960")
    a("s_add_u32 s34, s34, s33")
    a("s_lshl_b32 s35, s30, 8")
    a(f"s_mul_i32 s33, s28, {16*WS}")
    a("s_add_u32 s35, s35, s33")
    rot = CFG["rot1"] if k1 else CFG["rot4"]
    if rot:
        a("s_mul_i32 s38, s29, 3")
        a("s_add_u32 s38, s38, s30")
        a("s_mul_i32 s33, s38, 6554")
        a("s_lshr_b32 s33, s33, 16")
        a("s_mul_i32 s33, s33, 10")
        a("s_sub_u32 s38, s38, s33")
        a("s_lshl_b32 s36, s38, 7")
        a("s_add_u32 s36, s36, s34")
        a(f"s_mul_i32 s37, s38, {64*WS}")
        a("s_add_u32 s37, s37, s35")
    else:
        a("s_mov_b32 s36, s34")
        a("s_mov_b32 s37, s35")
    a("s_lshl_b32 s39, s28, 12")
    a("s_waitcnt lgkmcnt(0)")
    if k1:
        srd(a, 12, 4, 2048 * 1280)
        srd(a, 16, 6, 640 * 3840)
    else:
        srd(a, 12, 8, 2048 * 1280, OFF_H)
        srd(a, 16, 40, 640 * 3456)
        srd(a, 24, 42, 1728 * 2)
    stream = []
    for s in range(10):
        slot = (s & 3) * 32768
        for i in range(4):
            g = [f"s_add_u32 m0, s39, {slot}", "s_nop 0"] if i == 0 else []
            g.append(f"buffer_load_dwordx4 v{10+i}, s[12:15], s36 offen offset:{1024*i} lds")
            stream.append(g)
        for i in range(4):
            g = [f"s_add_u32 m0, s39, {slot+16384}", "s_add_u32 s36, s36, 128"] if i == 0 else []
            g.append(f"buffer_load_dwordx4 v{14+i}, s[16:19], s37 offen offset:{1024*i} lds")
            if i == 3:
                g.append(f"s_add_u32 s37, s37, {64*WS}")
                if rot:
                    g += ["s_add_u32 s38, s38, 1", "s_cmp_eq_u32 s38, 10", "s_cselect_b32 s36, s34, s36", "s_cselect_b32 s37, s35, s37"]
            stream.append(g)
    issued = [0]
    def issue(n=1):
        for _ in range(n):
            if issued[0] < 80:
                for x in stream[issued[0]]: a(x)
                issued[0] += 1
    N0 = CFG["n01"] if k1 else CFG["n04"]
    if not k1:
        a("v_and_b32 v6, 31, v0")
        a("v_lshlrev_b32 v6, 1, v6")
        a("s_lshl_b32 s33, s30, 2")
        a("s_add_u32 s33, s33, s28")
        a("s_lshl_b32 s33, s33, 6")
        a("buffer_load_ushort v9, v6, s[24:27], s33 offen")
    issue(N0)
    a("v_and_b32 v2, 31, v0")
    a("v_lshrrev_b32 v3, 5, v0")
    a("v_bfe_u32 v4, v0, 1, 3")
    a("v_xor_b32 v4, v4, v3")
    a("v_lshlrev_b32 v4, 4, v4")
    a("v_lshl_add_u32 v4, v2, 7, v4")
    a("v_add_u32 v20, s39, v4")
    for i in range(1, 4):
        a(f"v_xor_b32 v{20+i}, {32*i}, v20")
    for i in range(4):
        a(f"v_add_u32 v{24+i}, 0x10000, v{20+i}")
    a("v_bfe_u32 v4, v0, 2, 2")
    a("v_lshl_add_u32 v5, v3, 3, v4")
    a("v_lshlrev_b32 v5, 8, v5")
    a("v_xor_b32 v4, s28, v4")
    a("v_lshl_add_u32 v5, v4, 6, v5")
    a("v_bfe_u32 v4, v0, 4, 1")
    a("v_lshl_add_u32 v5, v4, 5, v5")
    a("v_and_b32 v4, 3, v0")
    a("v_lshl_add_u32 v5, v4, 3, v5")
    a("v_add_u32 v28, 16384, v5")
    a("v_add_u32 v29, 0x10000, v28")
    a("v_mov_b32 v30, 0x3f803f80")
    a("v_mov_b32 v31, 0x3f803f80")
    for i in range(12):
        a(f"v_mov_b32 v{72+i}, 0")
    for s in range(10):
        a(f"s_waitcnt vmcnt({issued[0] - 8 * (s + 1)})")
        a("s_barrier")
        st = (s >> 1) & 1
        io = (s & 1) * 32768
        if CFG["nocomp"] and s < 9:
            issue(8)
            continue
        issue()
        for i in range(4):
            a(f"ds_read_b128 {vr(40+4*i,4)}, v{20+4*st+i} offset:{io}")
        for i in range(8):
            a(f"ds_read_b64_tr_b16 {vr(56+2*i,2)}, v{28+st} offset:{io + (i>>1)*4096 + (i&1)*1024}")
        issue(2)
        a("s_waitcnt lgkmcnt(0)")
        M4 = "v_mfma_f32_4x4x4_16b_bf16"
        for i in range(8):
            a(f"{M4} v[72:75], v[30:31], {vr(40+2*i,2)}, v[72:75]")
            a(f"{M4} v[76:79], {vr(40+2*i,2)}, {vr(40+2*i,2)}, v[76:79]")
            a(f"{M4} v[80:83], v[30:31], {vr(56+2*i,2)}, v[80:83]")
            if i in (0, 2, 4, 6, 7): issue()
    if not k1 and CFG["pf4"]:
        pf_w2(a, 0)
    a("v_and_b32 v4, 3, v0")
    a("v_cmp_eq_u32 vcc, 1, v4")
    a("v_cmp_eq_u32 s[50:51], 2, v4")
    a("v_cmp_eq_u32 s[52:53], 3, v4")
    a("v_mov_b32 v32, v72")
    a("v_cndmask_b32 v34, v76, v77, vcc")
    a("v_mov_b32 v33, v72")
    a("v_cndmask_b32 v34, v34, v78, s[50:51]")
    a("v_mov_b32 v36, v80")
    a("v_cndmask_b32 v34, v34, v79, s[52:53]")
    a("v_mov_b32 v37, v80")
    a("v_mov_b32 v35, v34")
    a("v_permlane32_swap_b32 v32, v33")
    a("v_permlane32_swap_b32 v36, v37")
    a("v_permlane32_swap_b32 v34, v35")
    a("v_add_f32 v32, v32, v33")
    a("v_add_f32 v34, v34, v35")
    a("v_add_f32 v36, v36, v37")
    a(f"v_mul_f32 v32, {f32(1/640)}, v32")
    a(f"v_mul_f32 v34, {f32(1/640)}, v34")
    a("v_fma_f32 v34, -v32, v32, v34")
    a("v_max_f32 v34, 0, v34")
    bf16_round(a, 34, 34)
    a(f"v_add_f32 v34, {f32(1e-5)}, v34")
    bf16_round(a, 34, 34)
    a("v_sqrt_f32 v34, v34")
    a("v_mul_f32 v32, -0.5, v32")
    bf16_round(a, 34, 34)
    a("v_cvt_pk_bf16_f32 v40, v32, v32")
    a("v_rcp_f32 v42, v34")
    a("v_mul_f32 v34, 0.5, v34")
    a("v_lshrrev_b32 v41, 16, v34")
    bf16_round(a, 37, 36)
    a("v_sub_f32 v36, v36, v37")
    a("v_cvt_pk_bf16_f32 v44, v37, v36")
    if k1:
        a("v_mov_b32 v45, 0")
    else:
        a("v_mov_b32 v45, v9")
    a("s_lshl_b32 s33, s28, 5")
    a("v_add_u32 v2, s33, v2")
    a("v_lshlrev_b32 v3, 3, v2")
    a(f"v_add_u32 v3, {STAT}, v3")
    a("v_lshlrev_b32 v4, 2, v2")
    a(f"v_add_u32 v4, {STAT+1024}, v4")
    a("ds_write_b64 v3, v[40:41]")
    a("ds_write_b32 v4, v42")
    a("ds_write_b64 v3, v[44:45] offset:2048")
    a("s_waitcnt lgkmcnt(0)")
    a("s_barrier")
    a("s_endpgm")

    a.label(P + "compute")
    ACC = 64
    FRB = [32, 48, 176]
    AD = 128
    a("s_and_b32 s34, s28, 1")
    a("s_lshr_b32 s35, s28, 1")
    a("v_and_b32 v2, 31, v0")
    a("v_lshrrev_b32 v3, 5, v0")
    a("v_bfe_u32 v4, v0, 1, 3")
    a("v_xor_b32 v4, v4, v3")
    a("v_lshlrev_b32 v4, 4, v4")
    a("v_lshl_add_u32 v4, v2, 7, v4")
    a("s_lshl_b32 s33, s34, 13")
    a("v_add_u32 v10, s33, v4")
    for i in range(1, 4):
        a(f"v_xor_b32 v{10+i}, {32*i}, v10")
    for i in range(4):
        a(f"v_add_u32 v{14+i}, 0x10000, v{10+i}")
    a("v_bfe_u32 v4, v0, 2, 2")
    a("v_lshl_add_u32 v5, v3, 3, v4")
    a("v_lshlrev_b32 v5, 8, v5")
    a("v_bfe_u32 v6, v0, 4, 1")
    a("v_lshl_add_u32 v5, v6, 5, v5")
    a("v_and_b32 v6, 3, v0")
    a("v_lshl_add_u32 v5, v6, 3, v5")
    a("v_add_u32 v5, 16384, v5")
    a("s_lshl_b32 s33, s35, 1")
    a("v_xor_b32 v4, s33, v4")
    a("v_lshl_add_u32 v18, v4, 6, v5")
    a("v_xor_b32 v19, 64, v18")
    a("v_add_u32 v20, 0x10000, v18")
    a("v_add_u32 v21, 0x10000, v19")
    a("s_lshl_b32 s33, s34, 6")
    a("v_add_u32 v22, s33, v2")
    a("v_lshlrev_b32 v23, 2, v22")
    a(f"v_add_u32 v23, {STAT+1024}, v23")
    a("v_lshlrev_b32 v22, 3, v22")
    a(f"v_add_u32 v22, {STAT}, v22")
    a("s_lshl_b32 s33, s35, 6")
    a("v_add_u32 v24, s33, v2")
    a("v_lshlrev_b32 v24, 3, v24")
    a(f"v_add_u32 v24, {STAT+2048}, v24")
    a("s_waitcnt lgkmcnt(0)")
    srd(a, 20, 8, WS_SIZE)

    def reads(t):
        s, st = t >> 2, t & 3
        se = (s >> 1) & 1
        io = (s & 1) * 32768
        F = FRB[t % 3]
        r = []
        r.append(f"ds_read_b128 {vr(F,4)}, v{10+4*se+st} offset:{io}")
        r.append(f"ds_read_b64_tr_b16 {vr(F+8,2)}, v{18+2*se} offset:{io+st*4096}")
        r.append(f"ds_read_b64_tr_b16 {vr(F+10,2)}, v{18+2*se} offset:{io+st*4096+1024}")
        r.append(f"ds_read_b64_tr_b16 {vr(F+12,2)}, v{19+2*se} offset:{io+st*4096}")
        r.append(f"ds_read_b64_tr_b16 {vr(F+14,2)}, v{19+2*se} offset:{io+st*4096+1024}")
        r.append(f"ds_read_b128 {vr(F+4,4)}, v{10+4*se+st} offset:{io+4096}")
        return r
    def mainloop(T):
        a("s_barrier")
        stamp(a, 0)
        if CFG["prof"]: a("s_waitcnt lgkmcnt(0)")
        for r in reads(0) + reads(1): a(r)
        for t in range(40):
            F = FRB[t % 3]
            if t < 38 and (t & 3) == 2:
                a("s_waitcnt lgkmcnt(0)")
                a("s_barrier")
                if t == 34 and CFG["prof"]:
                    stamp(a, 1)
                    a("s_waitcnt lgkmcnt(0)")
            a(f"s_waitcnt lgkmcnt({6 if t < 39 else 0})")
            rd = reads(t + 2) if t < 38 else []
            for i, (x, w) in enumerate(((0, 0), (0, 1), (1, 0), (1, 1))):
                d = vr(ACC + 32 * x + 16 * w, 16)
                xa, wa = vr(F + 4 * x, 4), vr(F + 8 + 4 * w, 4)
                c = "0" if t == 0 else d
                if CFG["nocomp"] and t > 0: continue
                if T: a(f"v_mfma_f32_32x32x16_bf16 {d}, {wa}, {xa}, {c}")
                else: a(f"v_mfma_f32_32x32x16_bf16 {d}, {xa}, {wa}, {c}")
                if i < 3:
                    for r in rd[2*i:2*i+2]: a(r)
        stamp(a, 2)
        a("s_barrier")
        stamp(a, 3)
        a("ds_read_b64 v[176:177], v22")
        a("ds_read_b64 v[178:179], v22 offset:256")
        a("ds_read_b64 v[180:181], v24")
        a("ds_read_b64 v[182:183], v24 offset:256")
        if T:
            a("ds_read_b32 v40, v23")
            a("ds_read_b32 v41, v23 offset:128")
        else:
            for x in range(2):
                for j in range(4):
                    a(f"ds_read_b128 {vr(144+16*x+4*j,4)}, v25 offset:{128*x+32*j}")
        a("s_waitcnt lgkmcnt(0)")
        for x, w in ((0, 0), (0, 1), (1, 0), (1, 1)):
            d = vr(ACC + 32 * x + 16 * w, 16)
            xa, wa = vr(176 + 2 * x, 2), vr(180 + 2 * w, 2)
            if T: a(f"v_mfma_f32_32x32x8_bf16 {d}, {wa}, {xa}, {d}")
            else: a(f"v_mfma_f32_32x32x8_bf16 {d}, {xa}, {wa}, {d}")

    if k1:
        a("s_mul_i32 s36, s29, 10240")
        a("s_cmp_ge_u32 s30, 10")
        a(f"s_cbranch_scc1 {P}vpart")
        a("v_and_b32 v4, 19, v0")
        a("v_bfe_u32 v5, v0, 2, 1")
        a("v_lshl_add_u32 v4, v5, 3, v4")
        a("v_bfe_u32 v5, v0, 3, 1")
        a("v_lshl_add_u32 v4, v5, 2, v4")
        a("s_lshl_b32 s33, s34, 11")
        a("v_lshl_add_u32 v5, v4, 4, s33")
        a("s_lshl_b32 s33, s34, 9")
        a("s_add_u32 s33, s33, 4096")
        a("v_lshl_add_u32 v6, v4, 3, s33")
        a("s_lshl_b32 s33, s30, 5")
        a("s_lshl_b32 s37, s35, 4")
        a("s_add_u32 s33, s33, s37")
        a("v_add_u32 v7, s33, v3")
        a("v_mov_b32 v26, 1024")
        a("v_mov_b32 v27, 256")
        for q in range(8):
            a(f"v_add_u32 v8, {2*q}, v7")
            a("v_mul_u32_u24 v9, 52429, v8")
            a("v_lshrrev_b32 v9, 18, v9")
            a("v_mul_u32_u24 v28, 5, v9")
            a("v_sub_u32 v8, v8, v28")
            a("v_cmp_gt_u32 vcc, 4, v8")
            a("v_lshrrev_b32 v28, 1, v8")
            a("v_lshl_add_u32 v28, v28, 9, v5")
            a("v_and_b32 v8, 1, v8")
            a("v_lshl_add_u32 v28, v8, 3, v28")
            a("v_cndmask_b32 v28, v6, v28, vcc")
            a("v_cndmask_b32 v29, v27, v26, vcc")
            a(f"v_mul_u32_u24 v9, {UNIT}, v9")
            a(f"v_add_u32 v{AD+q}, v9, v28")
            a(f"v_add_u32 v{AD+8+q}, v{AD+q}, v29")
        c = (20 ** -0.5) * math.log2(math.e)
        a("s_cmp_lt_u32 s30, 5")
        a(f"s_cselect_b32 s37, {f32(c)}, 1.0")
        mainloop(True)
        a("v_mul_f32 v40, s37, v40")
        a("v_mul_f32 v41, s37, v41")
        a("s_nop 7")
        for x in range(2):
            for w in range(2):
                b = ACC + 32 * x + 16 * w
                for j in range(4):
                    for i in range(4):
                        a(f"v_mul_f32 v{b+4*j+i}, v{40+x}, v{b+4*j+i}")
                    t = 44 + 2 * (j + 4 * w)
                    a(f"v_cvt_pk_bf16_f32 v{t}, v{b+4*j}, v{b+4*j+1}")
                    a(f"v_cvt_pk_bf16_f32 v{t+1}, v{b+4*j+2}, v{b+4*j+3}")
                    a(f"buffer_store_dwordx2 {vr(t,2)}, v{AD+8*x+4*w+j}, s[20:23], s36 offen{ST('st1q')}")
        a("s_endpgm")
        a.label(P + "vpart")
        a("s_sub_u32 s33, s30, 10")
        a("s_lshl_b32 s33, s33, 7")
        a("s_lshl_b32 s37, s35, 6")
        a("s_add_u32 s33, s33, s37")
        a("v_mul_u32_u24 v5, 320, v3")
        a("s_mul_i32 s37, s34, 2560")
        a(f"s_add_u32 s37, s37, {32*UNIT+5120}")
        a("v_add_u32 v5, s37, v5")
        for w in range(2):
            a(f"v_add_u32 v7, s33, v2")
            if w: a("v_add_u32 v7, 32, v7")
            a("v_mul_u32_u24 v9, 52429, v7")
            a("v_lshrrev_b32 v9, 20, v9")
            a("v_mul_u32_u24 v8, 20, v9")
            a("v_sub_u32 v8, v7, v8")
            a(f"v_mul_u32_u24 v9, {UNIT}, v9")
            a("v_lshl_add_u32 v9, v8, 4, v9")
            a(f"v_add_u32 v{AD+w}, v9, v5")
        a("s_lshl_b32 s33, s34, 8")
        a(f"s_add_u32 s33, s33, {STAT+1024}")
        a("v_lshl_add_u32 v25, v3, 4, s33")
        mainloop(False)
        a("s_nop 9")
        for x in range(2):
            for w in range(2):
                b = ACC + 32 * x + 16 * w
                for g in range(2):
                    for i in range(8):
                        a(f"v_mul_f32 v{b+8*g+i}, v{144+16*x+8*g+i}, v{b+8*g+i}")
                    t = 44 + 4 * (g + 2 * w)
                    for i in range(4):
                        a(f"v_cvt_pk_bf16_f32 v{t+i}, v{b+8*g+2*i}, v{b+8*g+2*i+1}")
                    a(f"buffer_store_dwordx4 {vr(t,4)}, v{AD+w}, s[20:23], s36 offen offset:{1280*x+640*g}{ST('st1v')}")
        a("s_endpgm")
        relayout(a, P)
    else:
        a("v_bfe_u32 v4, v0, 4, 1")
        a(f"v_mul_u32_u24 v4, {54*1024}, v4")
        a("v_lshl_add_u32 v4, v3, 8, v4")
        a("v_and_b32 v5, 15, v0")
        a(f"v_lshl_add_u32 v{AD}, v5, 4, v4")
        a(f"v_add_u32 v{AD+1}, {2*54*1024}, v{AD}")
        a("s_lshl_b32 s36, s29, 3")
        a("s_lshl_b32 s33, s34, 2")
        a("s_add_u32 s36, s36, s33")
        a("s_mul_i32 s36, s36, 54")
        a("s_lshl_b32 s33, s30, 1")
        a("s_add_u32 s38, s33, s35")
        a("s_lshl_b32 s33, s38, 1")
        a("s_add_u32 s36, s36, s33")
        a("s_lshl_b32 s36, s36, 10")
        a(f"s_add_u32 s36, s36, {OFF_G}")
        k0 = -2 * math.sqrt(2 / math.pi) * math.log2(math.e)
        a(f"s_mov_b32 s44, {f32(k0)}")
        a(f"s_mov_b32 s45, {f32(k0 * 0.044715)}")
        mainloop(True)
        a("s_cmp_ge_u32 s38, 27")
        a(f"s_cbranch_scc1 {P}end")
        for x in range(2):
            cb = 184 + 4 * x
            a(f"v_rcp_f32 v{cb+2}, v{40+x}")
            a(f"v_mul_f32 v{cb}, s44, v{40+x}")
            a(f"v_mul_f32 v{cb+1}, v{40+x}, v{40+x}")
            a(f"v_mul_f32 v{cb+1}, v{cb+1}, v{40+x}")
            a(f"v_mul_f32 v{cb+1}, s45, v{cb+1}")
        for x in range(2):
            cb = 184 + 4 * x
            for w in range(2):
                b = ACC + 32 * x + 16 * w
                for g in range(2):
                    r = b + 8 * g
                    T0 = 144 + 8 * g
                    pr = lambda q: vr(q, 2)
                    for i in range(0, 8, 2): a(f"v_pk_mul_f32 {pr(T0+i)}, {pr(r+i)}, {pr(r+i)}")
                    for i in range(0, 8, 2): a(f"v_pk_fma_f32 {pr(T0+i)}, {pr(T0+i)}, {pr(cb)}, {pr(cb)} op_sel:[0,1,0] op_sel_hi:[1,1,0]")
                    for i in range(0, 8, 2): a(f"v_pk_mul_f32 {pr(T0+i)}, {pr(T0+i)}, {pr(r+i)}")
                    for i in range(8): a(f"v_exp_f32 v{T0+i}, v{T0+i}")
                    for i in range(0, 8, 2): a(f"v_pk_fma_f32 {pr(T0+i)}, {pr(T0+i)}, {pr(cb+2)}, {pr(cb+2)} op_sel_hi:[1,0,0]")
                    for i in range(8): a(f"v_rcp_f32 v{T0+i}, v{T0+i}")
                    for i in range(0, 8, 2): a(f"v_pk_mul_f32 {pr(r+i)}, {pr(r+i)}, {pr(T0+i)}")
                    t = 44 + 4 * (g + 2 * w)
                    for i in range(4):
                        a(f"v_cvt_pk_bf16_f32 v{t+i}, v{r+2*i}, v{r+2*i+1}")
                    a(f"buffer_store_dwordx4 {vr(t,4)}, v{AD+x}, s[20:23], s36 offen offset:{1024*w+512*g}{ST('st4')}")
    a.label(P + "end")
    a("s_endpgm")
    if not k1 and CFG["pf4"]:
        a.label(P + "spare")
        a("s_waitcnt lgkmcnt(0)")
        pf_w2(a, 1)
        a("s_endpgm")
    return desc(name, 192)

PF_SP = 34
def pf_w2(a, spare):
    srd(a, 56, 8, 1728 * 1280, OFF_W2)
    a("v_lshlrev_b32 v90, 4, v0")
    if spare:
        a("s_sub_u32 s33, s32, 28")
        a("s_lshl_b32 s33, s33, 3")
        a("s_add_u32 s33, s33, s28")
        a(f"s_mul_i32 s33, s33, {PF_SP*1024}")
        n = PF_SP
    else:
        n = (2160 - 32 * PF_SP + 111) // 112
        a("s_lshl_b32 s33, s32, 2")
        a("s_add_u32 s33, s33, s28")
        a(f"s_mul_i32 s33, s33, {n*1024}")
        a(f"s_add_u32 s33, s33, {32*PF_SP*1024}")
    for i in range(n):
        a(f"buffer_load_dwordx4 v[92:95], v90, s[56:59], s33 offen offset:{1024*(i&3)}")
        if i & 3 == 3: a("s_add_u32 s33, s33, 4096")

def rl_unit_addr(a, sI, sA, sB, sNS, vs, vd):
    a(f"s_lshl_b32 s33, s{sI}, 6")
    a("v_add_u32 v2, s33, v0")
    a("v_mul_u32_u24 v3, 52429, v2")
    a("v_lshrrev_b32 v3, 23, v3")
    a("v_mul_u32_u24 v4, 160, v3")
    a("v_sub_u32 v2, v2, v4")
    a("v_lshrrev_b32 v4, 1, v3")
    a(f"v_mul_u32_u24 v4, s{sA}, v4")
    a("v_and_b32 v5, 1, v3")
    a(f"v_mul_u32_u24 v5, s{sB}, v5")
    a("v_add_u32 v4, v4, v5")
    a("v_mul_u32_u24 v4, 1280, v4")
    a(f"v_lshl_add_u32 v{vs}, v2, 3, v4")
    a("v_mul_u32_u24 v4, 52429, v2")
    a("v_lshrrev_b32 v5, 20, v4")
    a("v_lshrrev_b32 v4, 18, v4")
    a("v_mul_u32_u24 v6, 5, v4")
    a("v_sub_u32 v6, v2, v6")
    a("v_and_b32 v4, 3, v4")
    a(f"v_mul_u32_u24 v5, s{sNS}, v5")
    a("v_lshl_add_u32 v5, v6, 10, v5")
    a("v_lshl_add_u32 v5, v3, 8, v5")
    a(f"v_lshl_add_u32 v{vd}, v4, 6, v5")

def rl_unit_load(a, vs, s0, s1, R):
    for h, so in enumerate((s0, s1)):
        for i in range(4):
            a(f"buffer_load_dwordx2 {vr(R+8*h+2*i,2)}, v{vs}, s[12:15], s{so} offen offset:{1280*i}")

def rl_unit_store(a, vd, sD, R, T):
    for c in range(4):
        sel = "s48" if (c & 1) == 0 else "s49"
        for p in range(4):
            lo, hi = R + 4 * p + (c >> 1), R + 4 * p + 2 + (c >> 1)
            a(f"v_perm_b32 v{T+4*c+p}, v{hi}, v{lo}, {sel}")
        a(f"buffer_store_dwordx4 {vr(T+4*c,4)}, v{vd}, s[20:23], s{sD} offen offset:{16*c}{ST('strl')}")

def relayout(a, P):
    a.label(P + "relayout")
    a(f"s_load_dwordx2 s[40:41], s[0:1], {KWO}")
    a("s_sub_u32 s32, s32, 30")
    a("s_lshl_b32 s32, s32, 3")
    a("s_add_u32 s32, s32, s31")
    a("s_lshl_b32 s33, s28, 4")
    a("s_add_u32 s32, s32, s33")
    a("s_cmp_ge_u32 s32, 100")
    a(f"s_cbranch_scc1 {P}end")
    a("s_mul_i32 s34, s32, 6554")
    a("s_lshr_b32 s34, s34, 16")
    a("s_mul_i32 s35, s34, 10")
    a("s_sub_u32 s35, s32, s35")
    a("s_cmp_lt_u32 s34, 8")
    a("s_cselect_b32 s36, 20, 80")
    a("s_cselect_b32 s37, 4, 20")
    a("s_cselect_b32 s38, 8, 40")
    a("s_cselect_b32 s39, 40, 160")
    a("s_cselect_b32 s42, 0, -2544")
    a(f"s_mov_b32 s43, {20*5120}")
    a("s_mov_b32 s48, 0x05040100")
    a("s_mov_b32 s49, 0x07060302")
    rl_unit_addr(a, 35, 36, 37, 43, 8, 9)
    for u in range(2):
        a(f"s_lshl_b32 s33, s34, 1")
        if u: a("s_add_u32 s33, s33, 1")
        a(f"s_mul_i32 s{56+u}, s33, 5120")
        a(f"s_add_u32 s{56+u}, s{56+u}, {OFF_WO}")
        a("s_mul_i32 s33, s33, s39")
        a("s_add_u32 s33, s33, s42")
        a(f"s_mul_i32 s{50+2*u}, s33, 1280")
        a("s_add_u32 s33, s33, s38")
        a(f"s_mul_i32 s{51+2*u}, s33, 1280")
    a("s_waitcnt lgkmcnt(0)")
    srd(a, 20, 8, WS_SIZE)
    srd(a, 12, 40, 640 * 1280)
    for u in range(2):
        rl_unit_load(a, 8, 50 + 2 * u, 51 + 2 * u, 16 + 16 * u)
    a("s_waitcnt vmcnt(8)")
    rl_unit_store(a, 9, 56, 16, 48)
    a("s_waitcnt vmcnt(4)")
    rl_unit_store(a, 9, 57, 32, 64)
    a("s_endpgm")

def attention(a, name):
    P = name + "_"
    header(a, name)
    QA = [4, 12]; QBA = [8, 16]; QBB = [10, 18]
    IDX, AK, AB, AV = 20, 21, 22, 23
    C = [24, 40]; O = [56, 72]
    S = [88, 104, 120, 136]
    KA = [152, 160]; KB = [168, 170]; V = [172, 188]
    TMP = 204
    a("s_cmp_ge_u32 s2, 256")
    a(f"s_cbranch_scc1 {P}end")
    a(f"s_load_dwordx2 s[8:9], s[0:1], {KWS}")
    a("v_lshrrev_b32 v1, 6, v0")
    a("v_and_b32 v0, 63, v0")
    a("s_and_b32 s31, s2, 7")
    a("v_readfirstlane_b32 s28, v1")
    a("s_bfe_u32 s32, s2, 0x20003")
    a("s_lshl_b32 s29, s31, 2")
    a("s_add_u32 s29, s29, s32")
    a("s_lshr_b32 s30, s2, 5")
    a(f"v_lshlrev_b32 v{AK}, 4, v0")
    a(f"s_mul_i32 s33, s29, {UNIT}")
    a("s_cmp_lt_u32 s28, 4")
    a(f"s_cbranch_scc1 {P}compute")
    a("s_sub_u32 s28, s28, 4")
    a("s_lshl_b32 s38, s28, 10")
    a(f"s_add_u32 s39, s33, {32*UNIT}")
    a("s_add_u32 s39, s39, s38")
    a("s_mov_b32 m0, s38")
    a("s_waitcnt lgkmcnt(0)")
    srd(a, 20, 8, WS_SIZE)
    def dma(i0, i1):
        for i in range(i0, i1):
            a(f"buffer_load_dwordx4 v{AK}, s[20:23], s39 offen lds")
            a("s_add_u32 m0, m0, 4096")
            a("s_add_u32 s39, s39, 4096")
    dma(0, 8)
    a(f"s_load_dwordx2 s[40:41], s[0:1], {KW2}")
    a(f"s_load_dwordx2 s[42:43], s[0:1], {KW1}")
    a("s_waitcnt vmcnt(5)")
    a("s_barrier")
    dma(8, 18)
    a("s_waitcnt vmcnt(8)")
    a("s_barrier")
    dma(18, 40)
    a("s_lshl_b32 s32, s28, 8")
    a("s_add_u32 s32, s32, s2")
    a("s_min_u32 s44, s32, 539")
    a("s_mul_i32 s34, s44, 6554")
    a("s_lshr_b32 s34, s34, 16")
    a("s_mul_i32 s35, s34, 10")
    a("s_sub_u32 s35, s44, s35")
    a("s_mov_b32 s36, 16")
    a("s_mov_b32 s37, 4")
    a(f"s_mov_b32 s45, {54*5120}")
    a("s_mov_b32 s48, 0x05040100")
    a("s_mov_b32 s49, 0x07060302")
    a(f"s_mul_i32 s50, s34, {32*1280}")
    a(f"s_add_u32 s51, s50, {8*1280}")
    a("s_mul_i32 s56, s34, 5120")
    a(f"s_add_u32 s56, s56, {OFF_W2}")
    a("s_waitcnt lgkmcnt(0)")
    srd(a, 12, 40, 1728 * 1280)
    srd(a, 16, 42, 640 * 3456)
    a("s_waitcnt vmcnt(0)")
    a("s_barrier")
    a("s_cmp_ge_u32 s32, 540")
    a(f"s_cbranch_scc1 {P}pref")
    rl_unit_addr(a, 35, 36, 37, 45, 8, 9)
    rl_unit_load(a, 8, 50, 51, 32)
    a("s_waitcnt vmcnt(0)")
    rl_unit_store(a, 9, 56, 32, 48)
    a.label(P + "pref")
    if CFG["pf2"]:
        a("s_lshr_b32 s32, s2, 3")
        a("s_lshl_b32 s32, s32, 2")
        a("s_add_u32 s32, s32, s28")
        a(f"s_mul_i32 s34, s32, {7*1024}")
        srd(a, 24, 8, 640 * 1280, OFF_WO)
        for i in range(7):
            a(f"buffer_load_dwordx4 v[64:67], v{AK}, s[24:27], s34 offen")
            a("s_add_u32 s34, s34, 1024")
        a(f"s_mul_i32 s34, s32, {17*1024}")
        for i in range(17):
            a(f"buffer_load_dwordx4 v[64:67], v{AK}, s[16:19], s34 offen")
            a("s_add_u32 s34, s34, 1024")
    a("s_endpgm")
    a.label(P + "compute")
    a("v_and_b32 v2, 31, v0")
    a("v_lshlrev_b32 v3, 3, v2")
    a("s_lshl_b32 s34, s30, 1")
    a("s_lshr_b32 s35, s28, 1")
    a("s_add_u32 s34, s34, s35")
    a("s_mul_i32 s34, s34, 10240")
    a("s_add_u32 s34, s34, s33")
    a("s_and_b32 s35, s28, 1")
    a("s_lshl_b32 s36, s35, 11")
    a("s_add_u32 s36, s36, s34")
    a("s_lshl_b32 s37, s35, 9")
    a("s_add_u32 s37, s37, s34")
    a("s_add_u32 s37, s37, 4096")
    a("s_waitcnt lgkmcnt(0)")
    srd(a, 20, 8, WS_SIZE)
    for q in range(2):
        a(f"buffer_load_dwordx4 {vr(QA[q],4)}, v{AK}, s[20:23], s36 offen offset:{1024*q}")
        a(f"buffer_load_dwordx2 {vr(QBA[q],2)}, v3, s[20:23], s37 offen offset:{256*q}")
    a(f"v_mov_b32 v{IDX}, 0xdddddddd")
    a("s_mov_b32 s40, 0xfffff")
    a("s_mov_b32 s41, 0xfffff")
    a("s_mov_b32 s42, 1")
    a(f"s_mov_b64 s[46:47], {0 if CFG['xp'] else -1}")
    for i in range(32):
        a(f"v_mov_b32 v{C[0]+i}, 0")
    a("v_and_b32 v1, 27, v0")
    a("v_cmp_eq_u32 vcc, 24, v1")
    a(f"v_mov_b32 v{TMP}, 0x3f803f80")
    a("v_lshrrev_b32 v1, 5, v0")
    a(f"v_cndmask_b32 v{V[0]}, v{C[0]}, v{TMP}, vcc")
    for i in range(1, 32):
        a(f"v_mov_b32 v{V[0]+i}, v{V[0]}")
    a("v_cmp_gt_u32 vcc, 32, v0")
    a("s_nop 0")
    a("s_waitcnt vmcnt(0)")
    for q in range(2):
        a(f"v_cndmask_b32 v{QBB[q]}, v{QBA[q]}, v{C[0]}, vcc")
        a(f"v_cndmask_b32 v{QBB[q]+1}, v{QBA[q]+1}, v{C[0]}, vcc")
        a(f"v_cndmask_b32 v{QBA[q]}, v{C[0]}, v{QBA[q]}, vcc")
        a(f"v_cndmask_b32 v{QBA[q]+1}, v{C[0]}, v{QBA[q]+1}, vcc")
    a.label(P + "pass")
    a(f"v_lshlrev_b32 v{AK}, 4, v0")
    a(f"v_lshlrev_b32 v{AB}, 3, v0")
    a(f"v_mul_u32_u24 v{AV}, 320, v1")
    a(f"v_lshl_add_u32 v{AV}, v2, 4, v{AV}")
    for i in range(32):
        a(f"v_mov_b32 v{O[0]+i}, 0")
    for i in range(16):
        a(f"v_mov_b32 v{S[3]+i}, 0")
    a("s_mov_b32 s43, 4")
    def ka_off(t): return (t >> 2) * 10240 + (t & 3) * 1024
    def kb_off(p): return (p >> 1) * 10240 + 4096 + (p & 1) * 512
    def v_off(t, g): return (t >> 2) * 10240 + 5120 + (2 * (t & 3) + g) * 640
    def batch(p):
        r = []
        r.append(f"ds_read_b128 {vr(KA[p&1],4)}, v{AK} offset:{ka_off(2*p)}")
        r.append(f"ds_read_b64 {vr(KB[p&1],2)}, v{AB} offset:{kb_off(p)}")
        r.append(f"ds_read_b128 {vr(KA[p&1]+4,4)}, v{AK} offset:{ka_off(2*p+1)}")
        r.append("s_mov_b64 exec, s[40:41]")
        for j in range(4):
            r.append(f"ds_read_b128 {vr(V[p&1]+4*j,4)}, v{AV} offset:{v_off(2*p+(j>>1), j&1)}")
        r.append("s_mov_b64 exec, -1")
        return r
    def sync(tag, st=None):
        a("s_cmp_eq_u32 s42, 0")
        a(f"s_cbranch_scc1 {P}nosync{tag}")
        a("s_barrier")
        if st is not None: stamp(a, st)
        a.label(P + f"nosync{tag}")
    def qk16(u):
        t, q = u >> 1, u & 1
        return f"v_mfma_f32_32x32x16_bf16 {vr(S[u&3],16)}, {vr(KA[(t>>1)&1]+4*(t&1),4)}, {vr(QA[q],4)}, {vr(C[q],16)}"
    def qk8(u):
        t, q = u >> 1, u & 1
        return f"v_mfma_f32_32x32x8_bf16 {vr(S[u&3],16)}, {vr(KB[(t>>1)&1],2)}, {vr((QBB if t&1 else QBA)[q],2)}, {vr(S[u&3],16)}"
    def pv(u, g):
        t, q = u >> 1, u & 1
        return f"v_smfmac_f32_32x32x32_bf16 {vr(O[q],16)}, {vr(V[(t>>1)&1]+8*(t&1)+4*g,4)}, {vr(S[u&3]+8*g,8)}, v{IDX}"
    sync("a", 0)
    for r in batch(0): a(r)
    a("s_waitcnt lgkmcnt(4)")
    a(qk16(0)); a(qk8(0))
    a("s_waitcnt lgkmcnt(0)")
    a("s_nop 9")
    a(".p2align 6")
    a.label(P + "loop")
    for u in range(32):
        s = S[u & 3]
        if u == 5: sync("b", 3)
        if u == 29: sync("c", 1)
        if u % 4 == 3: a("s_waitcnt lgkmcnt(0)")
        xp = CFG["xp"]
        if not xp & 1: a(qk16(u + 1))
        if u % 4 == 1 and not xp & 8:
            for r in batch((u + 3) // 4): a(r)
        for i in range(0, 4): a(f"v_exp_f32 v{s+i}, v{s+i}")
        if not xp & 2: a(qk8(u + 1))
        for i in range(4, 8): a(f"v_exp_f32 v{s+i}, v{s+i}")
        if not xp & 4: a(pv(u - 1, 0))
        for i in range(8, 12): a(f"v_exp_f32 v{s+i}, v{s+i}")
        if not xp & 4: a(pv(u - 1, 1))
        if u == 31:
            a(f"v_add_u32 v{AK}, 40960, v{AK}")
            a(f"v_add_u32 v{AB}, 40960, v{AB}")
            a(f"v_add_u32 v{AV}, 40960, v{AV}")
            a("s_mov_b32 s42, 0")
            a("s_sub_u32 s43, s43, 1")
            a("s_cmp_lg_u32 s43, 0")
        for i in range(12, 16): a(f"v_exp_f32 v{s+i}, v{s+i}")
    a(f"s_cbranch_scc1 {P}loop")
    stamp(a, 2)
    a("s_nop 0")
    a(pv(31, 0)); a(pv(31, 1))
    T = TMP
    a(f"v_and_b32 v{T}, 19, v0")
    a(f"v_bfe_u32 v{T+1}, v0, 2, 1")
    a(f"v_lshl_add_u32 v{T}, v{T+1}, 3, v{T}")
    a(f"v_bfe_u32 v{T+1}, v0, 3, 1")
    a(f"v_lshl_add_u32 v{T}, v{T+1}, 2, v{T}")
    a(f"v_lshrrev_b32 v{T+1}, 4, v{T}")
    a(f"v_mul_u32_u24 v{T+1}, 20480, v{T+1}")
    a(f"v_and_b32 v{T}, 15, v{T}")
    a(f"v_lshl_add_u32 v{T}, v{T}, 4, v{T+1}")
    a(f"v_lshl_add_u32 v{T+1}, v1, 8, v{T}")
    a("s_lshl_b32 s33, s30, 4")
    a("s_lshl_b32 s34, s28, 2")
    a("s_add_u32 s33, s33, s34")
    a("s_mul_i32 s33, s33, 20480")
    a(f"s_add_u32 s33, s33, {OFF_O}")
    a("s_lshl_b32 s34, s29, 9")
    a("s_add_u32 s34, s34, s33")
    a("s_lshr_b32 s35, s29, 2")
    a("s_lshl_b32 s35, s35, 9")
    a("s_and_b32 s36, s29, 1")
    a("s_lshl_b32 s36, s36, 8")
    a("s_add_u32 s35, s35, s36")
    a("s_and_b32 s36, s29, 2")
    a("s_lshl_b32 s36, s36, 2")
    a("s_add_u32 s35, s35, s36")
    a("s_add_u32 s35, s35, s33")
    a("s_add_u32 s35, s35, 16384")
    a("s_add_u32 s38, s34, 40960")
    a("s_add_u32 s39, s35, 40960")
    a(f"s_mov_b32 s36, {f32(2.0**-64)}")
    a(f"s_mov_b32 s37, {f32(2.0**100)}")
    for q in range(2):
        a(f"v_rcp_f32 v{T+2+q}, v{O[q]+12}")
        a(f"v_add_f32 v{T+4+q}, v{O[q]}, v{O[q]+1}")
        for i in range(2, 12, 2):
            a(f"v_add3_f32 v{T+4+q}, v{T+4+q}, v{O[q]+i}, v{O[q]+i+1}" if False else f"v_add_f32 v{T+4+q}, v{T+4+q}, v{O[q]+i}")
            a(f"v_add_f32 v{T+4+q}, v{T+4+q}, v{O[q]+i+1}")
        a(f"v_fma_f32 v{T+4+q}, v{T+4+q}, 0, v{O[q]+12}")
        a(f"v_cmp_nle_f32 s[{50+4*q}:{51+4*q}], s36, v{T+4+q}")
        a(f"v_cmp_nge_f32 s[{52+4*q}:{53+4*q}], s37, v{T+4+q}")
    a("s_or_b64 s[50:51], s[50:51], s[52:53]")
    a("s_or_b64 s[54:55], s[54:55], s[56:57]")
    a("s_or_b64 s[50:51], s[50:51], s[54:55]")
    a("s_and_b64 s[50:51], s[50:51], s[46:47]")
    a(f"s_cbranch_scc1 {P}fallback")
    for q in range(2):
        for i in range(12):
            a(f"v_mul_f32 v{O[q]+i}, v{T+2+q}, v{O[q]+i}")
        for i in range(6):
            a(f"v_cvt_pk_bf16_f32 v{S[1]+8*q+i}, v{O[q]+2*i}, v{O[q]+2*i+1}")
        a(f"buffer_store_dwordx4 {vr(S[1]+8*q,4)}, v{T+1}, s[20:23], s{34+4*q} offen{ST('st2')}")
    a("s_mov_b32 exec_hi, 0")
    for q in range(2):
        a(f"buffer_store_dwordx2 {vr(S[1]+8*q+4,2)}, v{T}, s[20:23], s{35+4*q} offen{ST('st2')}")
    a.label(P + "end")
    a("s_endpgm")
    a.label(P + "fallback")
    a("s_mov_b64 s[46:47], 0")
    a(f"v_lshlrev_b32 v{AK}, 4, v0")
    a(f"v_lshlrev_b32 v{AB}, 3, v0")
    a(f"v_mov_b32 v{T}, 0xff800000")
    a(f"v_mov_b32 v{T+1}, 0xff800000")
    a("s_mov_b32 s43, 16")
    a.label(P + "maxloop")
    for p in range(2):
        a(f"ds_read_b128 {vr(KA[0],4)}, v{AK} offset:{ka_off(2*p)}")
        a(f"ds_read_b128 {vr(KA[0]+4,4)}, v{AK} offset:{ka_off(2*p+1)}")
        a(f"ds_read_b64 {vr(KB[0],2)}, v{AB} offset:{kb_off(p)}")
        a("s_waitcnt lgkmcnt(0)")
        for q in range(2):
            for t in range(2):
                d = vr(S[2 * q + t], 16)
                a(f"v_mfma_f32_32x32x16_bf16 {d}, {vr(KA[0]+4*t,4)}, {vr(QA[q],4)}, 0")
                a(f"v_mfma_f32_32x32x8_bf16 {d}, {vr(KB[0],2)}, {vr((QBB if t else QBA)[q],2)}, {d}")
        a("s_nop 15")
        for q in range(2):
            for i in range(16):
                a(f"v_max3_f32 v{T+q}, v{T+q}, v{S[2*q]+i}, v{S[2*q+1]+i}")
    a(f"v_add_u32 v{AK}, 10240, v{AK}")
    a(f"v_add_u32 v{AB}, 10240, v{AB}")
    a("s_sub_u32 s43, s43, 1")
    a("s_cmp_lg_u32 s43, 0")
    a(f"s_cbranch_scc1 {P}maxloop")
    for q in range(2):
        a(f"v_mov_b32 v{T+2}, v{T+q}")
        a("s_nop 1")
        a(f"v_permlane32_swap_b32 v{T+q}, v{T+2}")
        a(f"v_max_f32 v{T+q}, v{T+q}, v{T+2}")
        for i in range(16):
            a(f"v_sub_f32 v{C[q]+i}, 0, v{T+q}")
    a(f"s_branch {P}pass")
    return desc(name, 216)

def gemm_res(a, name, kind):
    k3 = kind == "wo"
    P = name + "_"
    NS = 20 if k3 else 54
    NST = (NS + 3) // 4
    R = 5
    header(a, name)
    a("s_cmp_ge_u32 s2, 256")
    a(f"s_cbranch_scc1 {P}end")
    a(f"s_load_dwordx2 s[8:9], s[0:1], {KWS}")
    if k3:
        a(f"s_load_dwordx2 s[4:5], s[0:1], {KX}")
    else:
        a(f"s_load_dwordx4 s[4:7], s[0:1], {KB2}")
    a("v_lshrrev_b32 v1, 6, v0")
    a("v_and_b32 v0, 63, v0")
    a("s_and_b32 s31, s2, 7")
    a("v_readfirstlane_b32 s28, v1")
    a("s_bfe_u32 s32, s2, 0x20003")
    a("s_lshl_b32 s29, s31, 2")
    a("s_add_u32 s29, s29, s32")
    a("s_lshr_b32 s30, s2, 5")
    a("v_lshlrev_b32 v1, 4, v0")
    a("v_add_u32 v2, 4096, v1")
    a("s_lshl_b32 s33, s29, 2")
    a("s_add_u32 s33, s33, s28")
    a(f"s_mul_i32 s40, s33, {NS*1024}")
    a(f"s_add_u32 s40, s40, {OFF_O if k3 else OFF_G}")
    a(f"s_add_u32 s41, s40, {NS*1024}")
    a(f"s_mul_i32 s42, s30, {NS*5120}")
    a(f"s_add_u32 s42, s42, {OFF_WO if k3 else OFF_W2}")
    a(f"s_add_u32 s43, s42, {NS*5120}")
    rot = CFG["rot3"] if k3 else CFG["rot5"]
    if rot:
        ca, cb = (5, 10) if k3 else (13, 27)
        a(f"s_mul_i32 s44, s30, {ca}")
        a(f"s_mul_i32 s45, s32, {cb}")
        a("s_add_u32 s44, s44, s45")
        a("s_lshr_b32 s44, s44, 1")
        a(f"s_sub_u32 s45, s44, {NS}")
        a("s_cselect_b32 s44, s44, s45")
    else:
        a("s_mov_b32 s44, 0")
    a("s_lshl_b32 s34, s44, 10")
    a("s_add_u32 s34, s34, s40")
    a("s_add_u32 s45, s44, s28")
    a(f"s_sub_u32 s46, s45, {NS}")
    a("s_cselect_b32 s45, s45, s46")
    a("s_mul_i32 s35, s45, 5120")
    a("s_add_u32 s35, s35, s42")
    a("s_mul_i32 s36, s28, 5120")
    a("v_and_b32 v3, 15, v0")
    a("v_lshrrev_b32 v4, 4, v0")
    a("v_mul_u32_u24 v3, 1280, v3")
    a("v_mul_u32_u24 v5, 40, v4")
    a("v_add_u32 v3, v3, v5")
    a("v_add_u32 v6, 61440, v1")
    a("s_mul_i32 s37, s33, 20480")
    a("s_mul_i32 s38, s30, 160")
    a("s_add_u32 s37, s37, s38")
    a("s_waitcnt lgkmcnt(0)")
    srd(a, 20, 8, WS_SIZE)
    ACC, AR, WF, RS = 12, 32, 112, 192
    def resid():
        g = [[f"buffer_load_dwordx4 {vr(RS,4)}, v3, s[12:15], s37 offen"],
             [f"buffer_load_dwordx4 {vr(RS+4,4)}, v3, s[12:15], s37 offen offset:16"],
             [f"buffer_load_dwordx2 {vr(RS+8,2)}, v3, s[12:15], s37 offen offset:32"]]
        if not k3:
            g += [[f"buffer_load_dwordx4 {vr(RS+12,4)}, v5, s[24:27], s38 offen"],
                  [f"buffer_load_dwordx4 {vr(RS+16,4)}, v5, s[24:27], s38 offen offset:16"],
                  [f"buffer_load_dwordx2 {vr(RS+20,2)}, v5, s[24:27], s38 offen offset:32"]]
        return g
    stream = []
    endi = []
    for s in range(NST):
        n = min(4, NS - 4 * s)
        slot = (s % R) * 20480
        g = []
        for i in range(n):
            g.append([f"buffer_load_dwordx4 {vr(AR+16*(s%R)+4*i,4)}, v1, s[20:23], s34 offen",
                      "s_add_u32 s34, s34, 1024", "s_cmp_eq_u32 s34, s41", "s_cselect_b32 s34, s40, s34"])
        w = [[f"s_add_u32 m0, s36, {slot}", "s_nop 0", "buffer_load_dwordx4 v1, s[20:23], s35 offen lds"]]
        for i in range(1, 4):
            w.append([f"buffer_load_dwordx4 v1, s[20:23], s35 offen offset:{1024*i} lds"])
        w.append([f"s_add_u32 m0, s36, {slot+4096}", "s_nop 0", "buffer_load_dwordx4 v2, s[20:23], s35 offen lds",
                  "s_add_u32 s35, s35, 20480", "s_cmp_ge_u32 s35, s43", f"s_cselect_b32 s39, {NS*5120}, 0", "s_sub_u32 s35, s35, s39"])
        if n < 4:
            w[0] = ["s_cmp_ge_u32 s28, 2", f"s_cselect_b32 s35, {WS_SIZE}, s35"] + w[0]
        if s == 3: w = resid() + w
        stream += [(s, x) for x in w + g]
        endi.append(len(stream))
    issued = [0]; free = [R - 1]
    def issue(n=1):
        for _ in range(n):
            if issued[0] < len(stream) and stream[issued[0]][0] <= free[0]:
                for x in stream[issued[0]][1]: a(x)
                issued[0] += 1
    N0 = CFG["n03"] if k3 else CFG["n05"]
    issue(N0)
    if k3:
        srd(a, 12, 4, 2048 * 1280)
        srd(a, 16, 8, 2048 * 1280, OFF_H)
    else:
        srd(a, 12, 8, 2048 * 1280, OFF_H)
        srd(a, 16, 6, 2048 * 1280)
        srd(a, 24, 4, 1280)
    def reads(t):
        s, st = t >> 2, t & 3
        sl = s % R
        ad, io = (1, sl * 20480) if sl < 3 else (6, (sl - 3) * 20480)
        F = WF + 20 * (t & 3)
        return [f"ds_read_b128 {vr(F+4*tt,4)}, v{ad} offset:{io+st*5120+1024*tt}" for tt in range(5)]
    D = 2
    def sync(s):
        assert issued[0] >= endi[s]
        a(f"s_waitcnt vmcnt({issued[0] - endi[s]})")
        a("s_barrier")
        free[0] = max(free[0], s - 2 + R)
    stamp(a, 0)
    if CFG["prof"]: a("s_waitcnt lgkmcnt(0)")
    sync(0)
    stamp(a, 1)
    if CFG["prof"]: a("s_waitcnt lgkmcnt(0)")
    for t in range(D):
        for r in reads(t): a(r)
    issue(4)
    UP = 216
    unp = []
    for i in range(10):
        unp.append([f"v_lshlrev_b32 v{UP+2*i}, 16, v{RS+i}", f"v_and_b32 v{UP+2*i+1}, 0xffff0000, v{RS+i}"])
        if not k3:
            unp.append([f"v_lshlrev_b32 v8, 16, v{RS+12+i}", f"v_and_b32 v9, 0xffff0000, v{RS+12+i}"])
            unp.append([f"v_add_f32 v{UP+2*i}, v{UP+2*i}, v8", f"v_add_f32 v{UP+2*i+1}, v{UP+2*i+1}, v9"])
    for t in range(NS):
        s, st = t >> 2, t & 3
        F = WF + 20 * (t & 3)
        if t + D < NS and ((t + D) & 3) == 0:
            sync(s + 1)
            if s + 2 == NST:
                stamp(a, 2)
                if CFG["prof"]: a("s_waitcnt lgkmcnt(0)")
        a(f"s_waitcnt lgkmcnt({5 * min(D - 1, NS - 1 - t)})")
        rd = reads(t + D) if t + D < NS else []
        for tt in range(5):
            d = vr(ACC + 4 * tt, 4)
            if not CFG["nocomp"]:
                a(f"v_mfma_f32_16x16x32_bf16 {d}, {vr(F+4*tt,4)}, {vr(AR+16*(s%R)+4*st,4)}, {'0' if t == 0 else d}")
                if rd: a(rd[tt])
            if tt in ((0, 2, 4) if st == 1 or t < 8 else (1, 3)): issue()
            if t >= 12 and unp:
                for x in unp.pop(0): a(x)
    assert issued[0] == len(stream) and not unp
    stamp(a, 3)
    a("s_nop 3")
    for i in range(10):
        a(f"v_pk_add_f32 {vr(ACC+2*i,2)}, {vr(ACC+2*i,2)}, {vr(UP+2*i,2)}")
        a(f"v_cvt_pk_bf16_f32 v{RS+i}, v{ACC+2*i}, v{ACC+2*i+1}")
    fl = ST("st3") if k3 else ""
    a(f"buffer_store_dwordx4 {vr(RS,4)}, v3, s[16:19], s37 offen{fl}")
    a(f"buffer_store_dwordx4 {vr(RS+4,4)}, v3, s[16:19], s37 offen offset:16{fl}")
    a(f"buffer_store_dwordx2 {vr(RS+8,2)}, v3, s[16:19], s37 offen offset:32{fl}")
    a.label(P + "end")
    a("s_endpgm")
    return desc(name, 240)

def build():
    a = Asm()
    launches = [
        ("qkv_kernel", 256, 512, LDS_LN),
        ("attn_kernel", 256, 512, 163840),
        ("wo_kernel", 256, 256, 102400),
        ("ffn1_kernel", 256, 512, LDS_LN),
        ("ffn2_kernel", 256, 256, 102400),
    ]
    d = []
    d.append(gemm_ln(a, "qkv_kernel", "qkv"))
    d.append(attention(a, "attn_kernel"))
    d.append(gemm_res(a, "wo_kernel", "wo"))
    d.append(gemm_ln(a, "ffn1_kernel", "ffn1"))
    d.append(gemm_res(a, "ffn2_kernel", "ffn2"))
    if CFG["pfk"]:
        header(a, "pf_kernel")
        a(f"s_load_dwordx2 s[8:9], s[0:1], {KWS}")
        a("v_lshlrev_b32 v1, 4, v0")
        a("s_lshr_b32 s32, s2, 3")
        a("s_and_b32 s31, s2, 7")
        a("s_waitcnt lgkmcnt(0)")
        srd(a, 20, 8, WS_SIZE)
        a(f"s_mul_i32 s33, s32, {68*1024}")
        a(f"s_add_u32 s33, s33, {OFF_W2}")
        for i in range(17):
            a("buffer_load_dwordx4 v[4:7], v1, s[20:23], s33 offen")
            a("s_add_u32 s33, s33, 4096")
        if CFG["pfk"] == 2:
            a(f"s_mul_i32 s33, s32, {27*1024}")
            a(f"s_mul_i32 s34, s31, {864*1024}")
            a("s_add_u32 s33, s33, s34")
            a(f"s_add_u32 s33, s33, {OFF_G}")
            for i in range(7):
                a("buffer_load_dwordx4 v[4:7], v1, s[20:23], s33 offen")
                a("s_add_u32 s33, s33, 4096")
        a("s_endpgm")
        d.append(desc("pf_kernel", 16))
        launches.insert(4, ("pf_kernel", 256, 256, 0))
    if CFG["dummy"]:
        header(a, "dummy_kernel")
        a("s_endpgm")
        d.append(desc("dummy_kernel", 16))
        launches += [("dummy_kernel", 256, 256, 0)] * CFG["dummy"]
    if CFG["prof"]: instrument(a)
    errs = check(a.lines)
    for e in errs: print(e, file=sys.stderr)
    head = "".join(f"; @launch kernel={n} grid=({g},1,1) block=({b},1,1) lds={l}\n" for n, g, b, l in launches)
    txt = head + '.amdgcn_target "amdgcn-amd-amdhsa--gfx950"\n.text\n' + a.text() + '.section .rodata,"a"\n' + "".join(d)
    return txt, errs

if __name__ == "__main__":
    out = sys.argv[1] if len(sys.argv) > 1 else f"cdna_kernels/{NAME}.s"
    for kv in sys.argv[2:]:
        k, v = kv.split("="); CFG[k] = int(v)
    txt, errs = build()
    open(out, "w").write(txt)
    print("written", out, len(txt), "bytes; hazards:", len(errs))
```

```python
import sys, math, struct
from asmlib import Asm, vr, sr, check

NAME = "sequential_preLN__softmax_full_mha__dense_activation_gelu__prompt"
KN = NAME + "_kernel"
UNIT = 163840
OFF_O = 64 * UNIT
OFF_H = OFF_O + 2621440
OFF_G = OFF_H + 2621440
OFF_WO = OFF_G + 128 * 54 * 1024
OFF_W2 = OFF_WO + 640 * 1280
OFF_ST = OFF_W2 + 1728 * 1280
OFF_CO = OFF_ST + 2048 * 64
OFF_TS = OFF_CO + 16384
OFF_CP = OFF_TS + 32768
OFF_F = OFF_CP + 16 * 7680
F2H, F0, F1 = [OFF_F + 32768 * i for i in range(3)]
FR = 131072
F2, F3, F4 = [OFF_F + 98304 + FR * i for i in range(3)]
WS_END = F4 + 4 * FR
POS = [0, 14, 28, 41]
WS_SIZE = WS_END + 65536
OFF_PROF = 64 << 20
PX, PWQKV, PWO, PW1, PB1, PW2, PB2, POUT, PDBG, PWS = 64, 66, 68, 72, 74, 76, 78, 80, 82, 84
SPIN = 200000

CFG = dict(rot1=0, prof=0, n01=20, prio=1, pf=1, thr=8, cpf=1, ps=5, sl1=0, fpl=4, xpf=0, n5=6, ls=128, sl4=2, pt=1, sg=6, _hi={})

def f32(x):
    return "0x%08x" % struct.unpack("<I", struct.pack("<f", x))[0]

def srd(a, d, p, size, off=0):
    if off:
        a(f"s_add_u32 s{d}, s{p}, {off}")
        a(f"s_addc_u32 s{d+1}, s{p+1}, 0")
    else:
        a(f"s_mov_b32 s{d}, s{p}")
        a(f"s_mov_b32 s{d+1}, s{p+1}")
    a(f"s_mov_b32 s{d+2}, {size}")
    a(f"s_mov_b32 s{d+3}, 0x20000")

def stamp(a, i):
    if CFG["prof"]:
        a("s_memrealtime s[96:97]")
        a("s_memtime s[98:99]")
        a("s_waitcnt lgkmcnt(0)")
        a(f"v_writelane_b32 v255, s96, {i}")
        a(f"v_writelane_b32 v255, s98, {32+i}")

def finish(a):
    if CFG["prof"]:
        a("s_waitcnt vmcnt(0)")
        stamp(a, 31)
        a("s_mov_b64 exec, -1")
        srd(a, 92, PWS, "0x8000000")
        a("s_lshl_b32 s96, s2, 3")
        a("s_add_u32 s96, s96, s3")
        a("s_lshl_b32 s96, s96, 8")
        a(f"s_add_u32 s96, s96, {OFF_PROF}")
        a("v_lshlrev_b32 v254, 2, v0")
        a("buffer_store_dword v255, v254, s[92:95], s96 offen")
    a("s_endpgm")

def bf16_round(a, dst, src):
    a(f"v_cvt_pk_bf16_f32 v{dst}, v{src}, v{src}")
    a(f"v_lshlrev_b32 v{dst}, 16, v{dst}")

_uid = [0]
def uid(p):
    _uid[0] += 1
    return f"U{p}{_uid[0]}"

def signal(a, sflag, vt, st=None):
    a(f"v_mov_b32 v{vt}, s100")
    a(f"v_lshlrev_b32 v{vt+1}, 2, s28")
    if st is not None: stamp(a, st)
    a("s_waitcnt vmcnt(0)")
    a("s_mov_b64 exec, 1")
    a(f"buffer_store_dword v{vt}, v{vt+1}, s[20:23], s{sflag} offen sc1")
    a("s_mov_b64 exec, -1")

def ssignal(a, sflag, st=None, n=0):
    if st is not None: stamp(a, st)
    a(f"s_waitcnt vmcnt({n})")
    a(f"s_atomic_swap s100, s[{PWS}:{PWS+1}], s{sflag}")

def vsignal(a, sflag, n):
    a(f"s_waitcnt vmcnt({n})")
    a("s_mov_b64 exec, 1")
    a(f"buffer_store_dword v30, v31, s[20:23], s{sflag} offen sc1")
    a("s_mov_b64 exec, -1")

def poll(a, va, nl, width=1, vd=4, sleep=0):
    L, E = uid("p"), uid("e")
    a(f"s_mov_b32 s60, {SPIN}")
    m = (1 << nl) - 1
    if nl < 64:
        a(f"s_mov_b32 exec_lo, {hex(m & 0xffffffff)}")
        a(f"s_mov_b32 exec_hi, {hex(m >> 32)}")
    a.label(L)
    if sleep: a(f"s_sleep {sleep}")
    op = {1: "dword", 2: "dwordx2", 4: "dwordx4"}[width]
    a(f"buffer_load_{op} {vr(vd,width)}, v{va}, s[20:23], 0 offen sc1")
    a("s_sub_u32 s60, s60, 1")
    a(f"s_cbranch_scc1 {E}")
    a("s_waitcnt vmcnt(0)")
    tagcheck(a, vd, width)
    a(f"s_cbranch_scc1 {L}")
    a.label(E)
    a("s_waitcnt vmcnt(0)")
    a("s_mov_b64 exec, -1")

def tagcheck(a, vd, width):
    for i in range(width):
        a(f"v_xor_b32 v{vd+i}, s100, v{vd+i}")
    if width == 2: a(f"v_or_b32 v{vd}, v{vd}, v{vd+1}")
    if width == 4:
        a(f"v_or3_b32 v{vd}, v{vd}, v{vd+1}, v{vd+2}")
        a(f"v_or_b32 v{vd}, v{vd}, v{vd+3}")
    a(f"v_cmp_ne_u32 vcc, 0, v{vd}")
    a("s_nop 1")
    a("s_cmp_lg_u64 vcc, 0")

def spoll(a, soff, counts):
    L, E = uid("p"), uid("e")
    regs = [4, 40, 48, 88]
    a(f"s_add_u32 s86, s{PWS}, s{soff}")
    a(f"s_addc_u32 s87, s{PWS+1}, 0")
    a(f"s_mov_b32 s60, {SPIN}")
    a.label(L)
    for i in range(len(counts)):
        a(f"s_load_dwordx8 s[{regs[i]}:{regs[i]+7}], s[86:87], {CFG['ls']*i} glc")
    a("s_sub_u32 s60, s60, 1")
    a(f"s_cbranch_scc1 {E}")
    a("s_waitcnt lgkmcnt(0)")
    for i, n in enumerate(counts):
        for j in range(0, n, 2):
            a(f"s_cmp_lg_u64 s[{regs[i]+j}:{regs[i]+j+1}], s[100:101]")
            a(f"s_cbranch_scc1 {L}")
    a.label(E)
    a("s_waitcnt lgkmcnt(0)")

def tag_load(a):
    srd(a, 24, PDBG, 256)
    a("v_mov_b32 v205, 0")
    a("buffer_load_dword v204, v205, s[24:27], 0 offen sc1")

def tag_take(a):
    L, E = uid("z"), uid("z")
    a(f"s_mov_b32 s60, {SPIN}")
    a.label(L)
    a("v_readfirstlane_b32 s100, v204")
    a("s_nop 0")
    a("s_cmp_lg_u32 s100, 0")
    a(f"s_cbranch_scc1 {E}")
    a("buffer_load_dword v204, v205, s[24:27], 0 offen sc1")
    a("s_waitcnt vmcnt(0)")
    a("s_sub_u32 s60, s60, 1")
    a(f"s_cbranch_scc0 {L}")
    a.label(E)
    a("s_mov_b32 s101, s100")

def only_h0(a, body):
    L = uid("h")
    a("s_cmp_lg_u32 s28, 0")
    a(f"s_cbranch_scc1 {L}")
    body()
    a.label(L)

def relayout_task(a):
    a("s_and_b32 s34, s54, 7")
    a("s_lshr_b32 s35, s54, 3")
    a("s_and_b32 s36, s35, 3")
    a("s_mul_i32 s48, s36, 14")
    a("s_lshr_b32 s49, s35, 2")
    a("s_add_u32 s48, s48, s49")
    a("s_cmp_eq_u32 s36, 3")
    a("s_subb_u32 s48, s48, 0")
    a("s_sub_u32 s36, s35, 54")
    a("s_cselect_b32 s48, s48, s36")
    a(f"s_cselect_b32 s12, s{PW2}, s{PWO}")
    a(f"s_cselect_b32 s13, s{PW2+1}, s{PWO+1}")
    a(f"s_mov_b32 s14, {640*1280}")
    a(f"s_cselect_b32 s14, {1728*1280}, s14")
    a("s_mov_b32 s15, 0x20000")
    a("s_cselect_b32 s35, s35, s36")
    a("s_cselect_b32 s37, 54, 20")
    a(f"s_mov_b32 s56, {OFF_WO}")
    a(f"s_cselect_b32 s56, {OFF_W2}, s56")
    a("s_cselect_b32 s44, 16, 20")
    a("s_cselect_b32 s45, 32, 40")
    a("s_mul_i32 s37, s37, s34")
    a("s_add_u32 s37, s37, s48")
    a("s_mul_i32 s37, s37, 5120")
    a("s_add_u32 s56, s56, s37")
    a("s_cmp_ge_u32 s54, 560")
    a("s_cselect_b32 s44, 80, s44")
    a("s_cselect_b32 s45, 160, s45")
    a("s_cselect_b32 s46, 20, 4")
    a("s_cselect_b32 s47, 40, 8")
    a("s_cselect_b32 s36, -2544, 0")
    a("s_mul_i32 s50, s35, s45")
    a("s_add_u32 s50, s50, s36")
    a("s_add_u32 s51, s50, s47")
    a("s_mul_i32 s50, s50, 1280")
    a("s_mul_i32 s51, s51, 1280")
    a("s_mul_i32 s34, s34, 160")
    a("s_add_u32 s50, s50, s34")
    a("s_add_u32 s51, s51, s34")
    a("v_lshrrev_b32 v2, 5, v0")
    a("v_mul_u32_u24 v2, s44, v2")
    a("v_bfe_u32 v3, v0, 4, 1")
    a("v_mul_u32_u24 v3, s46, v3")
    a("v_add_u32 v2, v2, v3")
    a("v_mul_u32_u24 v2, 1280, v2")
    a("v_and_b32 v3, 15, v0")
    a("v_lshl_add_u32 v9, v3, 1, v2")
    a("v_bfe_u32 v3, v0, 2, 2")
    a("v_mul_u32_u24 v3, 24, v3")
    a("v_add_u32 v8, v9, v3")

def relayout_load(a):
    R = 32
    for tt in range(5):
        for e in range(8):
            op = "buffer_load_short_d16_hi" if e & 1 else "buffer_load_ushort"
            va, o = (8, 8 * tt) if tt < 4 else (9, 128)
            a(f"{op} v{R+8*tt+4*(e&1)+(e>>1)}, v{va}, s[12:15], s{50+(e>>2)} offen offset:{1280*(e&3)+o}")

def relayout_store(a):
    R = 32
    a("v_add_u32 v2, 4096, v1")
    a("s_mov_b32 s33, 0xffff0000")
    for tt in range(5):
        a(f"s_waitcnt vmcnt({32-7*tt})")
        for p in range(4):
            a(f"v_and_or_b32 v{R+8*tt+p}, v{R+8*tt+4+p}, s33, v{R+8*tt+p}")
        if tt < 4: a(f"buffer_store_dwordx4 {vr(R+8*tt,4)}, v1, s[20:23], s56 offen offset:{1024*tt} sc1")
        else: a(f"buffer_store_dwordx4 {vr(R+8*tt,4)}, v2, s[20:23], s56 offen sc1")

STAT = 131072
IDS = STAT + 3072

def ticket(a):
    L, E, X = uid("t"), uid("t"), uid("t")
    a("s_cmp_lg_u32 s3, 0")
    a(f"s_cbranch_scc1 {X}")
    a("s_mov_b32 s61, 7")
    a.label(L)
    a("s_waitcnt lgkmcnt(0)")
    a("s_cmp_lt_u32 s57, 32")
    a(f"s_cbranch_scc1 {E}")
    a("s_sub_u32 s61, s61, 1")
    a(f"s_cbranch_scc1 {E}")
    a("s_add_u32 s60, s60, 1")
    ticket_ask(a)
    a(f"s_branch {L}")
    a.label(E)
    a("s_and_b32 s57, s57, 31")
    a("s_lshl_b32 s57, s57, 3")
    a("s_add_u32 s57, s57, s60")
    a("v_mov_b32 v200, s57")
    a("ds_write_b32 v201, v200")
    a("s_waitcnt lgkmcnt(0)")
    a.label(X)
    a("s_barrier")
    a("ds_read_b32 v200, v201")
    a("s_waitcnt lgkmcnt(0)")
    a("v_readfirstlane_b32 s32, v200")
    a("s_nop 0")
    if CFG["prof"]:
        a("s_nop 2")
        a("v_writelane_b32 v255, s32, 62")
    a("s_and_b32 s31, s32, 7")
    a("s_lshr_b32 s32, s32, 3")
    a("s_and_b32 s33, s31, 1")
    a("s_mul_i32 s33, s33, 30")
    a("s_add_u32 s33, s33, s32")
    a("s_lshr_b32 s30, s33, 2")
    a("s_and_b32 s33, s33, 3")
    a("s_lshr_b32 s29, s31, 1")
    a("s_lshl_b32 s29, s29, 2")
    a("s_add_u32 s29, s29, s33")

def ticket_ask(a):
    a("s_and_b32 s60, s60, 7")
    a("s_lshl_b32 s57, s60, 5")
    a(f"s_add_u32 s86, s{PDBG}, s57")
    a(f"s_addc_u32 s87, s{PDBG+1}, 0")
    a("s_mov_b32 s57, 1")
    a("s_atomic_add s57, s[86:87], 16 glc")

def stats_issue(a):
    a("s_cmp_ge_u32 s3, 2")
    a("s_cbranch_scc1 Lst_w")
    srd(a, 12, PX, 2048 * 1280)
    a("v_lshrrev_b32 v2, 4, v0")
    a("v_and_b32 v3, 15, v0")
    a("v_mul_u32_u24 v4, 1280, v2")
    a("v_lshl_add_u32 v4, v3, 4, v4")
    a("s_lshl_b32 s33, s2, 1")
    a("s_add_u32 s33, s33, s3")
    a("s_mul_i32 s34, s33, 5120")
    for i in range(5):
        a(f"buffer_load_dwordx4 {vr(32+4*i,4)}, v4, s[12:15], s34 offen offset:{256*i}")
    a("s_branch Lst_i")
    a.label("Lst_w")
    srd(a, 12, PWQKV, 640 * 3840)
    a("v_lshrrev_b32 v2, 3, v0")
    a("v_and_b32 v3, 7, v0")
    a("v_mul_u32_u24 v4, 3840, v2")
    a("v_lshl_add_u32 v4, v3, 4, v4")
    a("s_and_b32 s33, s2, 7")
    a("s_lshl_b32 s33, s33, 1")
    a("s_add_u32 s33, s33, s3")
    a("s_sub_u32 s33, s33, 2")
    a(f"s_mul_i32 s34, s33, {40*3840}")
    a("s_lshr_b32 s35, s2, 3")
    a("s_min_u32 s35, s35, 29")
    a("s_lshl_b32 s36, s35, 7")
    a("s_add_u32 s34, s34, s36")
    for i in range(5):
        a(f"buffer_load_dwordx4 {vr(32+4*i,4)}, v4, s[12:15], s34 offen")
        a(f"s_add_u32 s34, s34, {8*3840}")
    a.label("Lst_i")
    a("s_mov_b32 s52, s33")
    a("s_mov_b32 s53, s35")

def stats_finish(a):
    a("s_cmp_ge_u32 s3, 2")
    a("s_cbranch_scc1 Lsf_w")
    a("v_mov_b32 v8, 0x3f803f80")
    for i in range(4): a(f"v_mov_b32 v{10+i}, 0")
    a("s_waitcnt vmcnt(0)")
    for i in range(20):
        a(f"v_dot2_f32_bf16 v{10+(i&1)}, v{32+i}, v8, v{10+(i&1)}")
        a(f"v_dot2_f32_bf16 v{12+(i&1)}, v{32+i}, v{32+i}, v{12+(i&1)}")
    a("s_nop 2")
    a("v_add_f32 v10, v10, v11")
    a("v_add_f32 v12, v12, v13")
    for r in (8, 4, 2, 1):
        a("s_nop 1")
        a(f"v_add_f32_dpp v10, v10, v10 row_ror:{r} row_mask:0xf bank_mask:0xf")
        a(f"v_add_f32_dpp v12, v12, v12 row_ror:{r} row_mask:0xf bank_mask:0xf")
    ln_final(a, 10, 12, 16, 18)
    a("v_and_b32 v4, 48, v0")
    a("s_lshl_b32 s34, s52, 6")
    a(f"s_add_u32 s34, s34, {OFF_TS}")
    a("s_mov_b32 exec_lo, 0x00010001")
    a("s_mov_b32 exec_hi, 0x00010001")
    a("buffer_store_dwordx4 v[16:19], v4, s[20:23], s34 offen sc1")
    a("s_mov_b64 exec, -1")
    a("s_branch Lsf_e")
    a.label("Lsf_w")
    a("v_mov_b32 v8, 0x3f80")
    a("v_mov_b32 v9, 0x3f800000")
    for i in range(8): a(f"v_mov_b32 v{10+i}, 0")
    a("s_waitcnt vmcnt(0)")
    for i in range(5):
        for j in range(4):
            a(f"v_dot2_f32_bf16 v{10+2*j}, v{32+4*i+j}, v8, v{10+2*j}")
            a(f"v_dot2_f32_bf16 v{11+2*j}, v{32+4*i+j}, v9, v{11+2*j}")
    a("s_nop 2")
    for j in range(4): a(f"v_permlane32_swap_b32 v{10+j}, v{14+j}")
    for j in range(4): a(f"v_add_f32 v{10+j}, v{10+j}, v{14+j}")
    a("s_nop 0")
    for j in range(2): a(f"v_permlane16_swap_b32 v{10+j}, v{12+j}")
    for j in range(2): a(f"v_add_f32 v{10+j}, v{10+j}, v{12+j}")
    a("v_and_b32 v4, 7, v0")
    a("v_lshlrev_b32 v4, 5, v4")
    for j in range(2): a(f"v_add_f32_dpp v{10+j}, v{10+j}, v{10+j} row_ror:8 row_mask:0xf bank_mask:0xf")
    a("v_lshrrev_b32 v5, 4, v0")
    a("v_lshl_add_u32 v4, v5, 3, v4")
    a("s_mul_i32 s34, s52, 7680")
    a("s_lshl_b32 s35, s53, 8")
    a("s_add_u32 s34, s34, s35")
    a(f"s_add_u32 s34, s34, {OFF_CP}")
    a("buffer_store_dwordx2 v[10:11], v4, s[20:23], s34 offen sc1")
    a.label("Lsf_e")
    tag_load(a)

def stats_signal(a):
    a("s_waitcnt vmcnt(0)")
    tag_take(a)
    a("s_lshl_b32 s33, s2, 7")
    a(f"s_add_u32 s33, s33, {F0}")
    signal(a, 33, 202)

def code_prefetch(a, l0, n, v):
    P = uid("c")
    a("s_getpc_b64 s[90:91]")
    a.label(P)
    a(f"s_add_u32 s90, s90, {l0}-{P}")
    a(f"s_addc_u32 s91, s91, {CFG['_hi'].get(l0, 0)}")
    a(f"v_lshlrev_b32 v{v+3}, 7, v0")
    for i in range(n):
        a(f"v_min_u32 v{v}, Lcode_end-{l0}-4, v{v+3}")
        a(f"v_mov_b32 v{v+1}, s91")
        a(f"v_add_co_u32 v{v}, vcc, s90, v{v}")
        a(f"v_add_u32 v{v+3}, 8192, v{v+3}")
        a("s_nop 0")
        a(f"v_addc_co_u32 v{v+1}, vcc, 0, v{v+1}, vcc")
        a(f"global_load_dword v{v+2}, v[{v}:{v+1}], off")

def p1_spare(a):
    a.label("Lspare_h")
    tag_load(a)
    a("s_waitcnt vmcnt(0)")
    tag_take(a)
    a("s_branch Lspare")
    a.label("Lspare_c")
    stats_signal(a)
    a.label("Lspare")
    a("s_sub_u32 s29, s32, 30")
    a("s_lshl_b32 s29, s29, 3")
    a("s_add_u32 s29, s29, s31")
    a("s_cmp_ge_u32 s29, 14")
    a("s_cbranch_scc1 Lsp_done")
    srd(a, 12, PW1, 640 * 3456)
    srd(a, 16, PB1, 1728 * 2)
    a("v_lshrrev_b32 v2, 4, v0")
    a("v_and_b32 v3, 15, v0")
    a("v_mul_u32_u24 v2, 3456, v2")
    a("v_lshl_add_u32 v2, v3, 4, v2")
    a(f"s_mul_i32 s33, s3, {80*3456}")
    a("s_lshl_b32 s34, s29, 8")
    a("s_add_u32 s33, s33, s34")
    for i in range(20):
        a(f"buffer_load_dwordx4 {vr(96+4*i,4)}, v2, s[12:15], s33 offen")
        a(f"s_add_u32 s33, s33, {4*3456}")
    a("v_lshlrev_b32 v4, 1, v0")
    a("s_lshl_b32 s35, s3, 7")
    a("s_add_u32 s35, s35, s34")
    a("buffer_load_ushort v90, v4, s[16:19], s35 offen")
    a("v_mov_b32 v88, 0x3f80")
    a("v_mov_b32 v89, 0x3f800000")
    for i in range(8): a(f"v_mov_b32 v{80+i}, 0")
    for i in range(20):
        a(f"s_waitcnt vmcnt({20-i})")
        for j in range(4):
            a(f"v_dot2_f32_bf16 v{80+2*j}, v{96+4*i+j}, v88, v{80+2*j}")
            a(f"v_dot2_f32_bf16 v{81+2*j}, v{96+4*i+j}, v89, v{81+2*j}")
    a("v_lshlrev_b32 v4, 5, v0")
    a("s_lshl_b32 s33, s3, 11")
    a("v_add_u32 v4, s33, v4")
    a("s_nop 0")
    a("ds_write_b128 v4, v[80:83]")
    a("ds_write_b128 v4, v[84:87] offset:16")
    a("s_waitcnt lgkmcnt(0)")
    a("s_barrier")
    a("s_cmp_ge_u32 s3, 2")
    a("s_cbranch_scc1 Lsp_done")
    a("v_lshlrev_b32 v4, 2, v0")
    a("s_lshl_b32 s33, s3, 8")
    a("v_add_u32 v4, s33, v4")
    for h in range(4):
        for i in range(8): a(f"ds_read_b32 v{96+8*h+i}, v4 offset:{512*(8*h+i)}")
        a("s_waitcnt lgkmcnt(0)")
    for i in range(1, 32): a(f"v_add_f32 v96, v96, v{96+i}")
    bf16_round(a, 97, 96)
    a("v_sub_f32 v96, v96, v97")
    a("v_cvt_pk_bf16_f32 v92, v97, v96")
    a("s_waitcnt vmcnt(0)")
    a("v_mov_b32 v93, v90")
    a("v_lshlrev_b32 v4, 3, v0")
    a("s_lshl_b32 s35, s35, 2")
    a(f"s_add_u32 s35, s35, {OFF_CO}")
    a("buffer_store_dwordx2 v[92:93], v4, s[20:23], s35 offen sc1")
    a.label("Lsp_done")
    a("s_waitcnt vmcnt(0)")
    a("s_barrier")
    a("s_cmp_ge_u32 s3, 4")
    a("s_cbranch_scc1 Lh2")
    a("s_mov_b32 s30, 15")
    f1_addr(a, 30)
    a(f"s_add_u32 s58, s58, {F1}")
    a("s_branch Lc2")

def p1_helper(a):
    WS = 3840
    a("v_lshrrev_b32 v2, 3, v0")
    a("v_and_b32 v3, 7, v0")
    a("v_lshrrev_b32 v4, 4, v0")
    a("v_xor_b32 v3, v3, v4")
    a("v_mul_u32_u24 v2, 1280, v2")
    a("v_lshl_add_u32 v10, v3, 4, v2")
    a("v_xor_b32 v5, 64, v10")
    a(f"v_add_u32 v11, {10240-1024}, v5")
    a(f"v_add_u32 v12, {2*(10240-1024)}, v10")
    a(f"v_add_u32 v13, {3*(10240-1024)}, v5")
    a("v_and_b32 v3, 15, v0")
    a("v_lshlrev_b32 v5, 2, v4")
    a("v_xor_b32 v3, v3, v5")
    a(f"v_mul_u32_u24 v14, {WS}, v4")
    a("v_lshl_add_u32 v14, v3, 4, v14")
    for i in range(1, 4):
        a(f"v_add_u32 v{14+i}, {i*(4*WS-1024)}, v14")
    srd(a, 12, PX, 2048 * 1280)
    srd(a, 16, PWQKV, 640 * 3840)
    if CFG["xpf"]:
        a("s_getreg_b32 s33, hwreg(HW_REG_HW_ID, 8, 3)")
        a("s_getreg_b32 s34, hwreg(HW_REG_HW_ID, 13, 2)")
        a("s_lshl_b32 s34, s34, 3")
        a("s_add_u32 s33, s33, s34")
        a("s_lshl_b32 s33, s33, 2")
        a("s_add_u32 s33, s33, s28")
        a("s_mul_i32 s34, s33, 40")
        a("v_min_u32 v6, 39, v0")
        a("v_add_u32 v6, s34, v6")
        a("v_and_b32 v7, 511, v6")
        a("v_lshrrev_b32 v6, 9, v6")
        a("v_mul_u32_u24 v7, 1280, v7")
        a("v_lshl_add_u32 v6, v6, 7, v7")
        a("s_bfe_u32 s34, s60, 0x20001")
        a(f"s_mul_i32 s34, s34, {512*1280}")
        a(f"v_mul_u32_u24 v7, {WS}, v4")
        a("v_and_b32 v8, 15, v0")
        a("v_lshl_add_u32 v7, v8, 7, v7")
        a(f"s_mul_i32 s35, s33, {5*WS}")
        a("s_and_b32 s36, s60, 1")
        a("s_mul_i32 s36, s36, 1792")
        a("s_add_u32 s35, s35, s36")
        a(f"s_add_u32 s36, s35, {4*WS}")
        a("v_lshlrev_b32 v8, 7, v8")
        a("buffer_load_dword v9, v7, s[16:19], s35 offen")
        a("buffer_load_dword v9, v6, s[12:15], s34 offen")
        a("buffer_load_dword v9, v8, s[16:19], s36 offen")
    a("s_or_b32 s33, s2, s28")
    a("s_cbranch_scc1 Lh_nz")
    a("s_memrealtime s[34:35]")
    a("s_waitcnt lgkmcnt(0)")
    a("s_or_b32 s34, s34, 1")
    a(f"s_atomic_swap s34, s[{PDBG}:{PDBG+1}], 0")
    a.label("Lh_nz")
    if CFG["cpf"]:
        CFG["_hi"][KN] = -1
        a("s_getreg_b32 s33, hwreg(HW_REG_HW_ID, 9, 7)")
        a("s_lshl_b32 s33, s33, 2")
        a("s_add_u32 s33, s33, s28")
        a("s_cmp_lg_u32 s33, 7")
        a("s_cbranch_scc1 Lh_np")
        code_prefetch(a, KN, 6, 204)
        a.label("Lh_np")
    ticket(a)
    a("s_cmp_ge_u32 s32, 30")
    a("s_cbranch_scc1 Lspare_h")
    a("s_mul_i32 s34, s29, 163840")
    a("s_mul_i32 s33, s28, 40960")
    a("s_add_u32 s34, s34, s33")
    a("s_lshl_b32 s35, s30, 8")
    a(f"s_mul_i32 s33, s28, {16*WS}")
    a("s_add_u32 s35, s35, s33")
    rot = CFG["rot1"]
    if rot:
        a("s_mul_i32 s38, s29, 3")
        a("s_add_u32 s38, s38, s30")
        a("s_mul_i32 s33, s38, 6554")
        a("s_lshr_b32 s33, s33, 16")
        a("s_mul_i32 s33, s33, 10")
        a("s_sub_u32 s38, s38, s33")
        a("s_lshl_b32 s36, s38, 7")
        a("s_add_u32 s36, s36, s34")
        a(f"s_mul_i32 s37, s38, {64*WS}")
        a("s_add_u32 s37, s37, s35")
    else:
        a("s_mov_b32 s36, s34")
        a("s_mov_b32 s37, s35")
    a("s_lshl_b32 s39, s28, 12")
    stream = []
    for s in range(10):
        slot = (s & 3) * 32768
        for i in range(4):
            g = [f"s_add_u32 m0, s39, {slot}", "s_nop 0"] if i == 0 else []
            g.append(f"buffer_load_dwordx4 v{10+i}, s[12:15], s36 offen offset:{1024*i} lds")
            stream.append(g)
        for i in range(4):
            g = [f"s_add_u32 m0, s39, {slot+16384}", "s_add_u32 s36, s36, 128"] if i == 0 else []
            g.append(f"buffer_load_dwordx4 v{14+i}, s[16:19], s37 offen offset:{1024*i} lds")
            if i == 3:
                g.append(f"s_add_u32 s37, s37, {64*WS}")
                if rot:
                    g += ["s_add_u32 s38, s38, 1", "s_cmp_eq_u32 s38, 10", "s_cselect_b32 s36, s34, s36", "s_cselect_b32 s37, s35, s37"]
            stream.append(g)
    issued = [0]; q = []
    def issue(n=1):
        for _ in range(n):
            if issued[0] < 80:
                for x in stream[issued[0]]: a(x)
                q.append(issued[0] // 8)
                issued[0] += 1
    def wait(tag):
        last = max(i for i, t in enumerate(q) if t == tag)
        a(f"s_waitcnt vmcnt({len(q) - 1 - last})")
    issue(CFG["n01"])
    srd(a, 24, PDBG, 256)
    a("v_mov_b32 v205, 0")
    a("v_and_b32 v2, 31, v0")
    a("v_lshrrev_b32 v3, 5, v0")
    a("s_lshl_b32 s33, s29, 2")
    a("s_add_u32 s33, s33, s28")
    a("s_lshl_b32 s40, s33, 2")
    a("s_lshl_b32 s41, s30, 1")
    a("s_lshr_b32 s42, s28, 1")
    a("s_add_u32 s41, s41, s42")
    a("s_lshl_b32 s41, s41, 3")
    a("s_sub_u32 s41, s41, 4")
    a("v_min_u32 v4, 11, v0")
    a("v_add_u32 v5, s40, v4")
    a("v_cmp_gt_u32 vcc, 4, v4")
    a("v_add_u32 v4, s41, v4")
    a("s_lshl_b32 s40, s33, 9")
    a("v_cndmask_b32 v4, v4, v5, vcc")
    a("v_cndmask_b32 v5, 8, v205, vcc")
    a("v_lshl_add_u32 v4, v4, 7, v5")
    a(f"v_add_u32 v20, {F0}, v4")
    a(f"s_add_u32 s40, s40, {OFF_TS}")
    a("v_lshlrev_b32 v21, 4, v2")
    a(f"v_mul_u32_u24 v22, {8*7680}, v3")
    a("v_lshl_add_u32 v22, v2, 2, v22")
    a("s_lshl_b32 s41, s30, 2")
    a("s_add_u32 s41, s41, s28")
    a("s_lshl_b32 s41, s41, 7")
    a(f"s_add_u32 s41, s41, {OFF_CP}")
    PS = CFG["ps"]
    for s in range(10):
        wait(s)
        a("s_barrier")
        if s == PS:
            a("buffer_load_dword v204, v205, s[24:27], 0 offen sc1"); q.append("p")
            a("buffer_load_dwordx2 v[24:25], v20, s[20:23], 0 offen sc1"); q.append("p")
        if s == PS + 2:
            wait("p")
            tag_take(a)
            tagcheck(a, 24, 2)
            a("s_cbranch_scc0 Lh_ok")
            poll(a, 20, 64, 2)
            a.label("Lh_ok")
            a("buffer_load_dwordx4 v[40:43], v21, s[20:23], s40 offen sc1"); q.append("d")
            for i in range(8):
                a(f"buffer_load_dword v{48+i}, v22, s[20:23], s41 offen sc1"); q.append("d")
                a("s_add_u32 s41, s41, 7680")
        issue(8)
    a("s_waitcnt vmcnt(0)")
    for i in range(4): a(f"v_add_f32 v{48+i}, v{48+i}, v{52+i}")
    for i in range(2): a(f"v_add_f32 v{48+i}, v{48+i}, v{50+i}")
    a("v_add_f32 v36, v48, v49")
    a("v_mov_b32 v37, v36")
    a("s_nop 1")
    a("v_permlane32_swap_b32 v36, v37")
    a("v_add_f32 v36, v36, v37")
    bf16_round(a, 37, 36)
    a("v_sub_f32 v36, v36, v37")
    a("v_cvt_pk_bf16_f32 v44, v37, v36")
    a("v_mov_b32 v45, 0")
    a("s_lshl_b32 s33, s28, 5")
    a("v_add_u32 v2, s33, v2")
    a("v_lshlrev_b32 v3, 3, v2")
    a(f"v_add_u32 v3, {STAT}, v3")
    a("v_lshlrev_b32 v4, 2, v2")
    a(f"v_add_u32 v4, {STAT+1024}, v4")
    a("ds_write_b64 v3, v[40:41]")
    a("ds_write_b32 v4, v42")
    a("ds_write_b64 v3, v[44:45] offset:2048")
    a("s_waitcnt lgkmcnt(0)")
    a("s_barrier")

def ln_final(a, vs, vq, vo, vr_):
    a(f"v_mul_f32 v{vs}, {f32(1/640)}, v{vs}")
    a(f"v_mul_f32 v{vq}, {f32(1/640)}, v{vq}")
    a(f"v_fma_f32 v{vq}, -v{vs}, v{vs}, v{vq}")
    a(f"v_max_f32 v{vq}, 0, v{vq}")
    bf16_round(a, vq, vq)
    a(f"v_add_f32 v{vq}, {f32(1e-5)}, v{vq}")
    bf16_round(a, vq, vq)
    a(f"v_sqrt_f32 v{vq}, v{vq}")
    a(f"v_mul_f32 v{vs}, -0.5, v{vs}")
    bf16_round(a, vq, vq)
    a(f"v_cvt_pk_bf16_f32 v{vo}, v{vs}, v{vs}")
    a(f"v_rcp_f32 v{vr_}, v{vq}")
    a(f"v_mul_f32 v{vq}, 0.5, v{vq}")
    a(f"v_lshrrev_b32 v{vo+1}, 16, v{vq}")

def f1_addr(a, sn):
    lg = CFG["fpl"].bit_length() - 1
    a(f"s_lshl_b32 s58, s{sn}, {11-lg}")
    a(f"s_lshr_b32 s33, s29, {lg}")
    a("s_lshl_b32 s33, s33, 7")
    a("s_add_u32 s58, s58, s33")
    a(f"s_and_b32 s33, s29, {CFG['fpl']-1}")
    a("s_lshl_b32 s33, s33, 2")
    a("s_add_u32 s58, s58, s33")

def kappa(a, d, t):
    a(f"v_and_b32 v{d}, 19, v0")
    a(f"v_bfe_u32 v{t}, v0, 2, 1")
    a(f"v_lshl_add_u32 v{d}, v{t}, 3, v{d}")
    a(f"v_bfe_u32 v{t}, v0, 3, 1")
    a(f"v_lshl_add_u32 v{d}, v{t}, 2, v{d}")

def p1_compute(a):
    ACC = 64
    FRB = [32, 48, 176]
    AD = 128
    stats_issue(a)
    ticket(a)
    stamp(a, 22)
    stats_finish(a)
    stamp(a, 23)
    a("s_cmp_ge_u32 s32, 30")
    a("s_cbranch_scc1 Lspare_c")
    a("s_and_b32 s34, s28, 1")
    a("s_lshr_b32 s35, s28, 1")
    a("v_and_b32 v2, 31, v0")
    a("v_lshrrev_b32 v3, 5, v0")
    a("v_bfe_u32 v4, v0, 1, 3")
    a("v_xor_b32 v4, v4, v3")
    a("v_lshlrev_b32 v4, 4, v4")
    a("v_lshl_add_u32 v4, v2, 7, v4")
    a("s_lshl_b32 s33, s34, 13")
    a("v_add_u32 v10, s33, v4")
    for i in range(1, 4):
        a(f"v_xor_b32 v{10+i}, {32*i}, v10")
    for i in range(4):
        a(f"v_add_u32 v{14+i}, 0x10000, v{10+i}")
    a("v_bfe_u32 v4, v0, 2, 2")
    a("v_lshl_add_u32 v5, v3, 3, v4")
    a("v_lshlrev_b32 v5, 8, v5")
    a("v_bfe_u32 v6, v0, 4, 1")
    a("v_lshl_add_u32 v5, v6, 5, v5")
    a("v_and_b32 v6, 3, v0")
    a("v_lshl_add_u32 v5, v6, 3, v5")
    a("v_add_u32 v5, 16384, v5")
    a("s_lshl_b32 s33, s35, 1")
    a("v_xor_b32 v4, s33, v4")
    a("v_lshl_add_u32 v18, v4, 6, v5")
    a("v_xor_b32 v19, 64, v18")
    a("v_add_u32 v20, 0x10000, v18")
    a("v_add_u32 v21, 0x10000, v19")
    a("s_lshl_b32 s33, s34, 6")
    a("v_add_u32 v22, s33, v2")
    a("v_lshlrev_b32 v23, 2, v22")
    a(f"v_add_u32 v23, {STAT+1024}, v23")
    a("v_lshlrev_b32 v22, 3, v22")
    a(f"v_add_u32 v22, {STAT}, v22")
    a("s_lshl_b32 s33, s35, 6")
    a("v_add_u32 v24, s33, v2")
    a("v_lshlrev_b32 v24, 3, v24")
    a(f"v_add_u32 v24, {STAT+2048}, v24")
    f1_addr(a, 30)
    a(f"s_add_u32 s58, s58, {F1}")

    def reads(t):
        s, st = t >> 2, t & 3
        se = (s >> 1) & 1
        io = (s & 1) * 32768
        F = FRB[t % 3]
        return [f"ds_read_b128 {vr(F,4)}, v{10+4*se+st} offset:{io}",
                f"ds_read_b64_tr_b16 {vr(F+8,2)}, v{18+2*se} offset:{io+st*4096}",
                f"ds_read_b64_tr_b16 {vr(F+10,2)}, v{18+2*se} offset:{io+st*4096+1024}",
                f"ds_read_b64_tr_b16 {vr(F+12,2)}, v{19+2*se} offset:{io+st*4096}",
                f"ds_read_b64_tr_b16 {vr(F+14,2)}, v{19+2*se} offset:{io+st*4096+1024}",
                f"ds_read_b128 {vr(F+4,4)}, v{10+4*se+st} offset:{io+4096}"]
    def mainloop(T):
        a("s_barrier")
        stamp(a, 1)
        for r in reads(0) + reads(1): a(r)
        for t in range(40):
            F = FRB[t % 3]
            if t < 38 and (t & 3) == 2:
                a("s_waitcnt lgkmcnt(0)")
                if t == CFG["sg"]: stats_signal(a)
                a("s_barrier")
            else:
                a(f"s_waitcnt lgkmcnt({6 if t < 39 else 0})")
            rd = reads(t + 2) if t < 38 else []
            for i, (x, w) in enumerate(((0, 0), (0, 1), (1, 0), (1, 1))):
                d = vr(ACC + 32 * x + 16 * w, 16)
                xa, wa = vr(F + 4 * x, 4), vr(F + 8 + 4 * w, 4)
                c = "0" if t == 0 else d
                if T: a(f"v_mfma_f32_32x32x16_bf16 {d}, {wa}, {xa}, {c}")
                else: a(f"v_mfma_f32_32x32x16_bf16 {d}, {xa}, {wa}, {c}")
                if i < 3:
                    for r in rd[2*i:2*i+2]: a(r)
        a("s_barrier")
        stamp(a, 2)
        a("ds_read_b64 v[176:177], v22")
        a("ds_read_b64 v[178:179], v22 offset:256")
        a("ds_read_b64 v[180:181], v24")
        a("ds_read_b64 v[182:183], v24 offset:256")
        if T:
            a("ds_read_b32 v40, v23")
            a("ds_read_b32 v42, v23 offset:128")
        else:
            for x in range(2):
                for j in range(4):
                    a(f"ds_read_b128 {vr(144+16*x+4*j,4)}, v25 offset:{128*x+32*j}")
        a("s_waitcnt lgkmcnt(0)")
        for x, w in ((0, 0), (1, 0), (0, 1), (1, 1)):
            d = vr(ACC + 32 * x + 16 * w, 16)
            xa, wa = vr(176 + 2 * x, 2), vr(180 + 2 * w, 2)
            if T: a(f"v_mfma_f32_32x32x8_bf16 {d}, {wa}, {xa}, {d}")
            else: a(f"v_mfma_f32_32x32x8_bf16 {d}, {xa}, {wa}, {d}")

    a("s_mul_i32 s36, s29, 10240")
    a("s_cmp_ge_u32 s30, 10")
    a("s_cbranch_scc1 Lc1v")
    kappa(a, 4, 5)
    a(f"v_lshlrev_b32 v4, 4, v4")
    a(f"v_lshl_add_u32 v{AD}, v3, 9, v4")
    a(f"v_mul_u32_u24 v5, {UNIT}, v3")
    a(f"v_add_u32 v{AD+1}, v5, v4")
    a("s_lshl_b32 s37, s30, 4")
    a("s_lshl_b32 s33, s35, 3")
    a("s_add_u32 s37, s37, s33")
    a("s_mov_b32 s59, 0")
    for q in range(8):
        a(f"s_add_u32 s33, s37, {q}")
        a("s_mul_i32 s38, s33, 52429")
        a("s_lshr_b32 s38, s38, 18")
        a("s_mul_i32 s39, s38, 5")
        a("s_sub_u32 s39, s33, s39")
        a(f"s_mul_i32 s38, s38, {2*UNIT}")
        a("s_add_u32 s38, s38, s36")
        a("s_lshl_b32 s33, s39, 11")
        a("s_add_u32 s38, s38, s33")
        a("s_cmp_gt_u32 s39, 2")
        a(f"s_cselect_b32 s33, {UNIT - 3*2048}, 0")
        a("s_add_u32 s38, s38, s33")
        a("s_cmp_eq_u32 s39, 2")
        a("s_cselect_b32 s33, 9, 10")
        a(f"s_cselect_b32 s39, {1 << q}, 0")
        a("s_lshl_b32 s33, s34, s33")
        a(f"s_add_u32 s{40+q}, s38, s33")
        a("s_or_b32 s59, s59, s39")
    c = (20 ** -0.5) * math.log2(math.e)
    a("s_cmp_lt_u32 s30, 5")
    a(f"s_cselect_b32 s37, {f32(c)}, 1.0")
    mainloop(True)
    a("v_mul_f32 v40, s37, v40")
    a("v_mul_f32 v42, s37, v42")
    a("s_nop 7")
    for q in range(8):
        w, j = q >> 2, q & 3
        t = 44 + 4 * (q & 3)
        for x in range(2):
            b = ACC + 32 * x + 16 * w + 4 * j
            for i in (0, 2):
                a(f"v_pk_mul_f32 {vr(b+i,2)}, {vr(b+i,2)}, {vr(40+2*x,2)} op_sel_hi:[1,0]")
            a(f"v_cvt_pk_bf16_f32 v{t+2*x}, v{b}, v{b+1}")
            a(f"v_cvt_pk_bf16_f32 v{t+2*x+1}, v{b+2}, v{b+3}")
        L1, L2 = uid("s"), uid("s")
        a(f"s_bitcmp1_b32 s59, {q}")
        a(f"s_cbranch_scc1 {L1}")
        a(f"v_permlane32_swap_b32 v{t}, v{t+2}")
        a(f"v_permlane32_swap_b32 v{t+1}, v{t+3}")
        a(f"buffer_store_dwordx4 {vr(t,4)}, v{AD}, s[20:23], s{40+q} offen sc1")
        a(f"s_branch {L2}")
        a.label(L1)
        a(f"buffer_store_dwordx4 {vr(t,4)}, v{AD+1}, s[20:23], s{40+q} offen sc1")
        a.label(L2)
    a("s_branch Lc1e")
    a.label("Lc1v")
    a("s_sub_u32 s33, s30, 10")
    a("s_lshl_b32 s33, s33, 7")
    a("s_lshl_b32 s37, s35, 6")
    a("s_add_u32 s33, s33, s37")
    a("v_mul_u32_u24 v5, 320, v3")
    a("s_mul_i32 s37, s34, 2560")
    a(f"s_add_u32 s37, s37, {32*UNIT+5120}")
    a("v_add_u32 v5, s37, v5")
    for w in range(2):
        a(f"v_add_u32 v7, s33, v2")
        if w: a("v_add_u32 v7, 32, v7")
        a("v_mul_u32_u24 v9, 52429, v7")
        a("v_lshrrev_b32 v9, 20, v9")
        a("v_mul_u32_u24 v8, 20, v9")
        a("v_sub_u32 v8, v7, v8")
        a(f"v_mul_u32_u24 v9, {UNIT}, v9")
        a("v_lshl_add_u32 v9, v8, 4, v9")
        a(f"v_add_u32 v{AD+w}, v9, v5")
    a("s_lshl_b32 s33, s34, 8")
    a(f"s_add_u32 s33, s33, {STAT+1024}")
    a("v_lshl_add_u32 v25, v3, 4, s33")
    mainloop(False)
    a("s_nop 9")
    for w in range(2):
        for x in range(2):
            b = ACC + 32 * x + 16 * w
            for g in range(2):
                for i in range(0, 8, 2):
                    a(f"v_pk_mul_f32 {vr(b+8*g+i,2)}, {vr(144+16*x+8*g+i,2)}, {vr(b+8*g+i,2)}")
                t = 44 + 4 * (g + 2 * x)
                for i in range(4):
                    a(f"v_cvt_pk_bf16_f32 v{t+i}, v{b+8*g+2*i}, v{b+8*g+2*i+1}")
                a(f"buffer_store_dwordx4 {vr(t,4)}, v{AD+w}, s[20:23], s36 offen offset:{1280*x+640*g} sc1")
    a.label("Lc1e")
    stamp(a, 3)
    a("s_waitcnt vmcnt(0)")
    stamp(a, 24)

def ids(a):
    a("s_and_b32 s33, s32, 3")
    a("s_lshl_b32 s29, s31, 2")
    a("s_add_u32 s29, s29, s33")
    a("s_lshr_b32 s30, s32, 2")
    a("s_and_b32 s33, s32, 1")
    a("s_lshl_b32 s62, s31, 1")
    a("s_add_u32 s62, s62, s33")
    a("s_lshr_b32 s63, s32, 1")

def w1_dma(a, r0, r1, lds0, thr=20):
    a(f"s_mul_i32 s36, s28, {4*3456}")
    a("s_lshl_b32 s33, s63, 8")
    a("s_add_u32 s36, s36, s33")
    a(f"s_add_u32 s36, s36, {r0*3456}")
    a("s_lshl_b32 s33, s28, 10")
    a(f"s_add_u32 m0, s33, {lds0}")
    L = uid("w")
    a(f"s_mov_b32 s37, {(r1-r0)//16}")
    a.label(L)
    a("buffer_load_dwordx4 v14, s[16:19], s36 offen lds")
    a(f"s_waitcnt vmcnt({thr})")
    a("s_add_u32 m0, m0, 4096")
    a(f"s_add_u32 s36, s36, {16*3456}")
    a("s_sub_u32 s37, s37, 1")
    a("s_cmp_lg_u32 s37, 0")
    a(f"s_cbranch_scc1 {L}")

def lin_dma(a, n, flag=" sc1"):
    L = uid("d")
    a(f"s_mov_b32 s37, {n}")
    a.label(L)
    a(f"buffer_load_dwordx4 v1, s[20:23], s39 offen{flag} lds")
    a(f"s_waitcnt vmcnt({CFG['thr']})")
    a("s_add_u32 m0, m0, 4096")
    a("s_add_u32 s39, s39, 4096")
    a("s_sub_u32 s37, s37, 1")
    a("s_cmp_lg_u32 s37, 0")
    a(f"s_cbranch_scc1 {L}")

def helper_rest(a):
    a.label("Lh2")
    a("s_setprio 3")
    ids(a)
    a("v_lshlrev_b32 v1, 4, v0")
    a("s_lshl_b32 s54, s28, 8")
    a("s_add_u32 s54, s54, s2")
    relayout_task(a)
    srd(a, 16, PW1, 640 * 3456)
    a("v_lshrrev_b32 v4, 4, v0")
    a("v_and_b32 v3, 15, v0")
    a("v_lshlrev_b32 v5, 2, v4")
    a("v_xor_b32 v3, v3, v5")
    a("v_mul_u32_u24 v14, 3456, v4")
    a("v_lshl_add_u32 v14, v3, 4, v14")
    a("s_lshl_b32 s38, s28, 10")
    a(f"s_mul_i32 s39, s29, {UNIT}")
    a(f"s_add_u32 s39, s39, {32*UNIT}")
    a("s_add_u32 s39, s39, s38")
    a("s_mov_b32 m0, s38")
    a("s_mul_i32 s33, s29, 20")
    a("s_add_u32 s34, s33, 19")
    a("s_lshr_b32 s33, s33, 7")
    a("s_lshr_b32 s34, s34, 7")
    a("s_sub_u32 s34, s34, s33")
    fpl = CFG["fpl"]; lg = fpl.bit_length() - 1; lb = 4 - lg
    a(f"v_bfe_u32 v3, v0, {lb}, 1")
    a("v_mul_u32_u24 v3, s34, v3")
    a(f"v_lshrrev_b32 v4, {lb+1}, v0")
    if fpl == 1:
        a("s_lshl_b32 s35, s28, 1")
        a("v_add_u32 v4, s35, v4")
        a("v_min_u32 v4, 2, v4")
    a("v_mul_u32_u24 v4, 5, v4")
    a("v_add3_u32 v3, v3, v4, s33")
    a(f"v_lshlrev_b32 v3, {11-lg}, v3")
    a(f"v_and_b32 v4, {(1<<lb)-1}, v0")
    a("v_lshlrev_b32 v4, 7, v4")
    a(f"v_add_u32 v15, {F1}, v4")
    a("v_add_u32 v3, v3, v15")
    stamp(a, 1)
    a("s_barrier")
    stamp(a, 2)
    a(f"s_cmp_gt_u32 s28, {1 if fpl == 1 else 0}")
    a("s_cbranch_scc1 Lh2s")
    poll(a, 3, min(64, 96 // fpl), fpl, sleep=CFG["sl1"])
    a.label("Lh2s")
    stamp(a, 3)
    a("s_barrier")
    def dma(n):
        for i in range(n):
            a(f"buffer_load_dwordx4 v1, s[20:23], s39 offen sc1 lds")
            a("s_add_u32 m0, m0, 4096")
            a("s_add_u32 s39, s39, 4096")
    dma(6)
    a("s_waitcnt vmcnt(3)")
    a("s_barrier")
    dma(10)
    a("s_waitcnt vmcnt(6)")
    a("s_barrier")
    lin_dma(a, 24)
    a("s_waitcnt vmcnt(0)")
    a("s_cmp_ge_u32 s54, 592")
    a("s_cbranch_scc1 Lh2n")
    relayout_load(a)
    stamp(a, 9)
    a("s_barrier")
    relayout_store(a)
    a("s_branch Lh2a")
    a.label("Lh2n")
    a("s_barrier")
    a.label("Lh2a")
    a("s_lshl_b32 s33, s2, 7")
    a(f"s_add_u32 s33, s33, {F2H}")
    signal(a, 33, 2)
    stamp(a, 10)
    if CFG["pf"]:
        a("s_lshl_b32 s33, s32, 2")
        a("s_add_u32 s33, s33, s28")
        a(f"s_mul_i32 s34, s33, {17*1024}")
        for i in range(17):
            a(f"buffer_load_dwordx4 v[4:7], v1, s[16:19], s34 offen")
            a("s_add_u32 s34, s34, 1024")
    def pollsp():
        a(f"v_add_u32 v3, {15*2048//fpl}, v15")
        poll(a, 3, 16 // fpl, fpl, sleep=8)
    only_h0(a, pollsp)
    a("s_waitcnt vmcnt(0)")
    stamp(a, 11)
    a("s_lshl_b32 s33, s28, 13")
    a(f"s_add_u32 s33, s33, {F2H}")
    a("v_lshl_add_u32 v3, v0, 7, s33")
    poll(a, 3, 64, 4, sleep=8)
    a("v_and_b32 v2, 15, v0")
    a("v_min_u32 v2, 13, v2")
    a("v_and_b32 v3, 16, v0")
    a("v_add_u32 v2, v2, v3")
    a("s_lshl_b32 s33, s29, 12")
    a(f"s_add_u32 s33, s33, {F4}")
    a("v_lshl_add_u32 v10, v2, 7, s33")
    a(f"v_add_u32 v11, {FR}, v10")
    a(f"v_add_u32 v12, {2*FR}, v10")
    if CFG["pt"]:
        a(f"s_mul_i32 s33, s28, {FR}")
        a("buffer_load_dword v4, v10, s[20:23], s33 offen sc1")
        a("v_bfe_u32 v3, v0, 2, 1")
        a(f"v_mul_u32_u24 v3, {FR}, v3")
        a("v_and_b32 v2, 3, v0")
        a(f"v_mul_u32_u24 v2, {CFG['ls']}, v2")
        a("v_add_u32 v2, v2, v3")
        a(f"s_mul_i32 s33, s29, {4*CFG['ls']}")
        a(f"s_add_u32 s33, s33, {F2}")
        a("buffer_load_dword v4, v2, s[20:23], s33 offen sc1")
    STH = 20
    a(f"s_mul_i32 s55, s30, {54*5120}")
    a(f"s_add_u32 s55, s55, {OFF_W2}")
    a("s_add_u32 s55, s55, s38")
    a("s_mov_b32 s39, s55")
    stamp(a, 7)
    for i in range(58):
        a(f"buffer_load_dwordx4 {vr(STH+4*i,4)}, v1, s[20:23], s39 offen sc1")
        a(f"s_add_u32 s39, s39, {4096 if i != 29 else 4096 + 40960}")
    stamp(a, 8)
    a(f"s_mul_i32 s39, s30, {20*5120}")
    a(f"s_add_u32 s39, s39, {OFF_WO}")
    a("s_add_u32 s39, s39, s38")
    a("s_mov_b32 m0, s38")
    a("s_barrier")
    lin_dma(a, 25)
    a("s_waitcnt vmcnt(0)")
    a("s_barrier")
    a("s_cmp_ge_u32 s32, 28")
    a("s_cbranch_scc1 Lh2b")
    w1_dma(a, 0, 240, 102400)
    a.label("Lh2b")
    a("s_barrier")
    a("s_waitcnt vmcnt(0)")
    stamp(a, 4)
    a("s_barrier")
    a("s_cmp_ge_u32 s32, 28")
    a("s_cbranch_scc1 Lh4")
    w1_dma(a, 240, 640, 0)
    a("s_waitcnt vmcnt(0)")
    stamp(a, 5)
    a("s_barrier")
    a.label("Lh4")
    a(f"s_add_u32 s39, s55, {6*20480}")
    a(f"s_add_u32 m0, s38, {6*20480}")
    a("v_add_u32 v8, s38, v1")
    a("v_add_u32 v9, 61440, v8")
    def put(i, slotpiece):
        a(f"ds_write_b128 v{8 + slotpiece // 15}, {vr(STH+4*i,4)} offset:{(slotpiece % 15) * 4096}")
    a("s_barrier")
    for i in range(30):
        if i % 3 == 0: dma(1)
        put(i, i)
    a("s_waitcnt lgkmcnt(0)")
    stamp(a, 6)
    a("s_or_b32 s33, s31, s32")
    a("s_or_b32 s33, s33, s28")
    a("s_cbranch_scc1 Lh5")
    srd(a, 24, PDBG, 256)
    a("v_lshlrev_b32 v2, 2, v0")
    a("v_mov_b32 v3, 0")
    a("buffer_store_dword v3, v2, s[24:27], 0 offen sc1")
    a.label("Lh5")
    a("v_mov_b32 v16, s100")
    a("v_lshlrev_b32 v17, 11, v0")
    a("s_lshl_b32 s34, s62, 6")
    a("s_add_u32 s34, s34, s63")
    a("s_lshl_b32 s34, s34, 7")
    a(f"s_add_u32 s34, s34, {F4}")
    a("s_waitcnt vmcnt(0)")
    only_h0(a, lambda: poll(a, 10, 32, sleep=CFG["sl4"]))
    stamp(a, 12)
    a("s_barrier")
    def announce(level):
        L = uid("a")
        a("s_cmp_lg_u32 s28, 1")
        a(f"s_cbranch_scc1 {L}")
        a("s_cmp_ge_u32 s32, 28")
        a(f"s_cbranch_scc1 {L}")
        a(f"s_add_u32 s33, s34, {level*FR}")
        a("s_mov_b64 exec, 15")
        a("buffer_store_dword v16, v17, s[20:23], s33 offen sc1")
        a("s_mov_b64 exec, -1")
        a.label(L)
    announce(2)
    only_h0(a, lambda: poll(a, 11, 32))
    stamp(a, 13)
    for s in range(1, 14):
        if s in (5, 8):
            def lv():
                L = uid("k")
                a("s_waitcnt vmcnt(0)")
                tagcheck(a, 13, 1)
                a(f"s_cbranch_scc0 {L}")
                poll(a, 12, 32)
                a.label(L)
                a(f"v_add_u32 v12, {FR}, v12")
            only_h0(a, lv)
        a("s_barrier")
        if s == 2: announce(3)
        if s in (2, 5): only_h0(a, lambda: a("buffer_load_dword v13, v12, s[20:23], 0 offen sc1"))
        if s >= 2:
            ks = [k for k in range(28) if 2 + k // 3 == s]
            for k in ks: put(30 + k, k)
            if s >= 7: a(f"s_waitcnt lgkmcnt({len(ks)})")
    finish(a)

def compute_rest(a):
    QA = [4, 8]; QB = 12; QBA = [12, 14]; QBB = [16, 18]
    IDX, AK, AV = 20, 21, 23
    O = [24, 40]
    S = [56, 72, 88, 104]
    KA = [120, 128]; KB = [136, 140]; V = [144, 160]
    T = 176
    a.label("Lc2")
    a("s_barrier")
    only_h0(a, lambda: ssignal(a, 58))
    ids(a)
    a("v_and_b32 v2, 31, v0")
    a("v_lshrrev_b32 v1, 5, v0")
    a("v_lshlrev_b32 v3, 4, v2")
    a(f"v_lshl_add_u32 v{AK}, v1, 11, v3")
    a(f"v_lshlrev_b32 v22, 4, v0")
    a(f"v_mul_u32_u24 v{AV}, 320, v1")
    a(f"v_add_u32 v{AV}, v3, v{AV}")
    a(f"s_mul_i32 s33, s29, {UNIT}")
    a("s_lshl_b32 s34, s30, 1")
    a("s_lshr_b32 s35, s28, 1")
    a("s_add_u32 s34, s34, s35")
    a("s_mul_i32 s34, s34, 10240")
    a("s_add_u32 s34, s34, s33")
    a("s_and_b32 s35, s28, 1")
    a("s_lshl_b32 s36, s35, 10")
    a("s_add_u32 s36, s36, s34")
    a("s_lshl_b32 s37, s35, 9")
    a("s_add_u32 s37, s37, s34")
    a("s_add_u32 s37, s37, 4096")
    a(f"v_mov_b32 v{IDX}, 0xdddddddd")
    a("s_mov_b32 s40, 0xfffff")
    a("s_mov_b32 s41, 0xfffff")
    for i in range(32): a(f"v_mov_b32 v{O[0]+i}, 0")
    for i in range(16): a(f"v_mov_b32 v{S[3]+i}, 0")
    a(f"v_and_b32 v{T}, 27, v0")
    a(f"v_cmp_eq_u32 vcc, 24, v{T}")
    a(f"v_mov_b32 v{T}, 0x3f803f80")
    a("s_mov_b32 s43, 4")
    a(f"v_cndmask_b32 v{V[0]}, v{O[0]}, v{T}, vcc")
    for i in range(1, 32): a(f"v_mov_b32 v{V[0]+i}, v{V[0]}")
    a("v_cmp_gt_u32 vcc, 32, v0")
    stamp(a, 4)
    a("s_barrier")
    stamp(a, 5)
    for q in range(2):
        a(f"buffer_load_dwordx4 {vr(QA[q],4)}, v{AK}, s[20:23], s36 offen offset:{512*q} sc1")
    a(f"buffer_load_dwordx4 {vr(QB,4)}, v3, s[20:23], s37 offen sc1")
    a("s_waitcnt vmcnt(0)")
    for i in range(4):
        a(f"v_cndmask_b32 v{QBB[0]+i}, v{QB+i}, v{O[0]}, vcc")
        a(f"v_cndmask_b32 v{QB+i}, v{O[0]}, v{QB+i}, vcc")
    def ka_off(t): return (t >> 2) * 10240 + (t & 3) * 512
    def kb_off(b): return b * 10240 + 4096
    def v_off(t, g): return (t >> 2) * 10240 + 5120 + (2 * (t & 3) + g) * 640
    def batch(p):
        r = [f"ds_read_b128 {vr(KA[p&1],4)}, v{AK} offset:{ka_off(2*p)}"]
        if p % 2 == 0:
            r.append(f"ds_read_b128 {vr(KB[(p>>1)&1],4)}, v22 offset:{kb_off(p>>1)}")
        r.append(f"ds_read_b128 {vr(KA[p&1]+4,4)}, v{AK} offset:{ka_off(2*p+1)}")
        r.append("s_mov_b64 exec, s[40:41]")
        for j in range(4):
            r.append(f"ds_read_b128 {vr(V[p&1]+4*j,4)}, v{AV} offset:{v_off(2*p+(j>>1), j&1)}")
        r.append("s_mov_b64 exec, -1")
        return r
    def sync(it):
        L = uid("n")
        a(f"s_cmp_lg_u32 s43, {it}")
        a(f"s_cbranch_scc1 {L}")
        a("s_barrier")
        a.label(L)
    def qk16(u):
        t, q = u >> 1, u & 1
        return f"v_mfma_f32_32x32x16_bf16 {vr(S[u&3],16)}, {vr(KA[(t>>1)&1]+4*(t&1),4)}, {vr(QA[q],4)}, 0"
    def qk8(u):
        t, q = u >> 1, u & 1
        return f"v_mfma_f32_32x32x8_bf16 {vr(S[u&3],16)}, {vr(KB[(t>>2)&1]+2*(t&1),2)}, {vr((QBB if t&2 else QBA)[q],2)}, {vr(S[u&3],16)}"
    def pv(u, g):
        t, q = u >> 1, u & 1
        return f"v_smfmac_f32_32x32x32_bf16 {vr(O[q],16)}, {vr(V[(t>>1)&1]+8*(t&1)+4*g,4)}, {vr(S[u&3]+8*g,8)}, v{IDX}"
    a("s_barrier")
    stamp(a, 6)
    for r in batch(0): a(r)
    a("s_waitcnt lgkmcnt(4)")
    a(qk16(0)); a(qk8(0))
    a("s_waitcnt lgkmcnt(0)")
    a("s_nop 9")
    a(".p2align 6")
    a.label("Lattn")
    for u in range(32):
        s = S[u & 3]
        if u == 1: sync(1)
        if u == 5: sync(4)
        if u == 29: sync(4)
        if u % 4 == 3: a("s_waitcnt lgkmcnt(0)")
        a(qk16(u + 1))
        if u % 4 == 1:
            for r in batch((u + 3) // 4): a(r)
        for i in range(0, 4): a(f"v_exp_f32 v{s+i}, v{s+i}")
        a(qk8(u + 1))
        for i in range(4, 8): a(f"v_exp_f32 v{s+i}, v{s+i}")
        a(pv(u - 1, 0))
        for i in range(8, 12): a(f"v_exp_f32 v{s+i}, v{s+i}")
        a(pv(u - 1, 1))
        if u == 31:
            a(f"v_add_u32 v{AK}, 40960, v{AK}")
            a(f"v_add_u32 v22, 40960, v22")
            a(f"v_add_u32 v{AV}, 40960, v{AV}")
            a("s_sub_u32 s43, s43, 1")
            a("s_cmp_lg_u32 s43, 0")
        for i in range(12, 16): a(f"v_exp_f32 v{s+i}, v{s+i}")
    a("s_cbranch_scc1 Lattn")
    a("s_nop 0")
    a(pv(31, 0)); a(pv(31, 1))
    stamp(a, 7)
    a("s_mov_b64 s[46:47], -1")
    kappa(a, T, T + 1)
    a(f"v_lshrrev_b32 v{T+1}, 4, v{T}")
    a(f"v_mul_u32_u24 v{T+1}, 20480, v{T+1}")
    a(f"v_and_b32 v{T}, 15, v{T}")
    a(f"v_lshl_add_u32 v{T}, v{T}, 4, v{T+1}")
    a(f"v_lshl_add_u32 v{T+1}, v1, 8, v{T}")
    a("s_lshl_b32 s33, s30, 4")
    a("s_lshl_b32 s34, s28, 2")
    a("s_add_u32 s33, s33, s34")
    a("s_mul_i32 s33, s33, 20480")
    a(f"s_add_u32 s33, s33, {OFF_O}")
    a("s_lshl_b32 s34, s29, 9")
    a("s_add_u32 s34, s34, s33")
    a("s_lshr_b32 s35, s29, 2")
    a("s_lshl_b32 s35, s35, 9")
    a("s_and_b32 s36, s29, 1")
    a("s_lshl_b32 s36, s36, 8")
    a("s_add_u32 s35, s35, s36")
    a("s_and_b32 s36, s29, 2")
    a("s_lshl_b32 s36, s36, 2")
    a("s_add_u32 s35, s35, s36")
    a("s_add_u32 s35, s35, s33")
    a("s_add_u32 s35, s35, 16384")
    a("s_add_u32 s38, s34, 40960")
    a("s_add_u32 s39, s35, 40960")
    a(f"s_mov_b32 s36, {f32(2.0**-64)}")
    a(f"s_mov_b32 s37, {f32(2.0**100)}")
    a.label("Lchk")
    for q in range(2):
        a(f"v_rcp_f32 v{T+2+2*q}, v{O[q]+12}")
        a(f"v_pk_add_f32 {vr(T+6,2)}, {vr(O[q],2)}, {vr(O[q]+2,2)}")
        for i in range(4, 12, 2):
            a(f"v_pk_add_f32 {vr(T+6,2)}, {vr(T+6,2)}, {vr(O[q]+i,2)}")
        a(f"v_add_f32 v{T+6}, v{T+6}, v{T+7}")
        a(f"v_fma_f32 v{T+6}, v{T+6}, 0, v{O[q]+12}")
        a(f"v_cmp_nle_f32 s[{50+4*q}:{51+4*q}], s36, v{T+6}")
        a(f"v_cmp_nge_f32 s[{52+4*q}:{53+4*q}], s37, v{T+6}")
    a("s_or_b64 s[50:51], s[50:51], s[52:53]")
    a("s_or_b64 s[54:55], s[54:55], s[56:57]")
    a("s_or_b64 s[50:51], s[50:51], s[54:55]")
    a("s_and_b64 s[50:51], s[50:51], s[46:47]")
    a("s_cbranch_scc1 Lfallback")
    for q in range(2):
        for i in range(0, 12, 2):
            a(f"v_pk_mul_f32 {vr(O[q]+i,2)}, {vr(O[q]+i,2)}, {vr(T+2+2*q,2)} op_sel_hi:[1,0]")
        for i in range(6):
            a(f"v_cvt_pk_bf16_f32 v{S[1]+8*q+i}, v{O[q]+2*i}, v{O[q]+2*i+1}")
        a(f"buffer_store_dwordx4 {vr(S[1]+8*q,4)}, v{T+1}, s[20:23], s{34+4*q} offen sc1")
    a("s_mov_b32 exec_hi, 0")
    for q in range(2):
        a(f"buffer_store_dwordx2 {vr(S[1]+8*q+4,2)}, v{T}, s[20:23], s{35+4*q} offen sc1")
    a("s_mov_b64 exec, -1")
    a("s_barrier")
    a("s_lshl_b32 s33, s30, 2")
    a("s_add_u32 s33, s33, s28")
    a("s_lshl_b32 s33, s33, 2")
    a("s_lshr_b32 s34, s29, 3")
    a("s_add_u32 s33, s33, s34")
    a(f"s_mul_i32 s33, s33, {CFG['ls']//4}")
    a("s_and_b32 s34, s29, 7")
    a("s_add_u32 s33, s33, s34")
    a("s_lshl_b32 s33, s33, 2")
    a(f"s_add_u32 s33, s33, {F2}")
    ssignal(a, 33, 20)
    stamp(a, 8)

    RES = 232
    ACC, AR, WF, RS = 12, 32, 112, 192
    a("v_lshlrev_b32 v1, 4, v0")
    a("v_and_b32 v4, 15, v0")
    a("v_lshrrev_b32 v5, 4, v0")
    a("v_mul_u32_u24 v252, 1280, v4")
    a("v_lshl_add_u32 v253, v5, 3, v252")
    a("v_lshl_add_u32 v252, v5, 5, v252")
    a("v_lshlrev_b32 v6, 5, v5")
    a("v_lshlrev_b32 v7, 3, v5")
    a("s_lshl_b32 s33, s29, 2")
    a("s_add_u32 s33, s33, s28")
    a("s_mul_i32 s59, s33, 20480")
    a(f"s_add_u32 s34, s59, {OFF_O}")
    a("s_mul_i32 s38, s30, 160")
    a("s_add_u32 s59, s59, s38")
    srd(a, 12, PX, 2048 * 1280)
    srd(a, 16, PB2, 1280)
    a(f"buffer_load_dwordx4 {vr(RS,4)}, v252, s[12:15], s59 offen")
    a(f"buffer_load_dwordx4 {vr(RS+4,4)}, v252, s[12:15], s59 offen offset:16")
    a(f"buffer_load_dwordx2 {vr(RS+8,2)}, v253, s[12:15], s59 offen offset:128")
    a(f"buffer_load_dwordx4 {vr(RS+12,4)}, v6, s[16:19], s38 offen")
    a(f"buffer_load_dwordx4 {vr(RS+16,4)}, v6, s[16:19], s38 offen offset:16")
    a(f"buffer_load_dwordx2 {vr(RS+20,2)}, v7, s[16:19], s38 offen offset:128")
    a("v_add_u32 v6, 61440, v1")
    a("v_lshlrev_b32 v8, 4, v4")
    a("v_lshl_add_u32 v9, v5, 10, v8")
    a("v_lshrrev_b32 v10, 1, v5")
    a("v_lshl_add_u32 v8, v10, 9, v8")
    a("v_and_b32 v10, 1, v5")
    a("v_lshl_add_u32 v8, v10, 3, v8")
    a("s_lshr_b32 s35, s33, 1")
    a("s_mul_i32 s35, s35, 40960")
    a("s_and_b32 s36, s33, 1")
    a("s_lshl_b32 s36, s36, 8")
    a("s_add_u32 s35, s35, s36")
    a("s_mul_i32 s36, s30, 5120")
    a("s_add_u32 s35, s35, s36")
    a(f"s_add_u32 s35, s35, {OFF_H}")
    a("s_add_u32 s36, s35, 4096")
    a("v_lshlrev_b32 v10, 6, v4")
    a("s_lshl_b32 s37, s33, 10")
    a("s_lshl_b32 s39, s30, 3")
    a("s_add_u32 s37, s37, s39")
    a(f"s_add_u32 s37, s37, {OFF_ST}")
    a("v_mov_b32 v11, 0x3f803f80")
    def wreads(t, R, ads):
        s, st = t >> 2, t & 3
        sl = s % R
        F = WF + 20 * (t & 3)
        return [f"ds_read_b128 {vr(F+4*tt,4)}, v{ads[sl//3]} offset:{(sl%3)*20480+st*5120+1024*tt}" for tt in range(5)]
    for t in range(2):
        for r in wreads(t, 5, (1, 6)): a(r)
    a("s_waitcnt vmcnt(0)")
    for i in range(10):
        a(f"v_lshlrev_b32 v{ACC+2*i}, 16, v{RS+i}")
        a(f"v_and_b32 v{ACC+2*i+1}, 0xffff0000, v{RS+i}")
        a(f"v_lshlrev_b32 v{RES+2*i}, 16, v{RS+12+i}")
        a(f"v_and_b32 v{RES+2*i+1}, 0xffff0000, v{RS+12+i}")
    a(f"s_mul_i32 s33, s29, {4*CFG['ls']}")
    a(f"s_add_u32 s33, s33, {F2}")
    only_h0(a, lambda: spoll(a, 33, [8, 8, 8, 8]))
    a("s_barrier")
    stamp(a, 9)
    def aload(i):
        r = [f"buffer_load_dwordx4 {vr(AR+4*i,4)}, v1, s[20:23], s34 offen offset:{1024*(i&3)} sc1"]
        if i & 3 == 3: r.append("s_add_u32 s34, s34, 4096")
        return r
    N0 = 11
    for i in range(N0):
        for x in aload(i): a(x)
    for t in range(20):
        F = WF + 20 * (t & 3)
        a(f"s_waitcnt vmcnt({min(N0 - 1, 19 - t)}) lgkmcnt({5 if t < 19 else 0})")
        rd = wreads(t + 2, 5, (1, 6)) if t < 18 else []
        for tt in range(5):
            d = vr(ACC + 4 * tt, 4)
            a(f"v_mfma_f32_16x16x32_bf16 {d}, {vr(F+4*tt,4)}, {vr(AR+4*t,4)}, {d}")
            if rd: a(rd[tt])
            if tt == 0 and t + N0 < 20:
                for x in aload(t + N0): a(x)
    stamp(a, 10)
    a("v_mov_b32 v2, 0")
    a("v_mov_b32 v3, 0")
    a("s_nop 2")
    for i in range(10):
        a(f"v_cvt_pk_bf16_f32 v{RS+i}, v{ACC+2*i}, v{ACC+2*i+1}")
        if i == 3: a(f"buffer_store_dwordx4 {vr(RS,4)}, v9, s[20:23], s35 offen sc1")
        if i == 7: a(f"buffer_store_dwordx4 {vr(RS+4,4)}, v9, s[20:23], s35 offen offset:512 sc1")
    a(f"buffer_store_dwordx2 {vr(RS+8,2)}, v8, s[20:23], s36 offen sc1")
    for i in range(10):
        a(f"v_dot2_f32_bf16 v2, v{RS+i}, v11, v2")
        a(f"v_dot2_f32_bf16 v3, v{RS+i}, v{RS+i}, v3")
    a("s_nop 2")
    for sw in ("v_permlane32_swap_b32", "v_permlane16_swap_b32"):
        a("v_mov_b32 v4, v2")
        a("v_mov_b32 v5, v3")
        a("s_nop 1")
        a(f"{sw} v2, v4")
        a(f"{sw} v3, v5")
        a("v_add_f32 v2, v2, v4")
        a("v_add_f32 v3, v3, v5")
    a("s_mov_b64 exec, 0xffff")
    a("buffer_store_dwordx2 v[2:3], v10, s[20:23], s37 offen sc1")
    a("s_mov_b64 exec, -1")
    a("s_barrier")
    for i in range(10):
        a(f"v_lshlrev_b32 v4, 16, v{RS+i}")
        a(f"v_and_b32 v5, 0xffff0000, v{RS+i}")
        a(f"v_pk_add_f32 {vr(RES+2*i,2)}, {vr(RES+2*i,2)}, v[4:5]")
    a("s_lshl_b32 s33, s29, 2")
    a("s_add_u32 s33, s33, s28")
    a(f"s_mul_i32 s33, s33, {CFG['ls']//4}")
    a("s_add_u32 s33, s33, s30")
    a("s_lshl_b32 s33, s33, 2")
    a(f"s_add_u32 s33, s33, {F3}")
    ssignal(a, 33, 21)
    stamp(a, 11)
    a("v_mov_b32 v30, s100")
    a("v_mov_b32 v31, 0")
    a("s_cmp_ge_u32 s32, 28")
    a("s_cbranch_scc1 Lc4skip")

    ACC, AR, NA, WF, CO, SP = 32, 96, 12, 144, 176, 184
    a("v_and_b32 v2, 31, v0")
    a("v_lshrrev_b32 v3, 5, v0")
    a("v_bfe_u32 v4, v0, 2, 2")
    a("v_lshl_add_u32 v5, v3, 3, v4")
    a("v_lshlrev_b32 v5, 8, v5")
    a("v_bfe_u32 v6, v0, 4, 1")
    a("v_lshl_add_u32 v5, v6, 5, v5")
    a("v_and_b32 v6, 3, v0")
    a("v_lshl_add_u32 v5, v6, 3, v5")
    a("v_lshl_add_u32 v16, v4, 6, v5")
    for b in range(1, 4): a(f"v_xor_b32 v{16+b}, {64*b}, v16")
    for b in range(4):
        a(f"v_add_u32 v{12+b}, 102400, v{16+b}")
        a(f"v_add_u32 v{20+b}, 61440, v{16+b}")
    a("v_lshlrev_b32 v6, 3, v2")
    a("s_lshl_b32 s33, s63, 10")
    a(f"s_add_u32 s33, s33, {OFF_CO}")
    for b in range(4):
        a(f"buffer_load_dwordx2 {vr(CO+2*b,2)}, v6, s[20:23], s33 offen offset:{256*b} sc1")
    a("s_lshl_b32 s33, s62, 2")
    a("s_add_u32 s33, s33, s28")
    a("s_mul_i32 s34, s33, 40960")
    a(f"s_add_u32 s34, s34, {OFF_H}")
    a("s_lshl_b32 s35, s33, 11")
    a(f"s_add_u32 s35, s35, {OFF_ST}")
    a("v_lshlrev_b32 v7, 6, v2")
    a("v_lshl_add_u32 v7, v3, 5, v7")
    a("v_bfe_u32 v4, v0, 4, 1")
    a(f"v_mul_u32_u24 v4, {54*1024}, v4")
    a("v_lshl_add_u32 v4, v3, 8, v4")
    a("v_and_b32 v5, 15, v0")
    a("v_lshl_add_u32 v8, v5, 4, v4")
    a(f"s_mul_i32 s36, s33, {2*54*1024}")
    a("s_lshl_b32 s37, s63, 10")
    a("s_add_u32 s36, s36, s37")
    a(f"s_add_u32 s36, s36, {OFF_G}")
    a("s_lshl_b32 s58, s33, 4")
    a("s_add_u32 s58, s58, s63")
    a("s_lshl_b32 s58, s58, 7")
    a(f"s_add_u32 s58, s58, {F4}")
    a(f"s_add_u32 s57, s58, {FR}")

    k0 = -2 * math.sqrt(2 / math.pi) * math.log2(math.e)
    def w1read(m):
        t, b = m >> 2, m & 3
        F = WF + 4 * (m & 7)
        ad = 12 + 4 * (t // 15) + b
        o = (t % 15) * 4096
        return [f"ds_read_b64_tr_b16 {vr(F,2)}, v{ad} offset:{o}", f"ds_read_b64_tr_b16 {vr(F+2,2)}, v{ad} offset:{o+1024}"]
    PD = 6
    for m in range(PD):
        for r in w1read(m): a(r)
    a(f"s_mul_i32 s37, s33, {2*CFG['ls']}")
    a(f"s_add_u32 s37, s37, {F3}")
    spoll(a, 37, [8, 8])
    a(f"s_mov_b32 s44, {f32(k0)}")
    a(f"s_mov_b32 s45, {f32(k0 * 0.044715)}")
    stamp(a, 12)
    def aload4(i):
        r = [f"buffer_load_dwordx4 {vr(AR+4*(i%NA),4)}, v1, s[20:23], s34 offen offset:{1024*(i&3)} sc1"]
        if i & 3 == 3: r.append("s_add_u32 s34, s34, 4096")
        return r
    N0 = NA - 1
    for i in range(N0):
        for x in aload4(i): a(x)
    extra = [f"buffer_load_dwordx4 {vr(SP,4)}, v7, s[20:23], s35 offen sc1", f"buffer_load_dwordx4 {vr(SP+4,4)}, v7, s[20:23], s35 offen offset:16 sc1"]
    fin = Asm()
    fin(f"v_pk_add_f32 {vr(SP,2)}, {vr(SP,2)}, {vr(SP+2,2)}")
    fin(f"v_pk_add_f32 {vr(SP+4,2)}, {vr(SP+4,2)}, {vr(SP+6,2)}")
    fin(f"v_pk_add_f32 {vr(SP,2)}, {vr(SP,2)}, {vr(SP+4,2)}")
    fin(f"v_mov_b32 v{SP+2}, v{SP}")
    fin(f"v_mov_b32 v{SP+3}, v{SP+1}")
    fin(f"v_permlane32_swap_b32 v{SP}, v{SP+2}")
    fin(f"v_permlane32_swap_b32 v{SP+1}, v{SP+3}")
    fin(f"v_pk_add_f32 {vr(SP,2)}, {vr(SP,2)}, {vr(SP+2,2)}")
    ln_final(fin, SP, SP + 1, SP + 2, SP + 4)
    fin(f"v_add_f32 v{SP+8}, v{SP+1}, v{SP+1}")
    fin(f"v_mul_f32 v{SP+6}, s44, v{SP+4}")
    fin(f"v_mul_f32 v{SP+7}, v{SP+4}, v{SP+4}")
    fin(f"v_mul_f32 v{SP+7}, v{SP+7}, v{SP+4}")
    fin(f"v_mul_f32 v{SP+7}, s45, v{SP+7}")
    fin = list(fin.lines)
    vq = list(range(N0))
    for m in range(160):
        t, b = m >> 2, m & 3
        if m + PD == 60: a("s_barrier")
        w = f"lgkmcnt({2 * min(PD - 1, 159 - m)})"
        if b == 0:
            w = f"vmcnt({len(vq) - 1 - vq.index(t)}) " + w
        a(f"s_waitcnt {w}")
        if m == 159: a("s_barrier")
        d = vr(ACC + 16 * b, 16)
        a(f"v_mfma_f32_32x32x16_bf16 {d}, {vr(WF+4*(m&7),4)}, {vr(AR+4*(t%NA),4)}, {'0' if t == 0 else d}")
        if m + PD < 160:
            for r in w1read(m + PD): a(r)
        if b == 1 and t + N0 < 40:
            for x in aload4(t + N0): a(x)
            vq.append(t + N0)
        if b == 3 and t in (4, 5):
            a(extra.pop(0)); vq.append(-1)
        if t >= 20 and b in (0, 2, 3) and fin:
            a(fin.pop(0))
    assert not fin
    for b in range(4):
        d = vr(ACC + 16 * b, 16)
        a(f"v_mfma_f32_32x32x8_bf16 {d}, {vr(CO+2*b,2)}, {vr(SP+2,2)}, {d}")
    stamp(a, 13)
    a("s_nop 8")
    pr = lambda q: vr(q, 2)
    for b in range(4):
        if b == 2:
            a("s_cmp_eq_u32 s63, 13")
            a("s_cbranch_scc1 Lc4e")
        for g in range(2):
            r = ACC + 16 * b + 8 * g
            T0 = 96 + 8 * g
            for i in range(0, 8, 2): a(f"v_pk_mul_f32 {pr(T0+i)}, {pr(r+i)}, {pr(r+i)}")
            for i in range(0, 8, 2): a(f"v_pk_fma_f32 {pr(T0+i)}, {pr(T0+i)}, {pr(SP+6)}, {pr(SP+6)} op_sel:[0,1,0] op_sel_hi:[1,1,0]")
            for i in range(0, 8, 2): a(f"v_pk_mul_f32 {pr(T0+i)}, {pr(T0+i)}, {pr(r+i)}")
            for i in range(8): a(f"v_exp_f32 v{T0+i}, v{T0+i}")
            for i in range(0, 8, 2): a(f"v_pk_fma_f32 {pr(T0+i)}, {pr(T0+i)}, {pr(SP+8)}, {pr(SP+8)} op_sel_hi:[1,0,0]")
            for i in range(8): a(f"v_rcp_f32 v{T0+i}, v{T0+i}")
            for i in range(0, 8, 2): a(f"v_pk_mul_f32 {pr(r+i)}, {pr(r+i)}, {pr(T0+i)}")
            t = 112 + 4 * (g + 2 * (b & 1))
            for i in range(4):
                a(f"v_cvt_pk_bf16_f32 v{t+i}, v{r+2*i}, v{r+2*i+1}")
            a(f"buffer_store_dwordx4 {vr(t,4)}, v8, s[20:23], s36 offen offset:{512*g} sc1")
            if (b, g) == (2, 0): vsignal(a, 58, 3)
            if (b, g) == (3, 0): vsignal(a, 57, 4)
        if b < 3: a(f"s_add_u32 s36, s36, {(POS[b+1]-POS[b])*1024}")
    stamp(a, 14)
    a("s_waitcnt vmcnt(3)")
    a("s_branch Lc5")
    a.label("Lc4e")
    vsignal(a, 58, 0)
    vsignal(a, 57, 1)
    a("s_branch Lc5")
    a.label("Lc4skip")
    a("s_barrier")
    a.label("Lc5")
    stamp(a, 15)

    AR, NA, WF, OTH = 32, 8, 112, 172
    a("s_and_b32 s36, s28, 1")
    a("s_mul_i32 s37, s36, 5120")
    a("v_add_u32 v5, s37, v1")
    a("v_add_u32 v6, 61440, v5")
    a("v_add_u32 v7, 122880, v5")
    a("s_lshl_b32 s33, s29, 2")
    a("s_add_u32 s33, s33, s28")
    a(f"s_mul_i32 s34, s33, {54*1024}")
    a("s_xor_b32 s33, s33, 1")
    a(f"s_mul_i32 s35, s33, {54*1024}")
    a("s_lshl_b32 s36, s36, 10")
    a(f"s_add_u32 s36, s36, {OFF_G}")
    a("s_add_u32 s34, s34, s36")
    a("s_add_u32 s35, s35, s36")
    a("s_mul_i32 s36, s28, 5120")
    a(f"s_add_u32 s36, s36, {6*20480}")
    a("v_add_u32 v8, s36, v1")
    a("s_xor_b32 s36, s28, 1")
    a("s_mul_i32 s36, s36, 5120")
    a(f"s_add_u32 s36, s36, {6*20480}")
    a("v_add_u32 v9, s36, v1")
    srd(a, 16, POUT, 2048 * 1280)
    def gload(i):
        r = [f"buffer_load_dwordx4 {vr(AR+8*(i%NA)+4*h,4)}, v1, s[20:23], s{34+h} offen offset:{2048*(i&1)} sc1" for h in range(2)]
        if i & 1: r += ["s_add_u32 s34, s34, 4096", "s_add_u32 s35, s35, 4096"]
        return r
    def w2reads(i):
        sl = (i >> 1) % 8
        F = WF + 20 * (i % 3)
        return [f"ds_read_b128 {vr(F+4*tt,4)}, v{5+sl//3} offset:{(sl%3)*20480+(i&1)*10240+1024*tt}" for tt in range(5)]
    a("s_barrier")
    stamp(a, 16)
    N0 = CFG["n5"]
    for i in range(N0):
        for x in gload(i): a(x)
    for r in w2reads(0) + w2reads(1): a(r)
    for i in range(27):
        F = WF + 20 * (i % 3)
        if i == 14: stamp(a, 26)
        if i + 2 < 27 and (i & 1) == 0: a("s_barrier")
        if i in (4, 14, 20): stamp(a, {4: 25, 14: 27, 20: 28}[i])
        a(f"s_waitcnt vmcnt({2*min(N0 - 1, 26 - i)}) lgkmcnt({5 if i < 26 else 0})")
        rd = w2reads(i + 2) if i < 25 else []
        gl = gload(i + N0) if i + N0 < 27 else []
        for h in (1, 0):
            for tt in range(5):
                d = vr((RES if h == 0 else OTH) + 4 * tt, 4)
                c = "0" if (h == 1 and i == 0) else d
                a(f"v_mfma_f32_16x16x32_bf16 {d}, {vr(F+4*tt,4)}, {vr(AR+8*(i%NA)+4*h,4)}, {c}")
                if h == 1 and rd: a(rd[tt])
                if h == 0 and gl and tt in (0, 2):
                    for x in (gl[:1] if tt == 0 else gl[1:]): a(x)
    stamp(a, 17)
    a("s_nop 2")
    for tt in range(5): a(f"ds_write_b128 v8, {vr(OTH+4*tt,4)} offset:{1024*tt}")
    a("s_waitcnt lgkmcnt(0)")
    a("s_barrier")
    for tt in range(5): a(f"ds_read_b128 {vr(OTH+4*tt,4)}, v9 offset:{1024*tt}")
    for tt in range(5):
        a(f"s_waitcnt lgkmcnt({4-tt})")
        for j in (0, 2): a(f"v_pk_add_f32 {vr(RES+4*tt+j,2)}, {vr(RES+4*tt+j,2)}, {vr(OTH+4*tt+j,2)}")
    for i in range(10):
        a(f"v_cvt_pk_bf16_f32 v{RS+i}, v{RES+2*i}, v{RES+2*i+1}")
        if i == 3: a(f"buffer_store_dwordx4 {vr(RS,4)}, v252, s[16:19], s59 offen")
        if i == 7: a(f"buffer_store_dwordx4 {vr(RS+4,4)}, v252, s[16:19], s59 offen offset:16")
    a(f"buffer_store_dwordx2 {vr(RS+8,2)}, v253, s[16:19], s59 offen offset:128")
    finish(a)

    a.label("Lfallback")
    C = 192
    a("s_mov_b64 s[46:47], 0")
    a(f"v_subrev_u32 v{AK}, {4*40960}, v{AK}")
    a(f"v_subrev_u32 v22, {4*40960}, v22")
    a(f"v_subrev_u32 v{AV}, {4*40960}, v{AV}")
    a(f"v_add_u32 v{T+8}, 5120, v{AV}")
    a(f"v_add_u32 v{T+9}, {5120+2560}, v{AV}")
    a(f"v_add_u32 v22, 4096, v22")
    for ps in range(2):
        a(f"s_mul_i32 s42, s29, {UNIT}")
        a(f"s_add_u32 s42, s42, {32*UNIT}")
        a("s_mov_b32 s43, 16")
        if ps == 0:
            a(f"v_mov_b32 v{T+6}, 0xff800000")
            a(f"v_mov_b32 v{T+7}, 0xff800000")
        else:
            for i in range(32): a(f"v_mov_b32 v{O[0]+i}, 0")
        a.label(f"Lfb{ps}")
        for t in range(4):
            a(f"buffer_load_dwordx4 {vr(KA[0]+4*t,4)}, v{AK}, s[20:23], s42 offen offset:{512*t} sc1")
        a(f"buffer_load_dwordx4 {vr(KB[0],4)}, v22, s[20:23], s42 offen sc1")
        if ps:
            a("s_mov_b64 exec, s[40:41]")
            for j in range(8):
                a(f"buffer_load_dwordx4 {vr(V[0]+4*j,4)}, v{T+8+(j>>2)}, s[20:23], s42 offen offset:{640*(j&3)} sc1")
            a("s_mov_b64 exec, -1")
        a("s_waitcnt vmcnt(0)")
        for q in range(2):
            for t in range(4):
                d = vr(S[t], 16)
                a(f"v_mfma_f32_32x32x16_bf16 {d}, {vr(KA[0]+4*t,4)}, {vr(QA[q],4)}, {vr(C+16*q,16) if ps else '0'}")
                a(f"v_mfma_f32_32x32x8_bf16 {d}, {vr(KB[0]+2*(t&1),2)}, {vr((QBB if t&2 else QBA)[q],2)}, {d}")
            a("s_nop 15")
            if ps == 0:
                for i in range(32):
                    a(f"v_max3_f32 v{T+6+q}, v{T+6+q}, v{S[0]+2*i}, v{S[0]+2*i+1}")
            else:
                for i in range(64): a(f"v_exp_f32 v{S[0]+i}, v{S[0]+i}")
                a("s_nop 1")
                for j in range(8):
                    a(f"v_smfmac_f32_32x32x32_bf16 {vr(O[q],16)}, {vr(V[0]+4*j,4)}, {vr(S[0]+8*j,8)}, v{IDX}")
        a("s_add_u32 s42, s42, 10240")
        a("s_sub_u32 s43, s43, 1")
        a("s_cmp_lg_u32 s43, 0")
        a(f"s_cbranch_scc1 Lfb{ps}")
        if ps == 0:
            for q in range(2):
                a(f"v_mov_b32 v{T+2}, v{T+6+q}")
                a("s_nop 1")
                a(f"v_permlane32_swap_b32 v{T+6+q}, v{T+2}")
                a(f"v_max_f32 v{T+6+q}, v{T+6+q}, v{T+2}")
                for i in range(16):
                    a(f"v_sub_f32 v{C+16*q+i}, 0, v{T+6+q}")
    a("s_nop 15")
    a("s_branch Lchk")

def build():
    a = Asm()
    a(f".globl {KN}")
    a(".p2align 8")
    a(f".type {KN},@function")
    a.label(KN)
    a("s_cmp_ge_u32 s2, 256")
    a("s_cbranch_scc1 Lend")
    a("s_load_dwordx16 s[64:79], s[0:1], 0")
    a("s_load_dwordx4 s[80:83], s[0:1], 64")
    a("s_load_dwordx2 s[84:85], s[0:1], 80")
    a("v_lshrrev_b32 v1, 6, v0")
    a("v_and_b32 v0, 63, v0")
    a("s_getreg_b32 s60, hwreg(HW_REG_XCC_ID, 0, 4)")
    a("v_readfirstlane_b32 s3, v1")
    a(f"v_mov_b32 v201, {IDS}")
    if CFG["prof"]:
        a("v_mov_b32 v255, 0")
        stamp(a, 0)
    a("s_and_b32 s28, s3, 3")
    a("s_cmp_lg_u32 s3, 0")
    a("s_waitcnt lgkmcnt(0)")
    a("s_cbranch_scc1 Lnoask")
    ticket_ask(a)
    a.label("Lnoask")
    srd(a, 20, PWS, WS_SIZE)
    a("s_cmp_lt_u32 s3, 4")
    a("s_cbranch_scc1 Lc1")
    p1_helper(a)
    helper_rest(a)
    a.label("Lend")
    a("s_endpgm")
    p1_spare(a)
    a.label("Lc1")
    p1_compute(a)
    compute_rest(a)
    a.label("Lcode_end")
    errs = check(a.lines)
    for e in errs: print(e, file=sys.stderr)
    head = open(f"cdna_kernels/{NAME}.s.ref").read().split("; Override")[0]
    head += "; @launch grid=(256,1,1) block=(512,1,1) lds=163840\n"
    d = f""".section .rodata,"a"
.p2align 6
.amdhsa_kernel {KN}
  .amdhsa_next_free_vgpr 256
  .amdhsa_next_free_sgpr 102
  .amdhsa_accum_offset 256
  .amdhsa_group_segment_fixed_size 0
  .amdhsa_kernarg_size 88
  .amdhsa_user_sgpr_count 2
  .amdhsa_user_sgpr_kernarg_segment_ptr 1
  .amdhsa_system_sgpr_workgroup_id_x 1
.end_amdhsa_kernel
"""
    return head + '.amdgcn_target "amdgcn-amd-amdhsa--gfx950"\n.text\n' + a.text() + d, errs

if __name__ == "__main__":
    out = sys.argv[1] if len(sys.argv) > 1 else f"cdna_kernels/{NAME}.s"
    for kv in sys.argv[2:]:
        k, v = kv.split("="); CFG[k] = int(v)
    txt, errs = build()
    open(out, "w").write(txt)
    print("written", out, len(txt), "bytes; hazards:", len(errs))
```

```python
import sys, math, struct
from asmlib import Asm, vr, sr, check

NAME = "sequential_preLN__softmax_full_mha__dense_activation_gelu__prompt"
KN = NAME + "_kernel"
UNIT = 163840
OFF_O = 64 * UNIT
OFF_H = OFF_O + 2621440
OFF_G = OFF_H + 2621440
OFF_WO = OFF_G + 128 * 54 * 1024
OFF_W2 = OFF_WO + 640 * 1280
OFF_ST = OFF_W2 + 1728 * 1280
OFF_CO = OFF_ST + 2048 * 64
OFF_TS = OFF_CO + 16384
OFF_CP = OFF_TS + 32768
OFF_F = OFF_CP + 16 * 7680
F2H, F0, F1 = [OFF_F + 32768 * i for i in range(3)]
FR = 131072
F2, F3, F4 = [OFF_F + 98304 + FR * i for i in range(3)]
WS_END = F4 + 4 * FR
POS = [0, 14, 28, 41]
WS_SIZE = WS_END + 65536
OFF_PROF = 64 << 20
PX, PWQKV, PWO, PW1, PB1, PW2, PB2, POUT, PDBG, PWS = 64, 66, 68, 72, 74, 76, 78, 80, 82, 84
SPIN = 200000

CFG = dict(rot1=0, prof=0, n01=20, prio=1, pf=1, thr=8, cpf=1, ps=6, sl1=0, fpl=4, xpf=0, n5=6, ls=128, sl4=2, pt=1, cp0=2, sg=6, _hi={})

def f32(x):
    return "0x%08x" % struct.unpack("<I", struct.pack("<f", x))[0]

def srd(a, d, p, size, off=0):
    if off:
        a(f"s_add_u32 s{d}, s{p}, {off}")
        a(f"s_addc_u32 s{d+1}, s{p+1}, 0")
    else:
        a(f"s_mov_b32 s{d}, s{p}")
        a(f"s_mov_b32 s{d+1}, s{p+1}")
    a(f"s_mov_b32 s{d+2}, {size}")
    a(f"s_mov_b32 s{d+3}, 0x20000")

def stamp(a, i):
    if CFG["prof"]:
        a("s_memrealtime s[96:97]")
        a("s_memtime s[98:99]")
        a("s_waitcnt lgkmcnt(0)")
        a(f"v_writelane_b32 v255, s96, {i}")
        a(f"v_writelane_b32 v255, s98, {32+i}")

def finish(a):
    if CFG["prof"]:
        a("s_waitcnt vmcnt(0)")
        stamp(a, 31)
        a("s_mov_b64 exec, -1")
        srd(a, 92, PWS, "0x8000000")
        a("s_lshl_b32 s96, s2, 3")
        a("s_add_u32 s96, s96, s3")
        a("s_lshl_b32 s96, s96, 8")
        a(f"s_add_u32 s96, s96, {OFF_PROF}")
        a("v_lshlrev_b32 v254, 2, v0")
        a("buffer_store_dword v255, v254, s[92:95], s96 offen")
    a("s_endpgm")

def bf16_round(a, dst, src):
    a(f"v_cvt_pk_bf16_f32 v{dst}, v{src}, v{src}")
    a(f"v_lshlrev_b32 v{dst}, 16, v{dst}")

_uid = [0]
def uid(p):
    _uid[0] += 1
    return f"U{p}{_uid[0]}"

def signal(a, sflag, vt, st=None):
    a(f"v_mov_b32 v{vt}, s100")
    a(f"v_lshlrev_b32 v{vt+1}, 2, s28")
    if st is not None: stamp(a, st)
    a("s_waitcnt vmcnt(0)")
    a("s_mov_b64 exec, 1")
    a(f"buffer_store_dword v{vt}, v{vt+1}, s[20:23], s{sflag} offen sc1")
    a("s_mov_b64 exec, -1")

def ssignal(a, sflag, st=None, n=0):
    if st is not None: stamp(a, st)
    a(f"s_waitcnt vmcnt({n})")
    a(f"s_atomic_swap s100, s[{PWS}:{PWS+1}], s{sflag}")

def vsignal(a, sflag, n):
    a(f"s_waitcnt vmcnt({n})")
    a("s_mov_b64 exec, 1")
    a(f"buffer_store_dword v30, v31, s[20:23], s{sflag} offen sc1")
    a("s_mov_b64 exec, -1")

def poll(a, va, nl, width=1, vd=4, sleep=0):
    L, E = uid("p"), uid("e")
    a(f"s_mov_b32 s60, {SPIN}")
    m = (1 << nl) - 1
    if nl < 64:
        a(f"s_mov_b32 exec_lo, {hex(m & 0xffffffff)}")
        a(f"s_mov_b32 exec_hi, {hex(m >> 32)}")
    a.label(L)
    if sleep: a(f"s_sleep {sleep}")
    op = {1: "dword", 2: "dwordx2", 4: "dwordx4"}[width]
    a(f"buffer_load_{op} {vr(vd,width)}, v{va}, s[20:23], 0 offen sc1")
    a("s_sub_u32 s60, s60, 1")
    a(f"s_cbranch_scc1 {E}")
    a("s_waitcnt vmcnt(0)")
    tagcheck(a, vd, width)
    a(f"s_cbranch_scc1 {L}")
    a.label(E)
    a("s_waitcnt vmcnt(0)")
    a("s_mov_b64 exec, -1")

def tagcheck(a, vd, width):
    for i in range(width):
        a(f"v_xor_b32 v{vd+i}, s100, v{vd+i}")
    if width == 2: a(f"v_or_b32 v{vd}, v{vd}, v{vd+1}")
    if width == 4:
        a(f"v_or3_b32 v{vd}, v{vd}, v{vd+1}, v{vd+2}")
        a(f"v_or_b32 v{vd}, v{vd}, v{vd+3}")
    a(f"v_cmp_ne_u32 vcc, 0, v{vd}")
    a("s_nop 1")
    a("s_cmp_lg_u64 vcc, 0")

def spoll(a, soff, counts):
    L, E = uid("p"), uid("e")
    regs = [4, 40, 48, 88]
    a(f"s_add_u32 s86, s{PWS}, s{soff}")
    a(f"s_addc_u32 s87, s{PWS+1}, 0")
    a(f"s_mov_b32 s60, {SPIN}")
    a.label(L)
    for i in range(len(counts)):
        a(f"s_load_dwordx8 s[{regs[i]}:{regs[i]+7}], s[86:87], {CFG['ls']*i} glc")
    a("s_sub_u32 s60, s60, 1")
    a(f"s_cbranch_scc1 {E}")
    a("s_waitcnt lgkmcnt(0)")
    for i, n in enumerate(counts):
        for j in range(0, n, 2):
            a(f"s_cmp_lg_u64 s[{regs[i]+j}:{regs[i]+j+1}], s[100:101]")
            a(f"s_cbranch_scc1 {L}")
    a.label(E)
    a("s_waitcnt lgkmcnt(0)")

def tag_load(a):
    srd(a, 24, PDBG, 256)
    a("v_mov_b32 v205, 0")
    a("buffer_load_dword v204, v205, s[24:27], 0 offen sc1")

def tag_take(a):
    L, E = uid("z"), uid("z")
    a(f"s_mov_b32 s60, {SPIN}")
    a.label(L)
    a("v_readfirstlane_b32 s100, v204")
    a("s_nop 0")
    a("s_cmp_lg_u32 s100, 0")
    a(f"s_cbranch_scc1 {E}")
    a("buffer_load_dword v204, v205, s[24:27], 0 offen sc1")
    a("s_waitcnt vmcnt(0)")
    a("s_sub_u32 s60, s60, 1")
    a(f"s_cbranch_scc0 {L}")
    a.label(E)
    a("s_mov_b32 s101, s100")

def only_h0(a, body):
    L = uid("h")
    a("s_cmp_lg_u32 s28, 0")
    a(f"s_cbranch_scc1 {L}")
    body()
    a.label(L)

def relayout_task(a):
    a("s_and_b32 s34, s54, 7")
    a("s_lshr_b32 s35, s54, 3")
    a("s_and_b32 s36, s35, 3")
    a("s_mul_i32 s48, s36, 14")
    a("s_lshr_b32 s49, s35, 2")
    a("s_add_u32 s48, s48, s49")
    a("s_cmp_eq_u32 s36, 3")
    a("s_subb_u32 s48, s48, 0")
    a("s_sub_u32 s36, s35, 54")
    a("s_cselect_b32 s48, s48, s36")
    a(f"s_cselect_b32 s12, s{PW2}, s{PWO}")
    a(f"s_cselect_b32 s13, s{PW2+1}, s{PWO+1}")
    a(f"s_mov_b32 s14, {640*1280}")
    a(f"s_cselect_b32 s14, {1728*1280}, s14")
    a("s_mov_b32 s15, 0x20000")
    a("s_cselect_b32 s35, s35, s36")
    a("s_cselect_b32 s37, 54, 20")
    a(f"s_mov_b32 s56, {OFF_WO}")
    a(f"s_cselect_b32 s56, {OFF_W2}, s56")
    a("s_cselect_b32 s44, 16, 20")
    a("s_cselect_b32 s45, 32, 40")
    a("s_mul_i32 s37, s37, s34")
    a("s_add_u32 s37, s37, s48")
    a("s_mul_i32 s37, s37, 5120")
    a("s_add_u32 s56, s56, s37")
    a("s_cmp_ge_u32 s54, 560")
    a("s_cselect_b32 s44, 80, s44")
    a("s_cselect_b32 s45, 160, s45")
    a("s_cselect_b32 s46, 20, 4")
    a("s_cselect_b32 s47, 40, 8")
    a("s_cselect_b32 s36, -2544, 0")
    a("s_mul_i32 s50, s35, s45")
    a("s_add_u32 s50, s50, s36")
    a("s_add_u32 s51, s50, s47")
    a("s_mul_i32 s50, s50, 1280")
    a("s_mul_i32 s51, s51, 1280")
    a("s_mul_i32 s34, s34, 160")
    a("s_add_u32 s50, s50, s34")
    a("s_add_u32 s51, s51, s34")
    a("v_lshrrev_b32 v2, 5, v0")
    a("v_mul_u32_u24 v2, s44, v2")
    a("v_bfe_u32 v3, v0, 4, 1")
    a("v_mul_u32_u24 v3, s46, v3")
    a("v_add_u32 v2, v2, v3")
    a("v_mul_u32_u24 v2, 1280, v2")
    a("v_and_b32 v3, 15, v0")
    a("v_lshl_add_u32 v9, v3, 1, v2")
    a("v_bfe_u32 v3, v0, 2, 2")
    a("v_mul_u32_u24 v3, 24, v3")
    a("v_add_u32 v8, v9, v3")

def relayout_load(a):
    R = 32
    for tt in range(5):
        for e in range(8):
            op = "buffer_load_short_d16_hi" if e & 1 else "buffer_load_ushort"
            va, o = (8, 8 * tt) if tt < 4 else (9, 128)
            a(f"{op} v{R+8*tt+4*(e&1)+(e>>1)}, v{va}, s[12:15], s{50+(e>>2)} offen offset:{1280*(e&3)+o}")

def relayout_store(a):
    R = 32
    a("v_add_u32 v2, 4096, v1")
    a("s_mov_b32 s33, 0xffff0000")
    for tt in range(5):
        a(f"s_waitcnt vmcnt({32-7*tt})")
        for p in range(4):
            a(f"v_and_or_b32 v{R+8*tt+p}, v{R+8*tt+4+p}, s33, v{R+8*tt+p}")
        if tt < 4: a(f"buffer_store_dwordx4 {vr(R+8*tt,4)}, v1, s[20:23], s56 offen offset:{1024*tt} sc1")
        else: a(f"buffer_store_dwordx4 {vr(R+8*tt,4)}, v2, s[20:23], s56 offen sc1")

STAT = 131072
IDS = STAT + 3072

def ticket(a):
    L, E, X = uid("t"), uid("t"), uid("t")
    a("s_cmp_lg_u32 s3, 0")
    a(f"s_cbranch_scc1 {X}")
    a("s_mov_b32 s61, 7")
    a.label(L)
    a("s_waitcnt lgkmcnt(0)")
    a("s_cmp_lt_u32 s57, 32")
    a(f"s_cbranch_scc1 {E}")
    a("s_sub_u32 s61, s61, 1")
    a(f"s_cbranch_scc1 {E}")
    a("s_add_u32 s60, s60, 1")
    ticket_ask(a)
    a(f"s_branch {L}")
    a.label(E)
    a("s_and_b32 s57, s57, 31")
    a("s_lshl_b32 s57, s57, 3")
    a("s_add_u32 s57, s57, s60")
    a("v_mov_b32 v200, s57")
    a("ds_write_b32 v201, v200")
    a("s_waitcnt lgkmcnt(0)")
    a.label(X)
    a("s_barrier")
    a("ds_read_b32 v200, v201")
    a("s_waitcnt lgkmcnt(0)")
    a("v_readfirstlane_b32 s32, v200")
    a("s_nop 0")
    if CFG["prof"]:
        a("s_nop 2")
        a("v_writelane_b32 v255, s32, 62")
    a("s_and_b32 s31, s32, 7")
    a("s_lshr_b32 s32, s32, 3")
    a("s_and_b32 s33, s31, 1")
    a("s_mul_i32 s33, s33, 30")
    a("s_add_u32 s33, s33, s32")
    a("s_lshr_b32 s30, s33, 2")
    a("s_and_b32 s33, s33, 3")
    a("s_lshr_b32 s29, s31, 1")
    a("s_lshl_b32 s29, s29, 2")
    a("s_add_u32 s29, s29, s33")

def ticket_ask(a):
    a("s_and_b32 s60, s60, 7")
    a("s_lshl_b32 s57, s60, 5")
    a(f"s_add_u32 s86, s{PDBG}, s57")
    a(f"s_addc_u32 s87, s{PDBG+1}, 0")
    a("s_mov_b32 s57, 1")
    a("s_atomic_add s57, s[86:87], 16 glc")

def stats_issue(a):
    a("s_cmp_ge_u32 s3, 2")
    a("s_cbranch_scc1 Lst_w")
    srd(a, 12, PX, 2048 * 1280)
    a("v_lshrrev_b32 v228, 4, v0")
    a("v_and_b32 v229, 15, v0")
    a("v_mul_u32_u24 v230, 1280, v228")
    a("v_lshl_add_u32 v230, v229, 4, v230")
    a("s_lshl_b32 s33, s2, 1")
    a("s_add_u32 s33, s33, s3")
    a("s_mul_i32 s34, s33, 5120")
    for i in range(5):
        a(f"buffer_load_dwordx4 {vr(208+4*i,4)}, v230, s[12:15], s34 offen offset:{256*i}")
    a("s_branch Lst_i")
    a.label("Lst_w")
    srd(a, 12, PWQKV, 640 * 3840)
    a("v_lshrrev_b32 v228, 3, v0")
    a("v_and_b32 v229, 7, v0")
    a("v_mul_u32_u24 v230, 3840, v228")
    a("v_lshl_add_u32 v230, v229, 4, v230")
    a("s_and_b32 s33, s2, 7")
    a("s_lshl_b32 s33, s33, 1")
    a("s_add_u32 s33, s33, s3")
    a("s_sub_u32 s33, s33, 2")
    a(f"s_mul_i32 s34, s33, {40*3840}")
    a("s_lshr_b32 s35, s2, 3")
    a("s_min_u32 s35, s35, 29")
    a("s_lshl_b32 s36, s35, 7")
    a("s_add_u32 s34, s34, s36")
    for i in range(5):
        a(f"buffer_load_dwordx4 {vr(208+4*i,4)}, v230, s[12:15], s34 offen")
        a(f"s_add_u32 s34, s34, {8*3840}")
    a.label("Lst_i")
    a("s_mov_b32 s52, s33")
    a("s_mov_b32 s53, s35")

def stats_finish(a):
    W_, E_ = uid("w"), uid("w")
    a("s_cmp_ge_u32 s3, 2")
    a(f"s_cbranch_scc1 {W_}")
    a("v_mov_b32 v234, 0x3f803f80")
    for i in range(4): a(f"v_mov_b32 v{226+10+i}, 0")
    a("s_waitcnt vmcnt(0)")
    for i in range(20):
        a(f"v_dot2_f32_bf16 v{226+10+(i&1)}, v{208+i}, v234, v{226+10+(i&1)}")
        a(f"v_dot2_f32_bf16 v{226+12+(i&1)}, v{208+i}, v{208+i}, v{226+12+(i&1)}")
    a("s_nop 2")
    a("v_add_f32 v236, v236, v237")
    a("v_add_f32 v238, v238, v239")
    for r in (8, 4, 2, 1):
        a("s_nop 1")
        a(f"v_add_f32_dpp v236, v236, v236 row_ror:{r} row_mask:0xf bank_mask:0xf")
        a(f"v_add_f32_dpp v238, v238, v238 row_ror:{r} row_mask:0xf bank_mask:0xf")
    ln_final(a, 236, 238, 244, 246)
    a("v_and_b32 v230, 48, v0")
    a("s_lshl_b32 s54, s52, 6")
    a(f"s_add_u32 s54, s54, {OFF_TS}")
    a("s_mov_b32 exec_lo, 0x00010001")
    a("s_mov_b32 exec_hi, 0x00010001")
    a("buffer_store_dwordx4 v[244:247], v230, s[20:23], s54 offen sc1")
    a("s_mov_b64 exec, -1")
    a(f"s_branch {E_}")
    a.label(W_)
    a("v_mov_b32 v234, 0x3f80")
    a("v_mov_b32 v235, 0x3f800000")
    for i in range(8): a(f"v_mov_b32 v{226+10+i}, 0")
    a("s_waitcnt vmcnt(0)")
    for i in range(5):
        for j in range(4):
            a(f"v_dot2_f32_bf16 v{226+10+2*j}, v{208+4*i+j}, v234, v{226+10+2*j}")
            a(f"v_dot2_f32_bf16 v{226+11+2*j}, v{208+4*i+j}, v235, v{226+11+2*j}")
    a("s_nop 2")
    for j in range(4): a(f"v_permlane32_swap_b32 v{226+10+j}, v{226+14+j}")
    for j in range(4): a(f"v_add_f32 v{226+10+j}, v{226+10+j}, v{226+14+j}")
    a("s_nop 0")
    for j in range(2): a(f"v_permlane16_swap_b32 v{226+10+j}, v{226+12+j}")
    for j in range(2): a(f"v_add_f32 v{226+10+j}, v{226+10+j}, v{226+12+j}")
    a("v_and_b32 v230, 7, v0")
    a("v_lshlrev_b32 v230, 5, v230")
    for j in range(2): a(f"v_add_f32_dpp v{226+10+j}, v{226+10+j}, v{226+10+j} row_ror:8 row_mask:0xf bank_mask:0xf")
    a("v_lshrrev_b32 v231, 4, v0")
    a("v_lshl_add_u32 v230, v231, 3, v230")
    a("s_mul_i32 s54, s52, 7680")
    a("s_lshl_b32 s55, s53, 8")
    a("s_add_u32 s54, s54, s55")
    a(f"s_add_u32 s54, s54, {OFF_CP}")
    a("buffer_store_dwordx2 v[236:237], v230, s[20:23], s54 offen sc1")
    a.label(E_)
    tag_load(a)

def stats_signal(a):
    a("s_waitcnt vmcnt(0)")
    tag_take(a)
    a("s_lshl_b32 s33, s2, 7")
    a(f"s_add_u32 s33, s33, {F0}")
    signal(a, 33, 202)

def code_prefetch(a, l0, n, v):
    P = uid("c")
    a("s_getpc_b64 s[90:91]")
    a.label(P)
    a(f"s_add_u32 s90, s90, {l0}-{P}")
    a(f"s_addc_u32 s91, s91, {CFG['_hi'].get(l0, 0)}")
    a(f"v_lshlrev_b32 v{v+3}, 7, v0")
    for i in range(n):
        a(f"v_min_u32 v{v}, Lcode_end-{l0}-4, v{v+3}")
        a(f"v_mov_b32 v{v+1}, s91")
        a(f"v_add_co_u32 v{v}, vcc, s90, v{v}")
        a(f"v_add_u32 v{v+3}, 8192, v{v+3}")
        a("s_nop 0")
        a(f"v_addc_co_u32 v{v+1}, vcc, 0, v{v+1}, vcc")
        a(f"global_load_dword v{v+2}, v[{v}:{v+1}], off")

def p1_spare(a):
    a.label("Lspare_h")
    tag_load(a)
    a("s_waitcnt vmcnt(0)")
    tag_take(a)
    a("s_branch Lspare")
    a.label("Lspare_c")
    stats_finish(a)
    stats_signal(a)
    a.label("Lspare")
    a("s_sub_u32 s29, s32, 30")
    a("s_lshl_b32 s29, s29, 3")
    a("s_add_u32 s29, s29, s31")
    a("s_cmp_ge_u32 s29, 14")
    a("s_cbranch_scc1 Lsp_done")
    srd(a, 12, PW1, 640 * 3456)
    srd(a, 16, PB1, 1728 * 2)
    a("v_lshrrev_b32 v2, 4, v0")
    a("v_and_b32 v3, 15, v0")
    a("v_mul_u32_u24 v2, 3456, v2")
    a("v_lshl_add_u32 v2, v3, 4, v2")
    a(f"s_mul_i32 s33, s3, {80*3456}")
    a("s_lshl_b32 s34, s29, 8")
    a("s_add_u32 s33, s33, s34")
    for i in range(20):
        a(f"buffer_load_dwordx4 {vr(96+4*i,4)}, v2, s[12:15], s33 offen")
        a(f"s_add_u32 s33, s33, {4*3456}")
    a("v_lshlrev_b32 v4, 1, v0")
    a("s_lshl_b32 s35, s3, 7")
    a("s_add_u32 s35, s35, s34")
    a("buffer_load_ushort v90, v4, s[16:19], s35 offen")
    a("v_mov_b32 v88, 0x3f80")
    a("v_mov_b32 v89, 0x3f800000")
    for i in range(8): a(f"v_mov_b32 v{80+i}, 0")
    for i in range(20):
        a(f"s_waitcnt vmcnt({20-i})")
        for j in range(4):
            a(f"v_dot2_f32_bf16 v{80+2*j}, v{96+4*i+j}, v88, v{80+2*j}")
            a(f"v_dot2_f32_bf16 v{81+2*j}, v{96+4*i+j}, v89, v{81+2*j}")
    a("v_lshlrev_b32 v4, 5, v0")
    a("s_lshl_b32 s33, s3, 11")
    a("v_add_u32 v4, s33, v4")
    a("s_nop 0")
    a("ds_write_b128 v4, v[80:83]")
    a("ds_write_b128 v4, v[84:87] offset:16")
    a("s_waitcnt lgkmcnt(0)")
    a("s_barrier")
    a("s_cmp_ge_u32 s3, 2")
    a("s_cbranch_scc1 Lsp_done")
    a("v_lshlrev_b32 v4, 2, v0")
    a("s_lshl_b32 s33, s3, 8")
    a("v_add_u32 v4, s33, v4")
    for h in range(4):
        for i in range(8): a(f"ds_read_b32 v{96+8*h+i}, v4 offset:{512*(8*h+i)}")
        a("s_waitcnt lgkmcnt(0)")
    for i in range(1, 32): a(f"v_add_f32 v96, v96, v{96+i}")
    bf16_round(a, 97, 96)
    a("v_sub_f32 v96, v96, v97")
    a("v_cvt_pk_bf16_f32 v92, v97, v96")
    a("s_waitcnt vmcnt(0)")
    a("v_mov_b32 v93, v90")
    a("v_lshlrev_b32 v4, 3, v0")
    a("s_lshl_b32 s35, s35, 2")
    a(f"s_add_u32 s35, s35, {OFF_CO}")
    a("buffer_store_dwordx2 v[92:93], v4, s[20:23], s35 offen sc1")
    a.label("Lsp_done")
    a("s_waitcnt vmcnt(0)")
    a("s_barrier")
    a("s_cmp_ge_u32 s3, 4")
    a("s_cbranch_scc1 Lh2")
    a("s_mov_b32 s30, 15")
    f1_addr(a, 30)
    a(f"s_add_u32 s58, s58, {F1}")
    a("s_branch Lc2")

def p1_helper(a):
    WS = 3840
    a("v_lshrrev_b32 v2, 3, v0")
    a("v_and_b32 v3, 7, v0")
    a("v_lshrrev_b32 v4, 4, v0")
    a("v_xor_b32 v3, v3, v4")
    a("v_mul_u32_u24 v2, 1280, v2")
    a("v_lshl_add_u32 v10, v3, 4, v2")
    a("v_xor_b32 v5, 64, v10")
    a(f"v_add_u32 v11, {10240-1024}, v5")
    a(f"v_add_u32 v12, {2*(10240-1024)}, v10")
    a(f"v_add_u32 v13, {3*(10240-1024)}, v5")
    a("v_and_b32 v3, 15, v0")
    a("v_lshlrev_b32 v5, 2, v4")
    a("v_xor_b32 v3, v3, v5")
    a(f"v_mul_u32_u24 v14, {WS}, v4")
    a("v_lshl_add_u32 v14, v3, 4, v14")
    for i in range(1, 4):
        a(f"v_add_u32 v{14+i}, {i*(4*WS-1024)}, v14")
    srd(a, 12, PX, 2048 * 1280)
    srd(a, 16, PWQKV, 640 * 3840)
    if CFG["xpf"]:
        a("s_getreg_b32 s33, hwreg(HW_REG_HW_ID, 8, 3)")
        a("s_getreg_b32 s34, hwreg(HW_REG_HW_ID, 13, 2)")
        a("s_lshl_b32 s34, s34, 3")
        a("s_add_u32 s33, s33, s34")
        a("s_lshl_b32 s33, s33, 2")
        a("s_add_u32 s33, s33, s28")
        a("s_mul_i32 s34, s33, 40")
        a("v_min_u32 v6, 39, v0")
        a("v_add_u32 v6, s34, v6")
        a("v_and_b32 v7, 511, v6")
        a("v_lshrrev_b32 v6, 9, v6")
        a("v_mul_u32_u24 v7, 1280, v7")
        a("v_lshl_add_u32 v6, v6, 7, v7")
        a("s_bfe_u32 s34, s60, 0x20001")
        a(f"s_mul_i32 s34, s34, {512*1280}")
        a(f"v_mul_u32_u24 v7, {WS}, v4")
        a("v_and_b32 v8, 15, v0")
        a("v_lshl_add_u32 v7, v8, 7, v7")
        a(f"s_mul_i32 s35, s33, {5*WS}")
        a("s_and_b32 s36, s60, 1")
        a("s_mul_i32 s36, s36, 1792")
        a("s_add_u32 s35, s35, s36")
        a(f"s_add_u32 s36, s35, {4*WS}")
        a("v_lshlrev_b32 v8, 7, v8")
        a("buffer_load_dword v9, v7, s[16:19], s35 offen")
        a("buffer_load_dword v9, v6, s[12:15], s34 offen")
        a("buffer_load_dword v9, v8, s[16:19], s36 offen")
    a("s_or_b32 s33, s2, s28")
    a("s_cbranch_scc1 Lh_nz")
    a("s_memrealtime s[34:35]")
    a("s_waitcnt lgkmcnt(0)")
    a("s_or_b32 s34, s34, 1")
    a(f"s_atomic_swap s34, s[{PDBG}:{PDBG+1}], 0")
    a.label("Lh_nz")
    if CFG["cpf"]:
        CFG["_hi"][KN] = -1
        a("s_getreg_b32 s33, hwreg(HW_REG_HW_ID, 9, 7)")
        a("s_lshl_b32 s33, s33, 2")
        a("s_add_u32 s33, s33, s28")
        a("s_cmp_lg_u32 s33, 7")
        a("s_cbranch_scc1 Lh_np")
        code_prefetch(a, "Lc1e", 5, 204) if CFG["cp0"] else code_prefetch(a, KN, 7, 204)
        a.label("Lh_np")
    ticket(a)
    a("s_cmp_ge_u32 s32, 30")
    a("s_cbranch_scc1 Lspare_h")
    a("s_mul_i32 s34, s29, 163840")
    a("s_mul_i32 s33, s28, 40960")
    a("s_add_u32 s34, s34, s33")
    a("s_lshl_b32 s35, s30, 8")
    a(f"s_mul_i32 s33, s28, {16*WS}")
    a("s_add_u32 s35, s35, s33")
    rot = CFG["rot1"]
    if rot:
        a("s_mul_i32 s38, s29, 3")
        a("s_add_u32 s38, s38, s30")
        a("s_mul_i32 s33, s38, 6554")
        a("s_lshr_b32 s33, s33, 16")
        a("s_mul_i32 s33, s33, 10")
        a("s_sub_u32 s38, s38, s33")
        a("s_lshl_b32 s36, s38, 7")
        a("s_add_u32 s36, s36, s34")
        a(f"s_mul_i32 s37, s38, {64*WS}")
        a("s_add_u32 s37, s37, s35")
    else:
        a("s_mov_b32 s36, s34")
        a("s_mov_b32 s37, s35")
    a("s_lshl_b32 s39, s28, 12")
    stream = []
    for s in range(10):
        slot = (s & 3) * 32768
        for i in range(4):
            g = [f"s_add_u32 m0, s39, {slot}", "s_nop 0"] if i == 0 else []
            g.append(f"buffer_load_dwordx4 v{10+i}, s[12:15], s36 offen offset:{1024*i} lds")
            stream.append(g)
        for i in range(4):
            g = [f"s_add_u32 m0, s39, {slot+16384}", "s_add_u32 s36, s36, 128"] if i == 0 else []
            g.append(f"buffer_load_dwordx4 v{14+i}, s[16:19], s37 offen offset:{1024*i} lds")
            if i == 3:
                g.append(f"s_add_u32 s37, s37, {64*WS}")
                if rot:
                    g += ["s_add_u32 s38, s38, 1", "s_cmp_eq_u32 s38, 10", "s_cselect_b32 s36, s34, s36", "s_cselect_b32 s37, s35, s37"]
            stream.append(g)
    issued = [0]; q = []
    def issue(n=1):
        for _ in range(n):
            if issued[0] < 80:
                for x in stream[issued[0]]: a(x)
                q.append(issued[0] // 8)
                issued[0] += 1
    def wait(tag):
        last = max(i for i, t in enumerate(q) if t == tag)
        a(f"s_waitcnt vmcnt({len(q) - 1 - last})")
    issue(CFG["n01"])
    srd(a, 24, PDBG, 256)
    a("v_mov_b32 v205, 0")
    a("v_and_b32 v2, 31, v0")
    a("v_lshrrev_b32 v3, 5, v0")
    a("s_lshl_b32 s33, s29, 2")
    a("s_add_u32 s33, s33, s28")
    a("s_lshl_b32 s40, s33, 2")
    a("s_lshl_b32 s41, s30, 1")
    a("s_lshr_b32 s42, s28, 1")
    a("s_add_u32 s41, s41, s42")
    a("s_lshl_b32 s41, s41, 3")
    a("s_sub_u32 s41, s41, 4")
    a("v_min_u32 v4, 11, v0")
    a("v_add_u32 v5, s40, v4")
    a("v_cmp_gt_u32 vcc, 4, v4")
    a("v_add_u32 v4, s41, v4")
    a("s_lshl_b32 s40, s33, 9")
    a("v_cndmask_b32 v4, v4, v5, vcc")
    a("v_cndmask_b32 v5, 8, v205, vcc")
    a("v_lshl_add_u32 v4, v4, 7, v5")
    a(f"v_add_u32 v20, {F0}, v4")
    a(f"s_add_u32 s40, s40, {OFF_TS}")
    a("v_lshlrev_b32 v21, 4, v2")
    a(f"v_mul_u32_u24 v22, {8*7680}, v3")
    a("v_lshl_add_u32 v22, v2, 2, v22")
    a("s_lshl_b32 s41, s30, 2")
    a("s_add_u32 s41, s41, s28")
    a("s_lshl_b32 s41, s41, 7")
    a(f"s_add_u32 s41, s41, {OFF_CP}")
    PS = CFG["ps"]
    for s in range(10):
        wait(s)
        a("s_barrier")
        if s == PS:
            a("buffer_load_dword v204, v205, s[24:27], 0 offen sc1"); q.append("p")
            a("buffer_load_dwordx2 v[24:25], v20, s[20:23], 0 offen sc1"); q.append("p")
        if s == PS + 2:
            wait("p")
            tag_take(a)
            tagcheck(a, 24, 2)
            a("s_cbranch_scc0 Lh_ok")
            poll(a, 20, 64, 2)
            a.label("Lh_ok")
            a("buffer_load_dwordx4 v[40:43], v21, s[20:23], s40 offen sc1"); q.append("d")
            for i in range(8):
                a(f"buffer_load_dword v{48+i}, v22, s[20:23], s41 offen sc1"); q.append("d")
                a("s_add_u32 s41, s41, 7680")
        issue(8)
    a("s_waitcnt vmcnt(0)")
    for i in range(4): a(f"v_add_f32 v{48+i}, v{48+i}, v{52+i}")
    for i in range(2): a(f"v_add_f32 v{48+i}, v{48+i}, v{50+i}")
    a("v_add_f32 v36, v48, v49")
    a("v_mov_b32 v37, v36")
    a("s_nop 1")
    a("v_permlane32_swap_b32 v36, v37")
    a("v_add_f32 v36, v36, v37")
    bf16_round(a, 37, 36)
    a("v_sub_f32 v36, v36, v37")
    a("v_cvt_pk_bf16_f32 v44, v37, v36")
    a("v_mov_b32 v45, 0")
    a("s_lshl_b32 s33, s28, 5")
    a("v_add_u32 v2, s33, v2")
    a("v_lshlrev_b32 v3, 3, v2")
    a(f"v_add_u32 v3, {STAT}, v3")
    a("v_lshlrev_b32 v4, 2, v2")
    a(f"v_add_u32 v4, {STAT+1024}, v4")
    a("ds_write_b64 v3, v[40:41]")
    a("ds_write_b32 v4, v42")
    a("ds_write_b64 v3, v[44:45] offset:2048")
    a("s_waitcnt lgkmcnt(0)")
    a("s_barrier")

def ln_final(a, vs, vq, vo, vr_):
    a(f"v_mul_f32 v{vs}, {f32(1/640)}, v{vs}")
    a(f"v_mul_f32 v{vq}, {f32(1/640)}, v{vq}")
    a(f"v_fma_f32 v{vq}, -v{vs}, v{vs}, v{vq}")
    a(f"v_max_f32 v{vq}, 0, v{vq}")
    bf16_round(a, vq, vq)
    a(f"v_add_f32 v{vq}, {f32(1e-5)}, v{vq}")
    bf16_round(a, vq, vq)
    a(f"v_sqrt_f32 v{vq}, v{vq}")
    a(f"v_mul_f32 v{vs}, -0.5, v{vs}")
    bf16_round(a, vq, vq)
    a(f"v_cvt_pk_bf16_f32 v{vo}, v{vs}, v{vs}")
    a(f"v_rcp_f32 v{vr_}, v{vq}")
    a(f"v_mul_f32 v{vq}, 0.5, v{vq}")
    a(f"v_lshrrev_b32 v{vo+1}, 16, v{vq}")

def f1_addr(a, sn):
    lg = CFG["fpl"].bit_length() - 1
    a(f"s_lshl_b32 s58, s{sn}, {11-lg}")
    a(f"s_lshr_b32 s33, s29, {lg}")
    a("s_lshl_b32 s33, s33, 7")
    a("s_add_u32 s58, s58, s33")
    a(f"s_and_b32 s33, s29, {CFG['fpl']-1}")
    a("s_lshl_b32 s33, s33, 2")
    a("s_add_u32 s58, s58, s33")

def kappa(a, d, t):
    a(f"v_and_b32 v{d}, 19, v0")
    a(f"v_bfe_u32 v{t}, v0, 2, 1")
    a(f"v_lshl_add_u32 v{d}, v{t}, 3, v{d}")
    a(f"v_bfe_u32 v{t}, v0, 3, 1")
    a(f"v_lshl_add_u32 v{d}, v{t}, 2, v{d}")

def p1_compute(a):
    ACC = 64
    FRB = [32, 48, 176]
    AD = 128
    stats_issue(a)
    a("s_and_b32 s34, s28, 1")
    a("s_lshr_b32 s35, s28, 1")
    a("v_and_b32 v2, 31, v0")
    a("v_lshrrev_b32 v3, 5, v0")
    a("v_bfe_u32 v4, v0, 1, 3")
    a("v_xor_b32 v4, v4, v3")
    a("v_lshlrev_b32 v4, 4, v4")
    a("v_lshl_add_u32 v4, v2, 7, v4")
    a("s_lshl_b32 s33, s34, 13")
    a("v_add_u32 v10, s33, v4")
    for i in range(1, 4):
        a(f"v_xor_b32 v{10+i}, {32*i}, v10")
    for i in range(4):
        a(f"v_add_u32 v{14+i}, 0x10000, v{10+i}")
    a("v_bfe_u32 v4, v0, 2, 2")
    a("v_lshl_add_u32 v5, v3, 3, v4")
    a("v_lshlrev_b32 v5, 8, v5")
    a("v_bfe_u32 v6, v0, 4, 1")
    a("v_lshl_add_u32 v5, v6, 5, v5")
    a("v_and_b32 v6, 3, v0")
    a("v_lshl_add_u32 v5, v6, 3, v5")
    a("v_add_u32 v5, 16384, v5")
    a("s_lshl_b32 s33, s35, 1")
    a("v_xor_b32 v4, s33, v4")
    a("v_lshl_add_u32 v18, v4, 6, v5")
    a("v_xor_b32 v19, 64, v18")
    a("v_add_u32 v20, 0x10000, v18")
    a("v_add_u32 v21, 0x10000, v19")
    a("s_lshl_b32 s33, s34, 6")
    a("v_add_u32 v22, s33, v2")
    a("v_lshlrev_b32 v23, 2, v22")
    a(f"v_add_u32 v23, {STAT+1024}, v23")
    a("v_lshlrev_b32 v22, 3, v22")
    a(f"v_add_u32 v22, {STAT}, v22")
    a("s_lshl_b32 s33, s35, 6")
    a("v_add_u32 v24, s33, v2")
    a("v_lshlrev_b32 v24, 3, v24")
    a(f"v_add_u32 v24, {STAT+2048}, v24")
    ticket(a)
    stamp(a, 22)
    a("s_cmp_ge_u32 s32, 30")
    a("s_cbranch_scc1 Lspare_c")
    f1_addr(a, 30)
    a(f"s_add_u32 s58, s58, {F1}")

    def reads(t):
        s, st = t >> 2, t & 3
        se = (s >> 1) & 1
        io = (s & 1) * 32768
        F = FRB[t % 3]
        return [f"ds_read_b128 {vr(F,4)}, v{10+4*se+st} offset:{io}",
                f"ds_read_b64_tr_b16 {vr(F+8,2)}, v{18+2*se} offset:{io+st*4096}",
                f"ds_read_b64_tr_b16 {vr(F+10,2)}, v{18+2*se} offset:{io+st*4096+1024}",
                f"ds_read_b64_tr_b16 {vr(F+12,2)}, v{19+2*se} offset:{io+st*4096}",
                f"ds_read_b64_tr_b16 {vr(F+14,2)}, v{19+2*se} offset:{io+st*4096+1024}",
                f"ds_read_b128 {vr(F+4,4)}, v{10+4*se+st} offset:{io+4096}"]
    def mainloop(T, fill=()):
        fill = list(fill)
        stamp(a, 19)
        stats_finish(a)
        stamp(a, 23)
        a("s_barrier")
        stamp(a, 1)
        for r in reads(0) + reads(1): a(r)
        for t in range(40):
            F = FRB[t % 3]
            if t < 38 and (t & 3) == 2:
                a("s_waitcnt lgkmcnt(0)")
                if t == CFG["sg"]: stats_signal(a)
                a("s_barrier")
            else:
                a(f"s_waitcnt lgkmcnt({6 if t < 39 else 0})")
            rd = reads(t + 2) if t < 38 else []
            for i, (x, w) in enumerate(((0, 0), (0, 1), (1, 0), (1, 1))):
                d = vr(ACC + 32 * x + 16 * w, 16)
                xa, wa = vr(F + 4 * x, 4), vr(F + 8 + 4 * w, 4)
                c = "0" if t == 0 else d
                if T: a(f"v_mfma_f32_32x32x16_bf16 {d}, {wa}, {xa}, {c}")
                else: a(f"v_mfma_f32_32x32x16_bf16 {d}, {xa}, {wa}, {c}")
                if i < 3:
                    for r in rd[2*i:2*i+2]: a(r)
                if t >= 8:
                    for _ in range(1 if i < 3 else 3):
                        if fill: a(fill.pop(0))
        assert not fill
        a("s_barrier")
        stamp(a, 2)
        a("ds_read_b64 v[176:177], v22")
        a("ds_read_b64 v[178:179], v22 offset:256")
        a("ds_read_b64 v[180:181], v24")
        a("ds_read_b64 v[182:183], v24 offset:256")
        if T:
            a("ds_read_b32 v40, v23")
            a("ds_read_b32 v42, v23 offset:128")
        else:
            for x in range(2):
                for j in range(4):
                    a(f"ds_read_b128 {vr(144+16*x+4*j,4)}, v25 offset:{128*x+32*j}")
        a("s_waitcnt lgkmcnt(0)")
        for x, w in ((0, 0), (1, 0), (0, 1), (1, 1)):
            d = vr(ACC + 32 * x + 16 * w, 16)
            xa, wa = vr(176 + 2 * x, 2), vr(180 + 2 * w, 2)
            if T: a(f"v_mfma_f32_32x32x8_bf16 {d}, {wa}, {xa}, {d}")
            else: a(f"v_mfma_f32_32x32x8_bf16 {d}, {xa}, {wa}, {d}")

    a("s_mul_i32 s36, s29, 10240")
    a("s_cmp_ge_u32 s30, 10")
    a("s_cbranch_scc1 Lc1v")
    kappa(a, 4, 5)
    a(f"v_lshlrev_b32 v4, 4, v4")
    a(f"v_lshl_add_u32 v{AD}, v3, 9, v4")
    a(f"v_mul_u32_u24 v5, {UNIT}, v3")
    a(f"v_add_u32 v{AD+1}, v5, v4")
    a("s_lshl_b32 s37, s30, 4")
    a("s_lshl_b32 s33, s35, 3")
    a("s_add_u32 s37, s37, s33")
    a("s_mov_b32 s57, s37")
    late = Asm()
    late("s_mov_b32 s59, 0")
    for q in range(8):
        late(f"s_add_u32 s56, s57, {q}")
        late("s_mul_i32 s38, s56, 52429")
        late("s_lshr_b32 s38, s38, 18")
        late("s_mul_i32 s39, s38, 5")
        late("s_sub_u32 s39, s56, s39")
        late(f"s_mul_i32 s38, s38, {2*UNIT}")
        late("s_add_u32 s38, s38, s36")
        late("s_lshl_b32 s56, s39, 11")
        late("s_add_u32 s38, s38, s56")
        late("s_cmp_gt_u32 s39, 2")
        late(f"s_cselect_b32 s56, {UNIT - 3*2048}, 0")
        late("s_add_u32 s38, s38, s56")
        late("s_cmp_eq_u32 s39, 2")
        late("s_cselect_b32 s56, 9, 10")
        late(f"s_cselect_b32 s39, {1 << q}, 0")
        late("s_lshl_b32 s56, s34, s56")
        late(f"s_add_u32 s{40+q}, s38, s56")
        late("s_or_b32 s59, s59, s39")
    c = (20 ** -0.5) * math.log2(math.e)
    a("s_cmp_lt_u32 s30, 5")
    a(f"s_cselect_b32 s37, {f32(c)}, 1.0")
    mainloop(True, list(late.lines))
    a("v_mul_f32 v40, s37, v40")
    a("v_mul_f32 v42, s37, v42")
    a("s_nop 7")
    for q in range(8):
        w, j = q >> 2, q & 3
        t = 44 + 4 * (q & 3)
        for x in range(2):
            b = ACC + 32 * x + 16 * w + 4 * j
            for i in (0, 2):
                a(f"v_pk_mul_f32 {vr(b+i,2)}, {vr(b+i,2)}, {vr(40+2*x,2)} op_sel_hi:[1,0]")
            a(f"v_cvt_pk_bf16_f32 v{t+2*x}, v{b}, v{b+1}")
            a(f"v_cvt_pk_bf16_f32 v{t+2*x+1}, v{b+2}, v{b+3}")
        L1, L2 = uid("s"), uid("s")
        a(f"s_bitcmp1_b32 s59, {q}")
        a(f"s_cbranch_scc1 {L1}")
        a(f"v_permlane32_swap_b32 v{t}, v{t+2}")
        a(f"v_permlane32_swap_b32 v{t+1}, v{t+3}")
        a(f"buffer_store_dwordx4 {vr(t,4)}, v{AD}, s[20:23], s{40+q} offen sc1")
        a(f"s_branch {L2}")
        a.label(L1)
        a(f"buffer_store_dwordx4 {vr(t,4)}, v{AD+1}, s[20:23], s{40+q} offen sc1")
        a.label(L2)
    a("s_branch Lc1e")
    a.label("Lc1v")
    a("s_sub_u32 s33, s30, 10")
    a("s_lshl_b32 s33, s33, 7")
    a("s_lshl_b32 s37, s35, 6")
    a("s_add_u32 s33, s33, s37")
    a("v_mul_u32_u24 v5, 320, v3")
    a("s_mul_i32 s37, s34, 2560")
    a(f"s_add_u32 s37, s37, {32*UNIT+5120}")
    a("v_add_u32 v5, s37, v5")
    for w in range(2):
        a(f"v_add_u32 v7, s33, v2")
        if w: a("v_add_u32 v7, 32, v7")
        a("v_mul_u32_u24 v9, 52429, v7")
        a("v_lshrrev_b32 v9, 20, v9")
        a("v_mul_u32_u24 v8, 20, v9")
        a("v_sub_u32 v8, v7, v8")
        a(f"v_mul_u32_u24 v9, {UNIT}, v9")
        a("v_lshl_add_u32 v9, v8, 4, v9")
        a(f"v_add_u32 v{AD+w}, v9, v5")
    a("s_lshl_b32 s33, s34, 8")
    a(f"s_add_u32 s33, s33, {STAT+1024}")
    a("v_lshl_add_u32 v25, v3, 4, s33")
    mainloop(False)
    a("s_nop 9")
    for w in range(2):
        for x in range(2):
            b = ACC + 32 * x + 16 * w
            for g in range(2):
                for i in range(0, 8, 2):
                    a(f"v_pk_mul_f32 {vr(b+8*g+i,2)}, {vr(144+16*x+8*g+i,2)}, {vr(b+8*g+i,2)}")
                t = 44 + 4 * (g + 2 * x)
                for i in range(4):
                    a(f"v_cvt_pk_bf16_f32 v{t+i}, v{b+8*g+2*i}, v{b+8*g+2*i+1}")
                a(f"buffer_store_dwordx4 {vr(t,4)}, v{AD+w}, s[20:23], s36 offen offset:{1280*x+640*g} sc1")
    a.label("Lc1e")
    stamp(a, 3)
    a("s_waitcnt vmcnt(0)")
    stamp(a, 24)

def ids(a):
    a("s_and_b32 s33, s32, 3")
    a("s_lshl_b32 s29, s31, 2")
    a("s_add_u32 s29, s29, s33")
    a("s_lshr_b32 s30, s32, 2")
    a("s_and_b32 s33, s32, 1")
    a("s_lshl_b32 s62, s31, 1")
    a("s_add_u32 s62, s62, s33")
    a("s_lshr_b32 s63, s32, 1")

def w1_dma(a, r0, r1, lds0, thr=20):
    a(f"s_mul_i32 s36, s28, {4*3456}")
    a("s_lshl_b32 s33, s63, 8")
    a("s_add_u32 s36, s36, s33")
    a(f"s_add_u32 s36, s36, {r0*3456}")
    a("s_lshl_b32 s33, s28, 10")
    a(f"s_add_u32 m0, s33, {lds0}")
    L = uid("w")
    a(f"s_mov_b32 s37, {(r1-r0)//16}")
    a.label(L)
    a("buffer_load_dwordx4 v14, s[16:19], s36 offen lds")
    a(f"s_waitcnt vmcnt({thr})")
    a("s_add_u32 m0, m0, 4096")
    a(f"s_add_u32 s36, s36, {16*3456}")
    a("s_sub_u32 s37, s37, 1")
    a("s_cmp_lg_u32 s37, 0")
    a(f"s_cbranch_scc1 {L}")

def lin_dma(a, n, flag=" sc1"):
    L = uid("d")
    a(f"s_mov_b32 s37, {n}")
    a.label(L)
    a(f"buffer_load_dwordx4 v1, s[20:23], s39 offen{flag} lds")
    a(f"s_waitcnt vmcnt({CFG['thr']})")
    a("s_add_u32 m0, m0, 4096")
    a("s_add_u32 s39, s39, 4096")
    a("s_sub_u32 s37, s37, 1")
    a("s_cmp_lg_u32 s37, 0")
    a(f"s_cbranch_scc1 {L}")

def helper_rest(a):
    a.label("Lh2")
    a("s_setprio 3")
    ids(a)
    a("v_lshlrev_b32 v1, 4, v0")
    a("s_lshl_b32 s54, s28, 8")
    a("s_add_u32 s54, s54, s2")
    relayout_task(a)
    srd(a, 16, PW1, 640 * 3456)
    a("v_lshrrev_b32 v4, 4, v0")
    a("v_and_b32 v3, 15, v0")
    a("v_lshlrev_b32 v5, 2, v4")
    a("v_xor_b32 v3, v3, v5")
    a("v_mul_u32_u24 v14, 3456, v4")
    a("v_lshl_add_u32 v14, v3, 4, v14")
    a("s_lshl_b32 s38, s28, 10")
    a(f"s_mul_i32 s39, s29, {UNIT}")
    a(f"s_add_u32 s39, s39, {32*UNIT}")
    a("s_add_u32 s39, s39, s38")
    a("s_mov_b32 m0, s38")
    a("s_mul_i32 s33, s29, 20")
    a("s_add_u32 s34, s33, 19")
    a("s_lshr_b32 s33, s33, 7")
    a("s_lshr_b32 s34, s34, 7")
    a("s_sub_u32 s34, s34, s33")
    fpl = CFG["fpl"]; lg = fpl.bit_length() - 1; lb = 4 - lg
    a(f"v_bfe_u32 v3, v0, {lb}, 1")
    a("v_mul_u32_u24 v3, s34, v3")
    a(f"v_lshrrev_b32 v4, {lb+1}, v0")
    if fpl == 1:
        a("s_lshl_b32 s35, s28, 1")
        a("v_add_u32 v4, s35, v4")
        a("v_min_u32 v4, 2, v4")
    a("v_mul_u32_u24 v4, 5, v4")
    a("v_add3_u32 v3, v3, v4, s33")
    a(f"v_lshlrev_b32 v3, {11-lg}, v3")
    a(f"v_and_b32 v4, {(1<<lb)-1}, v0")
    a("v_lshlrev_b32 v4, 7, v4")
    a(f"v_add_u32 v15, {F1}, v4")
    a("v_add_u32 v3, v3, v15")
    stamp(a, 1)
    a("s_barrier")
    stamp(a, 2)
    a(f"s_cmp_gt_u32 s28, {1 if fpl == 1 else 0}")
    a("s_cbranch_scc1 Lh2s")
    poll(a, 3, min(64, 96 // fpl), fpl, sleep=CFG["sl1"])
    a.label("Lh2s")
    stamp(a, 3)
    a("s_barrier")
    def dma(n):
        for i in range(n):
            a(f"buffer_load_dwordx4 v1, s[20:23], s39 offen sc1 lds")
            a("s_add_u32 m0, m0, 4096")
            a("s_add_u32 s39, s39, 4096")
    dma(6)
    a("s_waitcnt vmcnt(3)")
    a("s_barrier")
    dma(10)
    a("s_waitcnt vmcnt(6)")
    a("s_barrier")
    lin_dma(a, 24)
    a("s_waitcnt vmcnt(0)")
    a("s_cmp_ge_u32 s54, 592")
    a("s_cbranch_scc1 Lh2n")
    relayout_load(a)
    stamp(a, 9)
    a("s_barrier")
    relayout_store(a)
    a("s_branch Lh2a")
    a.label("Lh2n")
    a("s_barrier")
    a.label("Lh2a")
    a("s_lshl_b32 s33, s2, 7")
    a(f"s_add_u32 s33, s33, {F2H}")
    signal(a, 33, 2)
    stamp(a, 10)
    def pollsp():
        a(f"v_add_u32 v3, {15*2048//fpl}, v15")
        poll(a, 3, 16 // fpl, fpl, sleep=8)
    only_h0(a, pollsp)
    a("s_waitcnt vmcnt(0)")
    stamp(a, 11)
    a("s_lshl_b32 s33, s28, 13")
    a(f"s_add_u32 s33, s33, {F2H}")
    a("v_lshl_add_u32 v3, v0, 7, s33")
    poll(a, 3, 64, 4, sleep=8)
    a("v_and_b32 v2, 15, v0")
    a("v_min_u32 v2, 13, v2")
    a("v_and_b32 v3, 16, v0")
    a("v_add_u32 v2, v2, v3")
    a("s_lshl_b32 s33, s29, 12")
    a(f"s_add_u32 s33, s33, {F4}")
    a("v_lshl_add_u32 v10, v2, 7, s33")
    a(f"v_add_u32 v11, {FR}, v10")
    a(f"v_add_u32 v12, {2*FR}, v10")
    if CFG["pt"]:
        a(f"s_mul_i32 s33, s28, {FR}")
        a("buffer_load_dword v4, v10, s[20:23], s33 offen sc1")
        a("v_bfe_u32 v3, v0, 2, 1")
        a(f"v_mul_u32_u24 v3, {FR}, v3")
        a("v_and_b32 v2, 3, v0")
        a(f"v_mul_u32_u24 v2, {CFG['ls']}, v2")
        a("v_add_u32 v2, v2, v3")
        a(f"s_mul_i32 s33, s29, {4*CFG['ls']}")
        a(f"s_add_u32 s33, s33, {F2}")
        a("buffer_load_dword v4, v2, s[20:23], s33 offen sc1")
    STH = 20
    a(f"s_mul_i32 s55, s30, {54*5120}")
    a(f"s_add_u32 s55, s55, {OFF_W2}")
    a("s_add_u32 s55, s55, s38")
    a("s_mov_b32 s39, s55")
    stamp(a, 7)
    for i in range(58):
        a(f"buffer_load_dwordx4 {vr(STH+4*i,4)}, v1, s[20:23], s39 offen sc1")
        a(f"s_add_u32 s39, s39, {4096 if i != 29 else 4096 + 40960}")
    stamp(a, 8)
    a(f"s_mul_i32 s39, s30, {20*5120}")
    a(f"s_add_u32 s39, s39, {OFF_WO}")
    a("s_add_u32 s39, s39, s38")
    a("s_mov_b32 m0, s38")
    a("s_barrier")
    lin_dma(a, 25)
    a("s_waitcnt vmcnt(0)")
    if CFG["pf"]:
        a("s_lshl_b32 s33, s32, 2")
        a("s_add_u32 s33, s33, s28")
        a(f"s_mul_i32 s34, s33, {17*1024}")
        a("v_lshlrev_b32 v2, 7, v0")
        a("v_min_u32 v3, 896, v2")
        a("buffer_load_dword v4, v2, s[16:19], s34 offen")
        a("s_add_u32 s34, s34, 8192")
        a("buffer_load_dword v4, v2, s[16:19], s34 offen")
        a("s_add_u32 s34, s34, 8192")
        a("buffer_load_dword v4, v3, s[16:19], s34 offen")
    stamp(a, 14)
    a("s_barrier")
    a("s_cmp_ge_u32 s32, 28")
    a("s_cbranch_scc1 Lh2b")
    w1_dma(a, 0, 240, 102400)
    a.label("Lh2b")
    a("s_barrier")
    a("s_waitcnt vmcnt(0)")
    stamp(a, 4)
    a("s_barrier")
    a("s_cmp_ge_u32 s32, 28")
    a("s_cbranch_scc1 Lh4")
    w1_dma(a, 240, 640, 0)
    a("s_waitcnt vmcnt(0)")
    stamp(a, 5)
    a("s_barrier")
    a.label("Lh4")
    a(f"s_add_u32 s39, s55, {6*20480}")
    a(f"s_add_u32 m0, s38, {6*20480}")
    a("v_add_u32 v8, s38, v1")
    a("v_add_u32 v9, 61440, v8")
    def put(i, slotpiece):
        a(f"ds_write_b128 v{8 + slotpiece // 15}, {vr(STH+4*i,4)} offset:{(slotpiece % 15) * 4096}")
    a("s_barrier")
    for i in range(30):
        if i % 3 == 0: dma(1)
        put(i, i)
    a("s_waitcnt lgkmcnt(0)")
    stamp(a, 6)
    a("s_or_b32 s33, s31, s32")
    a("s_or_b32 s33, s33, s28")
    a("s_cbranch_scc1 Lh5")
    srd(a, 24, PDBG, 256)
    a("v_lshlrev_b32 v2, 2, v0")
    a("v_mov_b32 v3, 0")
    a("buffer_store_dword v3, v2, s[24:27], 0 offen sc1")
    a.label("Lh5")
    a("v_mov_b32 v16, s100")
    a("v_lshlrev_b32 v17, 11, v0")
    a("s_lshl_b32 s34, s62, 6")
    a("s_add_u32 s34, s34, s63")
    a("s_lshl_b32 s34, s34, 7")
    a(f"s_add_u32 s34, s34, {F4}")
    a("s_waitcnt vmcnt(0)")
    only_h0(a, lambda: poll(a, 10, 32, sleep=CFG["sl4"]))
    stamp(a, 12)
    a("s_barrier")
    def announce(level):
        L = uid("a")
        a("s_cmp_lg_u32 s28, 1")
        a(f"s_cbranch_scc1 {L}")
        a("s_cmp_ge_u32 s32, 28")
        a(f"s_cbranch_scc1 {L}")
        a(f"s_add_u32 s33, s34, {level*FR}")
        a("s_mov_b64 exec, 15")
        a("buffer_store_dword v16, v17, s[20:23], s33 offen sc1")
        a("s_mov_b64 exec, -1")
        a.label(L)
    announce(2)
    only_h0(a, lambda: poll(a, 11, 32))
    stamp(a, 13)
    for s in range(1, 14):
        if s in (5, 8):
            def lv():
                L = uid("k")
                a("s_waitcnt vmcnt(0)")
                tagcheck(a, 13, 1)
                a(f"s_cbranch_scc0 {L}")
                poll(a, 12, 32)
                a.label(L)
                a(f"v_add_u32 v12, {FR}, v12")
            only_h0(a, lv)
        a("s_barrier")
        if s == 2: announce(3)
        if s in (2, 5): only_h0(a, lambda: a("buffer_load_dword v13, v12, s[20:23], 0 offen sc1"))
        if s >= 2:
            ks = [k for k in range(28) if 2 + k // 3 == s]
            for k in ks: put(30 + k, k)
            if s >= 7: a(f"s_waitcnt lgkmcnt({len(ks)})")
    finish(a)

def compute_rest(a):
    QA = [4, 8]; QB = 12; QBA = [12, 14]; QBB = [16, 18]
    IDX, AK, AV = 20, 21, 23
    O = [24, 40]
    S = [56, 72, 88, 104]
    KA = [120, 128]; KB = [136, 140]; V = [144, 160]
    T = 176
    a.label("Lc2")
    a("s_barrier")
    only_h0(a, lambda: ssignal(a, 58))
    ids(a)
    RES, XR = 232, 220
    a("v_and_b32 v4, 15, v0")
    a("v_lshrrev_b32 v5, 4, v0")
    a("v_mul_u32_u24 v252, 1280, v4")
    a("v_lshl_add_u32 v253, v5, 3, v252")
    a("v_lshl_add_u32 v252, v5, 5, v252")
    a("v_lshlrev_b32 v6, 5, v5")
    a("v_lshlrev_b32 v7, 3, v5")
    a("s_lshl_b32 s33, s29, 2")
    a("s_add_u32 s33, s33, s28")
    a("s_mul_i32 s59, s33, 20480")
    a("s_mul_i32 s38, s30, 160")
    a("s_add_u32 s59, s59, s38")
    srd(a, 12, PX, 2048 * 1280)
    srd(a, 16, PB2, 1280)
    a(f"buffer_load_dwordx4 {vr(XR,4)}, v252, s[12:15], s59 offen")
    a(f"buffer_load_dwordx4 {vr(XR+4,4)}, v252, s[12:15], s59 offen offset:16")
    a(f"buffer_load_dwordx2 {vr(XR+8,2)}, v253, s[12:15], s59 offen offset:128")
    a(f"buffer_load_dwordx4 {vr(S[0],4)}, v6, s[16:19], s38 offen")
    a(f"buffer_load_dwordx4 {vr(S[0]+4,4)}, v6, s[16:19], s38 offen offset:16")
    a(f"buffer_load_dwordx2 {vr(S[0]+8,2)}, v7, s[16:19], s38 offen offset:128")
    a("v_and_b32 v2, 31, v0")
    a("v_lshrrev_b32 v1, 5, v0")
    a("v_lshlrev_b32 v3, 4, v2")
    a(f"v_lshl_add_u32 v{AK}, v1, 11, v3")
    a(f"v_lshlrev_b32 v22, 4, v0")
    a(f"v_mul_u32_u24 v{AV}, 320, v1")
    a(f"v_add_u32 v{AV}, v3, v{AV}")
    a(f"s_mul_i32 s33, s29, {UNIT}")
    a("s_lshl_b32 s34, s30, 1")
    a("s_lshr_b32 s35, s28, 1")
    a("s_add_u32 s34, s34, s35")
    a("s_mul_i32 s34, s34, 10240")
    a("s_add_u32 s34, s34, s33")
    a("s_and_b32 s35, s28, 1")
    a("s_lshl_b32 s36, s35, 10")
    a("s_add_u32 s36, s36, s34")
    a("s_lshl_b32 s37, s35, 9")
    a("s_add_u32 s37, s37, s34")
    a("s_add_u32 s37, s37, 4096")
    a(f"v_mov_b32 v{IDX}, 0xdddddddd")
    a("s_mov_b32 s40, 0xfffff")
    a("s_mov_b32 s41, 0xfffff")
    for i in range(32): a(f"v_mov_b32 v{O[0]+i}, 0")
    for i in range(16): a(f"v_mov_b32 v{S[3]+i}, 0")
    a(f"v_and_b32 v{T}, 27, v0")
    a(f"v_cmp_eq_u32 vcc, 24, v{T}")
    a(f"v_mov_b32 v{T}, 0x3f803f80")
    a("s_mov_b32 s43, 4")
    a(f"v_cndmask_b32 v{V[0]}, v{O[0]}, v{T}, vcc")
    for i in range(1, 32): a(f"v_mov_b32 v{V[0]+i}, v{V[0]}")
    a("v_cmp_gt_u32 vcc, 32, v0")
    a("s_waitcnt vmcnt(0)")
    for i in range(10):
        a(f"v_lshlrev_b32 v{RES+2*i}, 16, v{S[0]+i}")
        a(f"v_and_b32 v{RES+2*i+1}, 0xffff0000, v{S[0]+i}")
    stamp(a, 4)
    a("s_barrier")
    stamp(a, 5)
    for q in range(2):
        a(f"buffer_load_dwordx4 {vr(QA[q],4)}, v{AK}, s[20:23], s36 offen offset:{512*q} sc1")
    a(f"buffer_load_dwordx4 {vr(QB,4)}, v3, s[20:23], s37 offen sc1")
    a("s_waitcnt vmcnt(0)")
    for i in range(4):
        a(f"v_cndmask_b32 v{QBB[0]+i}, v{QB+i}, v{O[0]}, vcc")
        a(f"v_cndmask_b32 v{QB+i}, v{O[0]}, v{QB+i}, vcc")
    def ka_off(t): return (t >> 2) * 10240 + (t & 3) * 512
    def kb_off(b): return b * 10240 + 4096
    def v_off(t, g): return (t >> 2) * 10240 + 5120 + (2 * (t & 3) + g) * 640
    def batch(p):
        r = [f"ds_read_b128 {vr(KA[p&1],4)}, v{AK} offset:{ka_off(2*p)}"]
        if p % 2 == 0:
            r.append(f"ds_read_b128 {vr(KB[(p>>1)&1],4)}, v22 offset:{kb_off(p>>1)}")
        r.append(f"ds_read_b128 {vr(KA[p&1]+4,4)}, v{AK} offset:{ka_off(2*p+1)}")
        r.append("s_mov_b64 exec, s[40:41]")
        for j in range(4):
            r.append(f"ds_read_b128 {vr(V[p&1]+4*j,4)}, v{AV} offset:{v_off(2*p+(j>>1), j&1)}")
        r.append("s_mov_b64 exec, -1")
        return r
    def sync(it):
        L = uid("n")
        a(f"s_cmp_lg_u32 s43, {it}")
        a(f"s_cbranch_scc1 {L}")
        a("s_barrier")
        a.label(L)
    def qk16(u):
        t, q = u >> 1, u & 1
        return f"v_mfma_f32_32x32x16_bf16 {vr(S[u&3],16)}, {vr(KA[(t>>1)&1]+4*(t&1),4)}, {vr(QA[q],4)}, 0"
    def qk8(u):
        t, q = u >> 1, u & 1
        return f"v_mfma_f32_32x32x8_bf16 {vr(S[u&3],16)}, {vr(KB[(t>>2)&1]+2*(t&1),2)}, {vr((QBB if t&2 else QBA)[q],2)}, {vr(S[u&3],16)}"
    def pv(u, g):
        t, q = u >> 1, u & 1
        return f"v_smfmac_f32_32x32x32_bf16 {vr(O[q],16)}, {vr(V[(t>>1)&1]+8*(t&1)+4*g,4)}, {vr(S[u&3]+8*g,8)}, v{IDX}"
    a("s_barrier")
    stamp(a, 6)
    for r in batch(0): a(r)
    a("s_waitcnt lgkmcnt(4)")
    a(qk16(0)); a(qk8(0))
    a("s_waitcnt lgkmcnt(0)")
    a("s_nop 9")
    a(".p2align 6")
    a.label("Lattn")
    for u in range(32):
        s = S[u & 3]
        if u == 1: sync(1)
        if u == 5: sync(4)
        if u == 29: sync(4)
        if u % 4 == 3: a("s_waitcnt lgkmcnt(0)")
        a(qk16(u + 1))
        if u % 4 == 1:
            for r in batch((u + 3) // 4): a(r)
        for i in range(0, 4): a(f"v_exp_f32 v{s+i}, v{s+i}")
        a(qk8(u + 1))
        for i in range(4, 8): a(f"v_exp_f32 v{s+i}, v{s+i}")
        a(pv(u - 1, 0))
        for i in range(8, 12): a(f"v_exp_f32 v{s+i}, v{s+i}")
        a(pv(u - 1, 1))
        if u == 31:
            a(f"v_add_u32 v{AK}, 40960, v{AK}")
            a(f"v_add_u32 v22, 40960, v22")
            a(f"v_add_u32 v{AV}, 40960, v{AV}")
            a("s_sub_u32 s43, s43, 1")
            a("s_cmp_lg_u32 s43, 0")
        for i in range(12, 16): a(f"v_exp_f32 v{s+i}, v{s+i}")
    a("s_cbranch_scc1 Lattn")
    a("s_nop 0")
    a(pv(31, 0)); a(pv(31, 1))
    stamp(a, 7)
    a("s_mov_b64 s[46:47], -1")
    kappa(a, T, T + 1)
    a(f"v_lshrrev_b32 v{T+1}, 4, v{T}")
    a(f"v_mul_u32_u24 v{T+1}, 20480, v{T+1}")
    a(f"v_and_b32 v{T}, 15, v{T}")
    a(f"v_lshl_add_u32 v{T+2}, v{T}, 4, v{T+1}")
    a(f"v_lshl_add_u32 v{T}, v{T}, 3, v{T+1}")
    a(f"v_lshl_add_u32 v{T+1}, v1, 8, v{T+2}")
    a("s_lshl_b32 s33, s30, 4")
    a("s_lshl_b32 s34, s28, 2")
    a("s_add_u32 s33, s33, s34")
    a("s_mul_i32 s33, s33, 20480")
    a(f"s_add_u32 s33, s33, {OFF_O}")
    a("s_lshl_b32 s34, s29, 9")
    a("s_add_u32 s34, s34, s33")
    a("s_lshr_b32 s35, s29, 3")
    a("s_lshl_b32 s35, s35, 10")
    a("s_and_b32 s36, s29, 2")
    a("s_lshl_b32 s36, s36, 8")
    a("s_add_u32 s35, s35, s36")
    a("s_and_b32 s36, s29, 4")
    a("s_lshl_b32 s36, s36, 6")
    a("s_add_u32 s35, s35, s36")
    a("s_and_b32 s36, s29, 1")
    a("s_lshl_b32 s36, s36, 7")
    a("s_add_u32 s35, s35, s36")
    a("s_add_u32 s35, s35, s33")
    a("s_add_u32 s35, s35, 16384")
    a("s_add_u32 s38, s34, 40960")
    a("s_add_u32 s39, s35, 40960")
    a(f"s_mov_b32 s36, {f32(2.0**-64)}")
    a(f"s_mov_b32 s37, {f32(2.0**100)}")
    a.label("Lchk")
    for q in range(2):
        a(f"v_rcp_f32 v{T+2+2*q}, v{O[q]+12}")
        a(f"v_pk_add_f32 {vr(T+6,2)}, {vr(O[q],2)}, {vr(O[q]+2,2)}")
        for i in range(4, 12, 2):
            a(f"v_pk_add_f32 {vr(T+6,2)}, {vr(T+6,2)}, {vr(O[q]+i,2)}")
        a(f"v_add_f32 v{T+6}, v{T+6}, v{T+7}")
        a(f"v_fma_f32 v{T+6}, v{T+6}, 0, v{O[q]+12}")
        a(f"v_cmp_nle_f32 s[{50+4*q}:{51+4*q}], s36, v{T+6}")
        a(f"v_cmp_nge_f32 s[{52+4*q}:{53+4*q}], s37, v{T+6}")
    a("s_or_b64 s[50:51], s[50:51], s[52:53]")
    a("s_or_b64 s[54:55], s[54:55], s[56:57]")
    a("s_or_b64 s[50:51], s[50:51], s[54:55]")
    a("s_and_b64 s[50:51], s[50:51], s[46:47]")
    a("s_cbranch_scc1 Lfallback")
    for q in range(2):
        for i in range(0, 12, 2):
            a(f"v_pk_mul_f32 {vr(O[q]+i,2)}, {vr(O[q]+i,2)}, {vr(T+2+2*q,2)} op_sel_hi:[1,0]")
        for i in range(6):
            a(f"v_cvt_pk_bf16_f32 v{S[1]+8*q+i}, v{O[q]+2*i}, v{O[q]+2*i+1}")
        a(f"buffer_store_dwordx4 {vr(S[1]+8*q,4)}, v{T+1}, s[20:23], s{34+4*q} offen sc1")
    a("s_mov_b32 exec_hi, 0")
    for q in range(2):
        a(f"buffer_store_dwordx2 {vr(S[1]+8*q+4,2)}, v{T}, s[20:23], s{35+4*q} offen sc1")
    a("s_mov_b64 exec, -1")
    a("s_barrier")
    a("s_lshl_b32 s33, s30, 2")
    a("s_add_u32 s33, s33, s28")
    a("s_lshl_b32 s33, s33, 2")
    a("s_lshr_b32 s34, s29, 3")
    a("s_add_u32 s33, s33, s34")
    a(f"s_mul_i32 s33, s33, {CFG['ls']//4}")
    a("s_and_b32 s34, s29, 7")
    a("s_add_u32 s33, s33, s34")
    a("s_lshl_b32 s33, s33, 2")
    a(f"s_add_u32 s33, s33, {F2}")
    ssignal(a, 33, 20)
    stamp(a, 8)

    ACC, AR, WF, RS = 12, 32, 112, 192
    a("v_lshlrev_b32 v1, 4, v0")
    a("v_and_b32 v4, 15, v0")
    a("v_lshrrev_b32 v5, 4, v0")
    a("s_lshl_b32 s33, s29, 2")
    a("s_add_u32 s33, s33, s28")
    a("s_mul_i32 s34, s33, 20480")
    a(f"s_add_u32 s34, s34, {OFF_O}")
    a("v_add_u32 v6, 61440, v1")
    a("v_lshlrev_b32 v7, 3, v0")
    a("v_lshlrev_b32 v8, 4, v4")
    a("v_lshl_add_u32 v9, v5, 10, v8")
    a("v_lshrrev_b32 v10, 1, v5")
    a("v_lshl_add_u32 v8, v10, 9, v8")
    a("v_and_b32 v10, 1, v5")
    a("v_lshl_add_u32 v8, v10, 3, v8")
    a("s_lshr_b32 s35, s33, 1")
    a("s_mul_i32 s35, s35, 40960")
    a("s_and_b32 s36, s33, 1")
    a("s_lshl_b32 s36, s36, 8")
    a("s_add_u32 s35, s35, s36")
    a("s_mul_i32 s36, s30, 5120")
    a("s_add_u32 s35, s35, s36")
    a(f"s_add_u32 s35, s35, {OFF_H}")
    a("s_add_u32 s36, s35, 4096")
    a("v_lshlrev_b32 v10, 3, v4")
    a("s_lshl_b32 s37, s33, 10")
    a("s_lshl_b32 s39, s30, 7")
    a("s_add_u32 s37, s37, s39")
    a(f"s_add_u32 s37, s37, {OFF_ST}")
    a("v_mov_b32 v11, 0x3f803f80")
    def wreads(t, R, ads):
        s, st = t >> 2, t & 3
        sl = s % R
        F = WF + 20 * (t & 3)
        return [f"ds_read_b128 {vr(F+4*tt,4)}, v{ads[sl//3]} offset:{(sl%3)*20480+st*5120+1024*tt}" for tt in range(5)]
    for t in range(2):
        for r in wreads(t, 5, (1, 6)): a(r)
    for i in range(10):
        a(f"v_lshlrev_b32 v{ACC+2*i}, 16, v{XR+i}")
        a(f"v_and_b32 v{ACC+2*i+1}, 0xffff0000, v{XR+i}")
    a(f"s_mul_i32 s33, s29, {4*CFG['ls']}")
    a(f"s_add_u32 s33, s33, {F2}")
    only_h0(a, lambda: spoll(a, 33, [8, 8, 8, 8]))
    a("s_barrier")
    stamp(a, 9)
    vq = []
    def aload(i):
        if i < 16:
            r = [f"buffer_load_dwordx4 {vr(AR+4*i,4)}, v1, s[20:23], s34 offen offset:{1024*(i&3)} sc1"]
        else:
            r = [f"buffer_load_dwordx2 {vr(AR+4*i+2*e,2)}, v7, s[20:23], s34 offen offset:{1024*(i&3)+512*e} sc1" for e in range(2)]
        vq.extend([i] * len(r))
        if i & 3 == 3: r.append("s_add_u32 s34, s34, 4096")
        return r
    N0 = 11
    for i in range(N0):
        for x in aload(i): a(x)
    for t in range(20):
        F = WF + 20 * (t & 3)
        a(f"s_waitcnt vmcnt({sum(1 for x in vq if x > t)}) lgkmcnt({5 if t < 19 else 0})")
        rd = wreads(t + 2, 5, (1, 6)) if t < 18 else []
        for tt in range(5):
            d = vr(ACC + 4 * tt, 4)
            a(f"v_mfma_f32_16x16x32_bf16 {d}, {vr(F+4*tt,4)}, {vr(AR+4*t,4)}, {d}")
            if rd: a(rd[tt])
            if tt == 0 and t + N0 < 20:
                for x in aload(t + N0): a(x)
    stamp(a, 10)
    a("v_mov_b32 v2, 0")
    a("v_mov_b32 v3, 0")
    a("s_nop 2")
    for i in range(10):
        a(f"v_cvt_pk_bf16_f32 v{RS+i}, v{ACC+2*i}, v{ACC+2*i+1}")
        if i == 3: a(f"buffer_store_dwordx4 {vr(RS,4)}, v9, s[20:23], s35 offen sc1")
        if i == 7: a(f"buffer_store_dwordx4 {vr(RS+4,4)}, v9, s[20:23], s35 offen offset:512 sc1")
    a(f"buffer_store_dwordx2 {vr(RS+8,2)}, v8, s[20:23], s36 offen sc1")
    for i in range(10):
        a(f"v_dot2_f32_bf16 v2, v{RS+i}, v11, v2")
        a(f"v_dot2_f32_bf16 v3, v{RS+i}, v{RS+i}, v3")
    a("s_nop 2")
    for sw in ("v_permlane32_swap_b32", "v_permlane16_swap_b32"):
        a("v_mov_b32 v4, v2")
        a("v_mov_b32 v5, v3")
        a("s_nop 1")
        a(f"{sw} v2, v4")
        a(f"{sw} v3, v5")
        a("v_add_f32 v2, v2, v4")
        a("v_add_f32 v3, v3, v5")
    a("s_mov_b64 exec, 0xffff")
    a("buffer_store_dwordx2 v[2:3], v10, s[20:23], s37 offen sc1")
    a("s_mov_b64 exec, -1")
    a("s_barrier")
    for i in range(10):
        a(f"v_lshlrev_b32 v4, 16, v{RS+i}")
        a(f"v_and_b32 v5, 0xffff0000, v{RS+i}")
        a(f"v_pk_add_f32 {vr(RES+2*i,2)}, {vr(RES+2*i,2)}, v[4:5]")
    a("s_lshl_b32 s33, s29, 2")
    a("s_add_u32 s33, s33, s28")
    a(f"s_mul_i32 s33, s33, {CFG['ls']//4}")
    a("s_add_u32 s33, s33, s30")
    a("s_lshl_b32 s33, s33, 2")
    a(f"s_add_u32 s33, s33, {F3}")
    ssignal(a, 33, 21)
    stamp(a, 11)
    a("v_mov_b32 v30, s100")
    a("v_mov_b32 v31, 0")
    a("s_cmp_ge_u32 s32, 28")
    a("s_cbranch_scc1 Lc4skip")

    ACC, AR, NA, WF, CO, SP = 32, 96, 12, 144, 176, 184
    a("v_and_b32 v2, 31, v0")
    a("v_lshrrev_b32 v3, 5, v0")
    a("v_bfe_u32 v4, v0, 2, 2")
    a("v_lshl_add_u32 v5, v3, 3, v4")
    a("v_lshlrev_b32 v5, 8, v5")
    a("v_bfe_u32 v6, v0, 4, 1")
    a("v_lshl_add_u32 v5, v6, 5, v5")
    a("v_and_b32 v6, 3, v0")
    a("v_lshl_add_u32 v5, v6, 3, v5")
    a("v_lshl_add_u32 v16, v4, 6, v5")
    for b in range(1, 4): a(f"v_xor_b32 v{16+b}, {64*b}, v16")
    for b in range(4):
        a(f"v_add_u32 v{12+b}, 102400, v{16+b}")
        a(f"v_add_u32 v{20+b}, 61440, v{16+b}")
    a("v_lshlrev_b32 v6, 3, v2")
    a("s_lshl_b32 s56, s63, 10")
    a(f"s_add_u32 s56, s56, {OFF_CO}")
    a("s_lshl_b32 s33, s62, 2")
    a("s_add_u32 s33, s33, s28")
    a("s_mul_i32 s34, s33, 40960")
    a(f"s_add_u32 s34, s34, {OFF_H}")
    a("s_lshl_b32 s35, s33, 11")
    a(f"s_add_u32 s35, s35, {OFF_ST}")
    a("v_and_b32 v7, 15, v0")
    a("v_lshlrev_b32 v7, 3, v7")
    a("v_lshl_add_u32 v7, v3, 9, v7")
    a("v_bfe_u32 v4, v0, 4, 1")
    a("v_lshl_add_u32 v7, v4, 10, v7")
    a("v_bfe_u32 v4, v0, 4, 1")
    a(f"v_mul_u32_u24 v4, {54*1024}, v4")
    a("v_lshl_add_u32 v4, v3, 8, v4")
    a("v_and_b32 v5, 15, v0")
    a("v_lshl_add_u32 v8, v5, 4, v4")
    a(f"s_mul_i32 s36, s33, {2*54*1024}")
    a("s_lshl_b32 s37, s63, 10")
    a("s_add_u32 s36, s36, s37")
    a(f"s_add_u32 s36, s36, {OFF_G}")
    a("s_lshl_b32 s58, s33, 4")
    a("s_add_u32 s58, s58, s63")
    a("s_lshl_b32 s58, s58, 7")
    a(f"s_add_u32 s58, s58, {F4}")
    a(f"s_add_u32 s57, s58, {FR}")

    k0 = -2 * math.sqrt(2 / math.pi) * math.log2(math.e)
    def w1read(m):
        t, b = m >> 2, m & 3
        F = WF + 4 * (m & 7)
        ad = 12 + 4 * (t // 15) + b
        o = (t % 15) * 4096
        return [f"ds_read_b64_tr_b16 {vr(F,2)}, v{ad} offset:{o}", f"ds_read_b64_tr_b16 {vr(F+2,2)}, v{ad} offset:{o+1024}"]
    PD = 6
    for m in range(PD):
        for r in w1read(m): a(r)
    a(f"s_mul_i32 s37, s33, {2*CFG['ls']}")
    a(f"s_add_u32 s37, s37, {F3}")
    spoll(a, 37, [8, 8])
    a(f"s_mov_b32 s44, {f32(k0)}")
    a(f"s_mov_b32 s45, {f32(k0 * 0.044715)}")
    stamp(a, 12)
    def aload4(i):
        r = [f"buffer_load_dwordx4 {vr(AR+4*(i%NA),4)}, v1, s[20:23], s34 offen offset:{1024*(i&3)} sc1"]
        if i & 3 == 3: r.append("s_add_u32 s34, s34, 4096")
        return r
    N0 = NA - 1
    for i in range(N0):
        for x in aload4(i): a(x)
    extra = [f"buffer_load_dwordx2 {vr(SP+2*j,2)}, v7, s[20:23], s35 offen offset:{128*j} sc1" for j in range(4)]
    extra += [f"buffer_load_dwordx2 {vr(CO+2*b,2)}, v6, s[20:23], s56 offen offset:{256*b} sc1" for b in range(4)]
    fin = Asm()
    fin(f"v_pk_add_f32 {vr(SP,2)}, {vr(SP,2)}, {vr(SP+2,2)}")
    fin(f"v_pk_add_f32 {vr(SP+4,2)}, {vr(SP+4,2)}, {vr(SP+6,2)}")
    fin(f"v_pk_add_f32 {vr(SP,2)}, {vr(SP,2)}, {vr(SP+4,2)}")
    fin(f"v_mov_b32 v{SP+2}, v{SP}")
    fin(f"v_mov_b32 v{SP+3}, v{SP+1}")
    fin(f"v_permlane32_swap_b32 v{SP}, v{SP+2}")
    fin(f"v_permlane32_swap_b32 v{SP+1}, v{SP+3}")
    fin(f"v_pk_add_f32 {vr(SP,2)}, {vr(SP,2)}, {vr(SP+2,2)}")
    ln_final(fin, SP, SP + 1, SP + 2, SP + 4)
    fin(f"v_add_f32 v{SP+8}, v{SP+1}, v{SP+1}")
    fin(f"v_mul_f32 v{SP+6}, s44, v{SP+4}")
    fin(f"v_mul_f32 v{SP+7}, v{SP+4}, v{SP+4}")
    fin(f"v_mul_f32 v{SP+7}, v{SP+7}, v{SP+4}")
    fin(f"v_mul_f32 v{SP+7}, s45, v{SP+7}")
    fin = list(fin.lines)
    vq = list(range(N0))
    for m in range(160):
        t, b = m >> 2, m & 3
        if m + PD == 60: a("s_barrier")
        w = f"lgkmcnt({2 * min(PD - 1, 159 - m)})"
        if b == 0:
            w = f"vmcnt({len(vq) - 1 - vq.index(t)}) " + w
        a(f"s_waitcnt {w}")
        if m == 159: a("s_barrier")
        d = vr(ACC + 16 * b, 16)
        a(f"v_mfma_f32_32x32x16_bf16 {d}, {vr(WF+4*(m&7),4)}, {vr(AR+4*(t%NA),4)}, {'0' if t == 0 else d}")
        if m + PD < 160:
            for r in w1read(m + PD): a(r)
        if b == 1 and t + N0 < 40:
            for x in aload4(t + N0): a(x)
            vq.append(t + N0)
        if b == 3 and 2 <= t <= 9:
            a(extra.pop(0)); vq.append(-1)
        if t >= 20 and b in (0, 2, 3) and fin:
            a(fin.pop(0))
    assert not fin
    for b in range(4):
        d = vr(ACC + 16 * b, 16)
        a(f"v_mfma_f32_32x32x8_bf16 {d}, {vr(CO+2*b,2)}, {vr(SP+2,2)}, {d}")
    stamp(a, 13)
    a("s_nop 8")
    pr = lambda q: vr(q, 2)
    for b in range(4):
        if b == 2:
            a("s_cmp_eq_u32 s63, 13")
            a("s_cbranch_scc1 Lc4e")
        for g in range(2):
            r = ACC + 16 * b + 8 * g
            T0 = 96 + 8 * g
            for i in range(0, 8, 2): a(f"v_pk_mul_f32 {pr(T0+i)}, {pr(r+i)}, {pr(r+i)}")
            for i in range(0, 8, 2): a(f"v_pk_fma_f32 {pr(T0+i)}, {pr(T0+i)}, {pr(SP+6)}, {pr(SP+6)} op_sel:[0,1,0] op_sel_hi:[1,1,0]")
            for i in range(0, 8, 2): a(f"v_pk_mul_f32 {pr(T0+i)}, {pr(T0+i)}, {pr(r+i)}")
            for i in range(8): a(f"v_exp_f32 v{T0+i}, v{T0+i}")
            for i in range(0, 8, 2): a(f"v_pk_fma_f32 {pr(T0+i)}, {pr(T0+i)}, {pr(SP+8)}, {pr(SP+8)} op_sel_hi:[1,0,0]")
            for i in range(8): a(f"v_rcp_f32 v{T0+i}, v{T0+i}")
            for i in range(0, 8, 2): a(f"v_pk_mul_f32 {pr(r+i)}, {pr(r+i)}, {pr(T0+i)}")
            t = 112 + 4 * (g + 2 * (b & 1))
            for i in range(4):
                a(f"v_cvt_pk_bf16_f32 v{t+i}, v{r+2*i}, v{r+2*i+1}")
            a(f"buffer_store_dwordx4 {vr(t,4)}, v8, s[20:23], s36 offen offset:{512*g} sc1")
            if (b, g) == (2, 0): vsignal(a, 58, 3)
            if (b, g) == (3, 0): vsignal(a, 57, 4)
        if b < 3: a(f"s_add_u32 s36, s36, {(POS[b+1]-POS[b])*1024}")
    stamp(a, 14)
    a("s_waitcnt vmcnt(3)")
    a("s_branch Lc5")
    a.label("Lc4e")
    vsignal(a, 58, 0)
    vsignal(a, 57, 1)
    a("s_branch Lc5")
    a.label("Lc4skip")
    a("s_barrier")
    a.label("Lc5")
    stamp(a, 15)

    AR, NA, WF, OTH = 32, 8, 112, 172
    a("s_and_b32 s36, s28, 1")
    a("s_mul_i32 s37, s36, 5120")
    a("v_add_u32 v5, s37, v1")
    a("v_add_u32 v6, 61440, v5")
    a("v_add_u32 v7, 122880, v5")
    a("s_lshl_b32 s33, s29, 2")
    a("s_add_u32 s33, s33, s28")
    a(f"s_mul_i32 s34, s33, {54*1024}")
    a("s_xor_b32 s33, s33, 1")
    a(f"s_mul_i32 s35, s33, {54*1024}")
    a("s_lshl_b32 s36, s36, 10")
    a(f"s_add_u32 s36, s36, {OFF_G}")
    a("s_add_u32 s34, s34, s36")
    a("s_add_u32 s35, s35, s36")
    a("s_mul_i32 s36, s28, 5120")
    a(f"s_add_u32 s36, s36, {6*20480}")
    a("v_add_u32 v8, s36, v1")
    a("s_xor_b32 s36, s28, 1")
    a("s_mul_i32 s36, s36, 5120")
    a(f"s_add_u32 s36, s36, {6*20480}")
    a("v_add_u32 v9, s36, v1")
    srd(a, 16, POUT, 2048 * 1280)
    def gload(i):
        r = [f"buffer_load_dwordx4 {vr(AR+8*(i%NA)+4*h,4)}, v1, s[20:23], s{34+h} offen offset:{2048*(i&1)} sc1" for h in range(2)]
        if i & 1: r += ["s_add_u32 s34, s34, 4096", "s_add_u32 s35, s35, 4096"]
        return r
    def w2reads(i):
        sl = (i >> 1) % 8
        F = WF + 20 * (i % 3)
        return [f"ds_read_b128 {vr(F+4*tt,4)}, v{5+sl//3} offset:{(sl%3)*20480+(i&1)*10240+1024*tt}" for tt in range(5)]
    a("s_barrier")
    stamp(a, 16)
    N0 = CFG["n5"]
    for i in range(N0):
        for x in gload(i): a(x)
    for r in w2reads(0) + w2reads(1): a(r)
    for i in range(27):
        F = WF + 20 * (i % 3)
        if i == 14: stamp(a, 26)
        if i + 2 < 27 and (i & 1) == 0: a("s_barrier")
        if i in (4, 14, 20): stamp(a, {4: 25, 14: 27, 20: 28}[i])
        a(f"s_waitcnt vmcnt({2*min(N0 - 1, 26 - i)}) lgkmcnt({5 if i < 26 else 0})")
        rd = w2reads(i + 2) if i < 25 else []
        gl = gload(i + N0) if i + N0 < 27 else []
        for h in (1, 0):
            for tt in range(5):
                d = vr((RES if h == 0 else OTH) + 4 * tt, 4)
                c = "0" if (h == 1 and i == 0) else d
                a(f"v_mfma_f32_16x16x32_bf16 {d}, {vr(F+4*tt,4)}, {vr(AR+8*(i%NA)+4*h,4)}, {c}")
                if h == 1 and rd: a(rd[tt])
                if h == 0 and gl and tt in (0, 2):
                    for x in (gl[:1] if tt == 0 else gl[1:]): a(x)
    stamp(a, 17)
    a("s_nop 2")
    for tt in range(5): a(f"ds_write_b128 v8, {vr(OTH+4*tt,4)} offset:{1024*tt}")
    a("s_waitcnt lgkmcnt(0)")
    a("s_barrier")
    for tt in range(5): a(f"ds_read_b128 {vr(OTH+4*tt,4)}, v9 offset:{1024*tt}")
    for tt in range(5):
        a(f"s_waitcnt lgkmcnt({4-tt})")
        for j in (0, 2): a(f"v_pk_add_f32 {vr(RES+4*tt+j,2)}, {vr(RES+4*tt+j,2)}, {vr(OTH+4*tt+j,2)}")
    for i in range(10):
        a(f"v_cvt_pk_bf16_f32 v{RS+i}, v{RES+2*i}, v{RES+2*i+1}")
        if i == 3: a(f"buffer_store_dwordx4 {vr(RS,4)}, v252, s[16:19], s59 offen")
        if i == 7: a(f"buffer_store_dwordx4 {vr(RS+4,4)}, v252, s[16:19], s59 offen offset:16")
    a(f"buffer_store_dwordx2 {vr(RS+8,2)}, v253, s[16:19], s59 offen offset:128")
    finish(a)

    a.label("Lfallback")
    C = 188
    a("s_mov_b64 s[46:47], 0")
    a(f"v_subrev_u32 v{AK}, {4*40960}, v{AK}")
    a(f"v_subrev_u32 v22, {4*40960}, v22")
    a(f"v_subrev_u32 v{AV}, {4*40960}, v{AV}")
    a(f"v_add_u32 v{T+8}, 5120, v{AV}")
    a(f"v_add_u32 v{T+9}, {5120+2560}, v{AV}")
    a(f"v_add_u32 v22, 4096, v22")
    for ps in range(2):
        a(f"s_mul_i32 s42, s29, {UNIT}")
        a(f"s_add_u32 s42, s42, {32*UNIT}")
        a("s_mov_b32 s43, 16")
        if ps == 0:
            a(f"v_mov_b32 v{T+6}, 0xff800000")
            a(f"v_mov_b32 v{T+7}, 0xff800000")
        else:
            for i in range(32): a(f"v_mov_b32 v{O[0]+i}, 0")
        a.label(f"Lfb{ps}")
        for t in range(4):
            a(f"buffer_load_dwordx4 {vr(KA[0]+4*t,4)}, v{AK}, s[20:23], s42 offen offset:{512*t} sc1")
        a(f"buffer_load_dwordx4 {vr(KB[0],4)}, v22, s[20:23], s42 offen sc1")
        if ps:
            a("s_mov_b64 exec, s[40:41]")
            for j in range(8):
                a(f"buffer_load_dwordx4 {vr(V[0]+4*j,4)}, v{T+8+(j>>2)}, s[20:23], s42 offen offset:{640*(j&3)} sc1")
            a("s_mov_b64 exec, -1")
        a("s_waitcnt vmcnt(0)")
        for q in range(2):
            for t in range(4):
                d = vr(S[t], 16)
                a(f"v_mfma_f32_32x32x16_bf16 {d}, {vr(KA[0]+4*t,4)}, {vr(QA[q],4)}, {vr(C+16*q,16) if ps else '0'}")
                a(f"v_mfma_f32_32x32x8_bf16 {d}, {vr(KB[0]+2*(t&1),2)}, {vr((QBB if t&2 else QBA)[q],2)}, {d}")
            a("s_nop 15")
            if ps == 0:
                for i in range(32):
                    a(f"v_max3_f32 v{T+6+q}, v{T+6+q}, v{S[0]+2*i}, v{S[0]+2*i+1}")
            else:
                for i in range(64): a(f"v_exp_f32 v{S[0]+i}, v{S[0]+i}")
                a("s_nop 1")
                for j in range(8):
                    a(f"v_smfmac_f32_32x32x32_bf16 {vr(O[q],16)}, {vr(V[0]+4*j,4)}, {vr(S[0]+8*j,8)}, v{IDX}")
        a("s_add_u32 s42, s42, 10240")
        a("s_sub_u32 s43, s43, 1")
        a("s_cmp_lg_u32 s43, 0")
        a(f"s_cbranch_scc1 Lfb{ps}")
        if ps == 0:
            for q in range(2):
                a(f"v_mov_b32 v{T+2}, v{T+6+q}")
                a("s_nop 1")
                a(f"v_permlane32_swap_b32 v{T+6+q}, v{T+2}")
                a(f"v_max_f32 v{T+6+q}, v{T+6+q}, v{T+2}")
                for i in range(16):
                    a(f"v_sub_f32 v{C+16*q+i}, 0, v{T+6+q}")
    a("s_nop 15")
    a("s_branch Lchk")

def build():
    a = Asm()
    a(f".globl {KN}")
    a(".p2align 8")
    a(f".type {KN},@function")
    a.label(KN)
    a("s_cmp_ge_u32 s2, 256")
    a("s_cbranch_scc1 Lend")
    a("s_load_dwordx16 s[64:79], s[0:1], 0")
    a("s_load_dwordx4 s[80:83], s[0:1], 64")
    a("s_load_dwordx2 s[84:85], s[0:1], 80")
    a("v_lshrrev_b32 v1, 6, v0")
    a("v_and_b32 v0, 63, v0")
    a("s_getreg_b32 s60, hwreg(HW_REG_XCC_ID, 0, 4)")
    a("v_readfirstlane_b32 s3, v1")
    a(f"v_mov_b32 v201, {IDS}")
    if CFG["prof"]:
        a("v_mov_b32 v255, 0")
        stamp(a, 0)
    if CFG["cp0"]:
        CFG["_hi"][KN] = -1
        a("s_cmp_lg_u32 s3, 7")
        a("s_cbranch_scc1 Lnocp")
        code_prefetch(a, KN, CFG["cp0"], 204)
        a.label("Lnocp")
    a("s_and_b32 s28, s3, 3")
    a("s_cmp_lg_u32 s3, 0")
    a("s_waitcnt lgkmcnt(0)")
    a("s_cbranch_scc1 Lnoask")
    ticket_ask(a)
    a.label("Lnoask")
    srd(a, 20, PWS, WS_SIZE)
    a("s_cmp_lt_u32 s3, 4")
    a("s_cbranch_scc1 Lc1")
    p1_helper(a)
    a("s_branch Lh2")
    a.label("Lc1")
    p1_compute(a)
    compute_rest(a)
    helper_rest(a)
    a.label("Lend")
    a("s_endpgm")
    p1_spare(a)
    a.label("Lcode_end")
    errs = check(a.lines)
    for e in errs: print(e, file=sys.stderr)
    head = open(f"cdna_kernels/{NAME}.s.ref").read().split("; Override")[0]
    head += "; @launch grid=(256,1,1) block=(512,1,1) lds=163840\n"
    d = f""".section .rodata,"a"
.p2align 6
.amdhsa_kernel {KN}
  .amdhsa_next_free_vgpr 256
  .amdhsa_next_free_sgpr 102
  .amdhsa_accum_offset 256
  .amdhsa_group_segment_fixed_size 0
  .amdhsa_kernarg_size 88
  .amdhsa_user_sgpr_count 2
  .amdhsa_user_sgpr_kernarg_segment_ptr 1
  .amdhsa_system_sgpr_workgroup_id_x 1
.end_amdhsa_kernel
"""
    return head + '.amdgcn_target "amdgcn-amd-amdhsa--gfx950"\n.text\n' + a.text() + d, errs

if __name__ == "__main__":
    out = sys.argv[1] if len(sys.argv) > 1 else f"cdna_kernels/{NAME}.s"
    for kv in sys.argv[2:]:
        k, v = kv.split("="); CFG[k] = int(v)
    txt, errs = build()
    open(out, "w").write(txt)
    print("written", out, len(txt), "bytes; hazards:", len(errs))
```

```python
import sys, math, struct
from asmlib import Asm, vr, sr, check

NAME = "sequential_preLN__softmax_full_mha__dense_activation_gelu__prompt"
KN = NAME + "_kernel"
UNIT = 163840
OFF_O = 64 * UNIT
OFF_H = OFF_O + 2621440
OFF_G = OFF_H + 2621440
OFF_WO = OFF_G + 128 * 54 * 1024
OFF_W2 = OFF_WO + 640 * 1280
OFF_ST = OFF_W2 + 1728 * 1280
OFF_CO = OFF_ST + 2048 * 64
OFF_TS = OFF_CO + 16384
OFF_CP = OFF_TS + 32768
OFF_F = OFF_CP + 16 * 7680
F2H, F0, F1 = [OFF_F + 32768 * i for i in range(3)]
FR = 131072
F2, F3, F4 = [OFF_F + 98304 + FR * i for i in range(3)]
WS_END = F4 + 4 * FR
POS = [0, 14, 28, 41]
WS_SIZE = WS_END + 65536
OFF_PROF = 64 << 20
PX, PWQKV, PWO, PW1, PB1, PW2, PB2, POUT, PDBG, PWS = 64, 66, 68, 72, 74, 76, 78, 80, 82, 84
SPIN = 200000

CFG = dict(rot1=0, prof=0, n01=20, prio=1, pf=1, thr=8, cpf=1, ps=6, sl1=0, fpl=4, xpf=0, n5=6, ls=128, sl4=2, pt=1, cp0=2, x1=0, sg=6, _hi={})

def f32(x):
    return "0x%08x" % struct.unpack("<I", struct.pack("<f", x))[0]

def srd(a, d, p, size, off=0):
    if off:
        a(f"s_add_u32 s{d}, s{p}, {off}")
        a(f"s_addc_u32 s{d+1}, s{p+1}, 0")
    else:
        a(f"s_mov_b32 s{d}, s{p}")
        a(f"s_mov_b32 s{d+1}, s{p+1}")
    a(f"s_mov_b32 s{d+2}, {size}")
    a(f"s_mov_b32 s{d+3}, 0x20000")

def stamp(a, i):
    if CFG["prof"]:
        a("s_memrealtime s[96:97]")
        a("s_memtime s[98:99]")
        a("s_waitcnt lgkmcnt(0)")
        a(f"v_writelane_b32 v255, s96, {i}")
        a(f"v_writelane_b32 v255, s98, {32+i}")

def finish(a):
    if CFG["prof"]:
        a("s_waitcnt vmcnt(0)")
        stamp(a, 31)
        a("s_mov_b64 exec, -1")
        srd(a, 92, PWS, "0x8000000")
        a("s_lshl_b32 s96, s2, 3")
        a("s_add_u32 s96, s96, s3")
        a("s_lshl_b32 s96, s96, 8")
        a(f"s_add_u32 s96, s96, {OFF_PROF}")
        a("v_lshlrev_b32 v254, 2, v0")
        a("buffer_store_dword v255, v254, s[92:95], s96 offen")
        if CFG["prof"] > 1:
            a("s_add_u32 s96, s96, 0x80000")
            a("buffer_store_dword v253, v254, s[92:95], s96 offen")
    a("s_endpgm")

def bf16_round(a, dst, src):
    a(f"v_cvt_pk_bf16_f32 v{dst}, v{src}, v{src}")
    a(f"v_lshlrev_b32 v{dst}, 16, v{dst}")

_uid = [0]
def uid(p):
    _uid[0] += 1
    return f"U{p}{_uid[0]}"

def signal(a, sflag, vt, st=None):
    a(f"v_mov_b32 v{vt}, s100")
    a(f"v_lshlrev_b32 v{vt+1}, 2, s28")
    if st is not None: stamp(a, st)
    a("s_waitcnt vmcnt(0)")
    a("s_mov_b64 exec, 1")
    a(f"buffer_store_dword v{vt}, v{vt+1}, s[20:23], s{sflag} offen sc1")
    a("s_mov_b64 exec, -1")

def ssignal(a, sflag, st=None, n=0):
    if st is not None: stamp(a, st)
    a(f"s_waitcnt vmcnt({n})")
    a(f"s_atomic_swap s100, s[{PWS}:{PWS+1}], s{sflag}")

def vsignal(a, sflag, n):
    a(f"s_waitcnt vmcnt({n})")
    a("s_mov_b64 exec, 1")
    a(f"buffer_store_dword v30, v31, s[20:23], s{sflag} offen sc1")
    a("s_mov_b64 exec, -1")

def poll(a, va, nl, width=1, vd=4, sleep=0):
    L, E = uid("p"), uid("e")
    a(f"s_mov_b32 s60, {SPIN}")
    m = (1 << nl) - 1
    if nl < 64:
        a(f"s_mov_b32 exec_lo, {hex(m & 0xffffffff)}")
        a(f"s_mov_b32 exec_hi, {hex(m >> 32)}")
    a.label(L)
    if sleep: a(f"s_sleep {sleep}")
    op = {1: "dword", 2: "dwordx2", 4: "dwordx4"}[width]
    a(f"buffer_load_{op} {vr(vd,width)}, v{va}, s[20:23], 0 offen sc1")
    a("s_sub_u32 s60, s60, 1")
    a(f"s_cbranch_scc1 {E}")
    a("s_waitcnt vmcnt(0)")
    tagcheck(a, vd, width)
    a(f"s_cbranch_scc1 {L}")
    a.label(E)
    a("s_waitcnt vmcnt(0)")
    a("s_mov_b64 exec, -1")

def tagcheck(a, vd, width):
    for i in range(width):
        a(f"v_xor_b32 v{vd+i}, s100, v{vd+i}")
    if width == 2: a(f"v_or_b32 v{vd}, v{vd}, v{vd+1}")
    if width == 4:
        a(f"v_or3_b32 v{vd}, v{vd}, v{vd+1}, v{vd+2}")
        a(f"v_or_b32 v{vd}, v{vd}, v{vd+3}")
    a(f"v_cmp_ne_u32 vcc, 0, v{vd}")
    a("s_nop 1")
    a("s_cmp_lg_u64 vcc, 0")

def spoll(a, soff, counts):
    L, E = uid("p"), uid("e")
    regs = [4, 40, 48, 88]
    a(f"s_add_u32 s86, s{PWS}, s{soff}")
    a(f"s_addc_u32 s87, s{PWS+1}, 0")
    a(f"s_mov_b32 s60, {SPIN}")
    a.label(L)
    for i in range(len(counts)):
        a(f"s_load_dwordx8 s[{regs[i]}:{regs[i]+7}], s[86:87], {CFG['ls']*i} glc")
    a("s_sub_u32 s60, s60, 1")
    a(f"s_cbranch_scc1 {E}")
    a("s_waitcnt lgkmcnt(0)")
    for i, n in enumerate(counts):
        for j in range(0, n, 2):
            a(f"s_cmp_lg_u64 s[{regs[i]+j}:{regs[i]+j+1}], s[100:101]")
            a(f"s_cbranch_scc1 {L}")
    a.label(E)
    a("s_waitcnt lgkmcnt(0)")

def tag_load(a):
    srd(a, 24, PDBG, 256)
    a("v_mov_b32 v205, 0")
    a("buffer_load_dword v204, v205, s[24:27], 0 offen sc1")

def tag_take(a):
    L, E = uid("z"), uid("z")
    a(f"s_mov_b32 s60, {SPIN}")
    a.label(L)
    a("v_readfirstlane_b32 s100, v204")
    a("s_nop 0")
    a("s_cmp_lg_u32 s100, 0")
    a(f"s_cbranch_scc1 {E}")
    a("buffer_load_dword v204, v205, s[24:27], 0 offen sc1")
    a("s_waitcnt vmcnt(0)")
    a("s_sub_u32 s60, s60, 1")
    a(f"s_cbranch_scc0 {L}")
    a.label(E)
    a("s_mov_b32 s101, s100")

def only_h0(a, body):
    L = uid("h")
    a("s_cmp_lg_u32 s28, 0")
    a(f"s_cbranch_scc1 {L}")
    body()
    a.label(L)

def relayout_task(a):
    a("s_and_b32 s34, s54, 7")
    a("s_lshr_b32 s35, s54, 3")
    a("s_and_b32 s36, s35, 3")
    a("s_mul_i32 s48, s36, 14")
    a("s_lshr_b32 s49, s35, 2")
    a("s_add_u32 s48, s48, s49")
    a("s_cmp_eq_u32 s36, 3")
    a("s_subb_u32 s48, s48, 0")
    a("s_sub_u32 s36, s35, 54")
    a("s_cselect_b32 s48, s48, s36")
    a(f"s_cselect_b32 s12, s{PW2}, s{PWO}")
    a(f"s_cselect_b32 s13, s{PW2+1}, s{PWO+1}")
    a(f"s_mov_b32 s14, {640*1280}")
    a(f"s_cselect_b32 s14, {1728*1280}, s14")
    a("s_mov_b32 s15, 0x20000")
    a("s_cselect_b32 s35, s35, s36")
    a("s_cselect_b32 s37, 54, 20")
    a(f"s_mov_b32 s56, {OFF_WO}")
    a(f"s_cselect_b32 s56, {OFF_W2}, s56")
    a("s_cselect_b32 s44, 16, 20")
    a("s_cselect_b32 s45, 32, 40")
    a("s_mul_i32 s37, s37, s34")
    a("s_add_u32 s37, s37, s48")
    a("s_mul_i32 s37, s37, 5120")
    a("s_add_u32 s56, s56, s37")
    a("s_cmp_ge_u32 s54, 560")
    a("s_cselect_b32 s44, 80, s44")
    a("s_cselect_b32 s45, 160, s45")
    a("s_cselect_b32 s46, 20, 4")
    a("s_cselect_b32 s47, 40, 8")
    a("s_cselect_b32 s36, -2544, 0")
    a("s_mul_i32 s50, s35, s45")
    a("s_add_u32 s50, s50, s36")
    a("s_add_u32 s51, s50, s47")
    a("s_mul_i32 s50, s50, 1280")
    a("s_mul_i32 s51, s51, 1280")
    a("s_mul_i32 s34, s34, 160")
    a("s_add_u32 s50, s50, s34")
    a("s_add_u32 s51, s51, s34")
    a("v_lshrrev_b32 v2, 5, v0")
    a("v_mul_u32_u24 v2, s44, v2")
    a("v_bfe_u32 v3, v0, 4, 1")
    a("v_mul_u32_u24 v3, s46, v3")
    a("v_add_u32 v2, v2, v3")
    a("v_mul_u32_u24 v2, 1280, v2")
    a("v_and_b32 v3, 15, v0")
    a("v_lshl_add_u32 v9, v3, 1, v2")
    a("v_bfe_u32 v3, v0, 2, 2")
    a("v_mul_u32_u24 v3, 24, v3")
    a("v_add_u32 v8, v9, v3")

def relayout_load(a):
    R = 32
    for tt in range(5):
        for e in range(8):
            op = "buffer_load_short_d16_hi" if e & 1 else "buffer_load_ushort"
            va, o = (8, 8 * tt) if tt < 4 else (9, 128)
            a(f"{op} v{R+8*tt+4*(e&1)+(e>>1)}, v{va}, s[12:15], s{50+(e>>2)} offen offset:{1280*(e&3)+o}")

def relayout_store(a):
    R = 32
    a("v_add_u32 v2, 4096, v1")
    a("s_mov_b32 s33, 0xffff0000")
    for tt in range(5):
        a(f"s_waitcnt vmcnt({32-7*tt})")
        for p in range(4):
            a(f"v_and_or_b32 v{R+8*tt+p}, v{R+8*tt+4+p}, s33, v{R+8*tt+p}")
        if tt < 4: a(f"buffer_store_dwordx4 {vr(R+8*tt,4)}, v1, s[20:23], s56 offen offset:{1024*tt} sc1")
        else: a(f"buffer_store_dwordx4 {vr(R+8*tt,4)}, v2, s[20:23], s56 offen sc1")

STAT = 131072
IDS = STAT + 3072

def ticket(a):
    L, E, X = uid("t"), uid("t"), uid("t")
    a("s_cmp_lg_u32 s3, 0")
    a(f"s_cbranch_scc1 {X}")
    a("s_mov_b32 s61, 7")
    a.label(L)
    a("s_waitcnt lgkmcnt(0)")
    a("s_cmp_lt_u32 s57, 32")
    a(f"s_cbranch_scc1 {E}")
    a("s_sub_u32 s61, s61, 1")
    a(f"s_cbranch_scc1 {E}")
    a("s_add_u32 s60, s60, 1")
    ticket_ask(a)
    a(f"s_branch {L}")
    a.label(E)
    a("s_and_b32 s57, s57, 31")
    a("s_lshl_b32 s57, s57, 3")
    a("s_add_u32 s57, s57, s60")
    a("v_mov_b32 v200, s57")
    a("ds_write_b32 v201, v200")
    a("s_waitcnt lgkmcnt(0)")
    a.label(X)
    a("s_barrier")
    a("ds_read_b32 v200, v201")
    a("s_waitcnt lgkmcnt(0)")
    a("v_readfirstlane_b32 s32, v200")
    a("s_nop 0")
    if CFG["prof"]:
        a("s_nop 2")
        a("v_writelane_b32 v255, s32, 62")
    a("s_and_b32 s31, s32, 7")
    a("s_lshr_b32 s32, s32, 3")
    a("s_and_b32 s33, s31, 1")
    a("s_mul_i32 s33, s33, 30")
    a("s_add_u32 s33, s33, s32")
    a("s_lshr_b32 s30, s33, 2")
    a("s_and_b32 s33, s33, 3")
    a("s_lshr_b32 s29, s31, 1")
    a("s_lshl_b32 s29, s29, 2")
    a("s_add_u32 s29, s29, s33")

def ticket_ask(a):
    a("s_and_b32 s60, s60, 7")
    a("s_lshl_b32 s57, s60, 5")
    a(f"s_add_u32 s86, s{PDBG}, s57")
    a(f"s_addc_u32 s87, s{PDBG+1}, 0")
    a("s_mov_b32 s57, 1")
    a("s_atomic_add s57, s[86:87], 16 glc")

def stats_issue(a):
    a("s_cmp_ge_u32 s3, 2")
    a("s_cbranch_scc1 Lst_w")
    srd(a, 12, PX, 2048 * 1280)
    a("v_lshrrev_b32 v228, 4, v0")
    a("v_and_b32 v229, 15, v0")
    a("v_mul_u32_u24 v230, 1280, v228")
    a("v_lshl_add_u32 v230, v229, 4, v230")
    a("s_lshl_b32 s33, s2, 1")
    a("s_add_u32 s33, s33, s3")
    a("s_mul_i32 s34, s33, 5120")
    for i in range(5):
        a(f"buffer_load_dwordx4 {vr(208+4*i,4)}, v230, s[12:15], s34 offen offset:{256*i}")
    a("s_branch Lst_i")
    a.label("Lst_w")
    srd(a, 12, PWQKV, 640 * 3840)
    a("v_lshrrev_b32 v228, 3, v0")
    a("v_and_b32 v229, 7, v0")
    a("v_mul_u32_u24 v230, 3840, v228")
    a("v_lshl_add_u32 v230, v229, 4, v230")
    a("s_and_b32 s33, s2, 7")
    a("s_lshl_b32 s33, s33, 1")
    a("s_add_u32 s33, s33, s3")
    a("s_sub_u32 s33, s33, 2")
    a(f"s_mul_i32 s34, s33, {40*3840}")
    a("s_lshr_b32 s35, s2, 3")
    a("s_min_u32 s35, s35, 29")
    a("s_lshl_b32 s36, s35, 7")
    a("s_add_u32 s34, s34, s36")
    for i in range(5):
        a(f"buffer_load_dwordx4 {vr(208+4*i,4)}, v230, s[12:15], s34 offen")
        a(f"s_add_u32 s34, s34, {8*3840}")
    a.label("Lst_i")
    a("s_mov_b32 s52, s33")
    a("s_mov_b32 s53, s35")

def stats_finish(a):
    W_, E_ = uid("w"), uid("w")
    a("s_cmp_ge_u32 s3, 2")
    a(f"s_cbranch_scc1 {W_}")
    a("v_mov_b32 v234, 0x3f803f80")
    for i in range(4): a(f"v_mov_b32 v{226+10+i}, 0")
    a("s_waitcnt vmcnt(0)")
    for i in range(20):
        a(f"v_dot2_f32_bf16 v{226+10+(i&1)}, v{208+i}, v234, v{226+10+(i&1)}")
        a(f"v_dot2_f32_bf16 v{226+12+(i&1)}, v{208+i}, v{208+i}, v{226+12+(i&1)}")
    a("s_nop 2")
    a("v_add_f32 v236, v236, v237")
    a("v_add_f32 v238, v238, v239")
    for r in (8, 4, 2, 1):
        a("s_nop 1")
        a(f"v_add_f32_dpp v236, v236, v236 row_ror:{r} row_mask:0xf bank_mask:0xf")
        a(f"v_add_f32_dpp v238, v238, v238 row_ror:{r} row_mask:0xf bank_mask:0xf")
    ln_final(a, 236, 238, 244, 246)
    a("v_and_b32 v230, 48, v0")
    a("s_lshl_b32 s54, s52, 6")
    a(f"s_add_u32 s54, s54, {OFF_TS}")
    a("s_mov_b32 exec_lo, 0x00010001")
    a("s_mov_b32 exec_hi, 0x00010001")
    a("buffer_store_dwordx4 v[244:247], v230, s[20:23], s54 offen sc1")
    a("s_mov_b64 exec, -1")
    a(f"s_branch {E_}")
    a.label(W_)
    a("v_mov_b32 v234, 0x3f80")
    a("v_mov_b32 v235, 0x3f800000")
    for i in range(8): a(f"v_mov_b32 v{226+10+i}, 0")
    a("s_waitcnt vmcnt(0)")
    for i in range(5):
        for j in range(4):
            a(f"v_dot2_f32_bf16 v{226+10+2*j}, v{208+4*i+j}, v234, v{226+10+2*j}")
            a(f"v_dot2_f32_bf16 v{226+11+2*j}, v{208+4*i+j}, v235, v{226+11+2*j}")
    a("s_nop 2")
    for j in range(4): a(f"v_permlane32_swap_b32 v{226+10+j}, v{226+14+j}")
    for j in range(4): a(f"v_add_f32 v{226+10+j}, v{226+10+j}, v{226+14+j}")
    a("s_nop 0")
    for j in range(2): a(f"v_permlane16_swap_b32 v{226+10+j}, v{226+12+j}")
    for j in range(2): a(f"v_add_f32 v{226+10+j}, v{226+10+j}, v{226+12+j}")
    a("v_and_b32 v230, 7, v0")
    a("v_lshlrev_b32 v230, 5, v230")
    for j in range(2): a(f"v_add_f32_dpp v{226+10+j}, v{226+10+j}, v{226+10+j} row_ror:8 row_mask:0xf bank_mask:0xf")
    a("v_lshrrev_b32 v231, 4, v0")
    a("v_lshl_add_u32 v230, v231, 3, v230")
    a("s_mul_i32 s54, s52, 7680")
    a("s_lshl_b32 s55, s53, 8")
    a("s_add_u32 s54, s54, s55")
    a(f"s_add_u32 s54, s54, {OFF_CP}")
    a("buffer_store_dwordx2 v[236:237], v230, s[20:23], s54 offen sc1")
    a.label(E_)
    tag_load(a)

def stats_signal(a):
    a("s_waitcnt vmcnt(0)")
    tag_take(a)
    a("s_lshl_b32 s33, s2, 7")
    a(f"s_add_u32 s33, s33, {F0}")
    signal(a, 33, 202)

def code_prefetch(a, l0, n, v):
    P = uid("c")
    a("s_getpc_b64 s[90:91]")
    a.label(P)
    a(f"s_add_u32 s90, s90, {l0}-{P}")
    a(f"s_addc_u32 s91, s91, {CFG['_hi'].get(l0, 0)}")
    a(f"v_lshlrev_b32 v{v+3}, 7, v0")
    for i in range(n):
        a(f"v_min_u32 v{v}, Lcode_end-{l0}-4, v{v+3}")
        a(f"v_mov_b32 v{v+1}, s91")
        a(f"v_add_co_u32 v{v}, vcc, s90, v{v}")
        a(f"v_add_u32 v{v+3}, 8192, v{v+3}")
        a("s_nop 0")
        a(f"v_addc_co_u32 v{v+1}, vcc, 0, v{v+1}, vcc")
        a(f"global_load_dword v{v+2}, v[{v}:{v+1}], off")

def p1_spare(a):
    a.label("Lspare_h")
    tag_load(a)
    a("s_waitcnt vmcnt(0)")
    tag_take(a)
    a("s_branch Lspare")
    a.label("Lspare_c")
    stats_finish(a)
    stats_signal(a)
    a.label("Lspare")
    a("s_sub_u32 s29, s32, 30")
    a("s_lshl_b32 s29, s29, 3")
    a("s_add_u32 s29, s29, s31")
    a("s_cmp_ge_u32 s29, 14")
    a("s_cbranch_scc1 Lsp_done")
    srd(a, 12, PW1, 640 * 3456)
    srd(a, 16, PB1, 1728 * 2)
    a("v_lshrrev_b32 v2, 4, v0")
    a("v_and_b32 v3, 15, v0")
    a("v_mul_u32_u24 v2, 3456, v2")
    a("v_lshl_add_u32 v2, v3, 4, v2")
    a(f"s_mul_i32 s33, s3, {80*3456}")
    a("s_lshl_b32 s34, s29, 8")
    a("s_add_u32 s33, s33, s34")
    for i in range(20):
        a(f"buffer_load_dwordx4 {vr(96+4*i,4)}, v2, s[12:15], s33 offen")
        a(f"s_add_u32 s33, s33, {4*3456}")
    a("v_lshlrev_b32 v4, 1, v0")
    a("s_lshl_b32 s35, s3, 7")
    a("s_add_u32 s35, s35, s34")
    a("buffer_load_ushort v90, v4, s[16:19], s35 offen")
    a("v_mov_b32 v88, 0x3f80")
    a("v_mov_b32 v89, 0x3f800000")
    for i in range(8): a(f"v_mov_b32 v{80+i}, 0")
    for i in range(20):
        a(f"s_waitcnt vmcnt({20-i})")
        for j in range(4):
            a(f"v_dot2_f32_bf16 v{80+2*j}, v{96+4*i+j}, v88, v{80+2*j}")
            a(f"v_dot2_f32_bf16 v{81+2*j}, v{96+4*i+j}, v89, v{81+2*j}")
    a("v_lshlrev_b32 v4, 5, v0")
    a("s_lshl_b32 s33, s3, 11")
    a("v_add_u32 v4, s33, v4")
    a("s_nop 0")
    a("ds_write_b128 v4, v[80:83]")
    a("ds_write_b128 v4, v[84:87] offset:16")
    a("s_waitcnt lgkmcnt(0)")
    a("s_barrier")
    a("s_cmp_ge_u32 s3, 2")
    a("s_cbranch_scc1 Lsp_done")
    a("v_lshlrev_b32 v4, 2, v0")
    a("s_lshl_b32 s33, s3, 8")
    a("v_add_u32 v4, s33, v4")
    for h in range(4):
        for i in range(8): a(f"ds_read_b32 v{96+8*h+i}, v4 offset:{512*(8*h+i)}")
        a("s_waitcnt lgkmcnt(0)")
    for i in range(1, 32): a(f"v_add_f32 v96, v96, v{96+i}")
    bf16_round(a, 97, 96)
    a("v_sub_f32 v96, v96, v97")
    a("v_cvt_pk_bf16_f32 v92, v97, v96")
    a("s_waitcnt vmcnt(0)")
    a("v_mov_b32 v93, v90")
    a("v_lshlrev_b32 v4, 3, v0")
    a("s_lshl_b32 s35, s35, 2")
    a(f"s_add_u32 s35, s35, {OFF_CO}")
    a("buffer_store_dwordx2 v[92:93], v4, s[20:23], s35 offen sc1")
    a.label("Lsp_done")
    a("s_waitcnt vmcnt(0)")
    a("s_barrier")
    a("s_cmp_ge_u32 s3, 4")
    a("s_cbranch_scc1 Lh2")
    a("s_mov_b32 s30, 15")
    f1_addr(a, 30)
    a(f"s_add_u32 s58, s58, {F1}")
    a("s_branch Lc2")

def p1_helper(a):
    WS = 3840
    a("v_lshrrev_b32 v2, 3, v0")
    a("v_and_b32 v3, 7, v0")
    a("v_lshrrev_b32 v4, 4, v0")
    a("v_xor_b32 v3, v3, v4")
    a("v_mul_u32_u24 v2, 1280, v2")
    a("v_lshl_add_u32 v10, v3, 4, v2")
    a("v_xor_b32 v5, 64, v10")
    a(f"v_add_u32 v11, {10240-1024}, v5")
    a(f"v_add_u32 v12, {2*(10240-1024)}, v10")
    a(f"v_add_u32 v13, {3*(10240-1024)}, v5")
    a("v_and_b32 v3, 15, v0")
    a("v_lshlrev_b32 v5, 2, v4")
    a("v_xor_b32 v3, v3, v5")
    a(f"v_mul_u32_u24 v14, {WS}, v4")
    a("v_lshl_add_u32 v14, v3, 4, v14")
    for i in range(1, 4):
        a(f"v_add_u32 v{14+i}, {i*(4*WS-1024)}, v14")
    srd(a, 12, PX, 2048 * 1280)
    srd(a, 16, PWQKV, 640 * 3840)
    if CFG["xpf"]:
        a("s_getreg_b32 s33, hwreg(HW_REG_HW_ID, 8, 3)")
        a("s_getreg_b32 s34, hwreg(HW_REG_HW_ID, 13, 2)")
        a("s_lshl_b32 s34, s34, 3")
        a("s_add_u32 s33, s33, s34")
        a("s_lshl_b32 s33, s33, 2")
        a("s_add_u32 s33, s33, s28")
        a("s_mul_i32 s34, s33, 40")
        a("v_min_u32 v6, 39, v0")
        a("v_add_u32 v6, s34, v6")
        a("v_and_b32 v7, 511, v6")
        a("v_lshrrev_b32 v6, 9, v6")
        a("v_mul_u32_u24 v7, 1280, v7")
        a("v_lshl_add_u32 v6, v6, 7, v7")
        a("s_bfe_u32 s34, s60, 0x20001")
        a(f"s_mul_i32 s34, s34, {512*1280}")
        a(f"v_mul_u32_u24 v7, {WS}, v4")
        a("v_and_b32 v8, 15, v0")
        a("v_lshl_add_u32 v7, v8, 7, v7")
        a(f"s_mul_i32 s35, s33, {5*WS}")
        a("s_and_b32 s36, s60, 1")
        a("s_mul_i32 s36, s36, 1792")
        a("s_add_u32 s35, s35, s36")
        a(f"s_add_u32 s36, s35, {4*WS}")
        a("v_lshlrev_b32 v8, 7, v8")
        a("buffer_load_dword v9, v7, s[16:19], s35 offen")
        a("buffer_load_dword v9, v6, s[12:15], s34 offen")
        a("buffer_load_dword v9, v8, s[16:19], s36 offen")
    a("s_or_b32 s33, s2, s28")
    a("s_cbranch_scc1 Lh_nz")
    a("s_memrealtime s[34:35]")
    a("s_waitcnt lgkmcnt(0)")
    a("s_or_b32 s34, s34, 1")
    a(f"s_atomic_swap s34, s[{PDBG}:{PDBG+1}], 0")
    a.label("Lh_nz")
    if CFG["cpf"]:
        CFG["_hi"][KN] = -1
        a("s_getreg_b32 s33, hwreg(HW_REG_HW_ID, 9, 7)")
        a("s_lshl_b32 s33, s33, 2")
        a("s_add_u32 s33, s33, s28")
        a("s_cmp_lg_u32 s33, 7")
        a("s_cbranch_scc1 Lh_np")
        code_prefetch(a, "Lc1e", 5, 204) if CFG["cp0"] else code_prefetch(a, KN, 7, 204)
        a.label("Lh_np")
    ticket(a)
    a("s_cmp_ge_u32 s32, 30")
    a("s_cbranch_scc1 Lspare_h")
    a("s_mul_i32 s34, s29, 163840")
    a("s_mul_i32 s33, s28, 40960")
    a("s_add_u32 s34, s34, s33")
    a("s_lshl_b32 s35, s30, 8")
    a(f"s_mul_i32 s33, s28, {16*WS}")
    a("s_add_u32 s35, s35, s33")
    rot = CFG["rot1"]
    if rot:
        a("s_mul_i32 s38, s29, 3")
        a("s_add_u32 s38, s38, s30")
        a("s_mul_i32 s33, s38, 6554")
        a("s_lshr_b32 s33, s33, 16")
        a("s_mul_i32 s33, s33, 10")
        a("s_sub_u32 s38, s38, s33")
        a("s_lshl_b32 s36, s38, 7")
        a("s_add_u32 s36, s36, s34")
        a(f"s_mul_i32 s37, s38, {64*WS}")
        a("s_add_u32 s37, s37, s35")
    else:
        a("s_mov_b32 s36, s34")
        a("s_mov_b32 s37, s35")
    a("s_lshl_b32 s39, s28, 12")
    stream = []
    for s in range(10):
        slot = (s & 3) * 32768
        for i in range(4):
            g = [f"s_add_u32 m0, s39, {slot}", "s_nop 0"] if i == 0 else []
            g.append(f"buffer_load_dwordx4 v{10+i}, s[12:15], s36 offen offset:{1024*i} lds")
            stream.append(g)
        for i in range(4):
            g = [f"s_add_u32 m0, s39, {slot+16384}", "s_add_u32 s36, s36, 128"] if i == 0 else []
            g.append(f"buffer_load_dwordx4 v{14+i}, s[16:19], s37 offen offset:{1024*i} lds")
            if i == 3:
                g.append(f"s_add_u32 s37, s37, {64*WS}")
                if rot:
                    g += ["s_add_u32 s38, s38, 1", "s_cmp_eq_u32 s38, 10", "s_cselect_b32 s36, s34, s36", "s_cselect_b32 s37, s35, s37"]
            stream.append(g)
    issued = [0]; q = []
    def issue(n=1):
        for _ in range(n):
            if issued[0] < 80:
                for x in stream[issued[0]]: a(x)
                q.append(issued[0] // 8)
                issued[0] += 1
    def wait(tag):
        last = max(i for i, t in enumerate(q) if t == tag)
        a(f"s_waitcnt vmcnt({len(q) - 1 - last})")
    issue(CFG["n01"])
    srd(a, 24, PDBG, 256)
    a("v_mov_b32 v205, 0")
    a("v_and_b32 v2, 31, v0")
    a("v_lshrrev_b32 v3, 5, v0")
    a("s_lshl_b32 s33, s29, 2")
    a("s_add_u32 s33, s33, s28")
    a("s_lshl_b32 s40, s33, 2")
    a("s_lshl_b32 s41, s30, 1")
    a("s_lshr_b32 s42, s28, 1")
    a("s_add_u32 s41, s41, s42")
    a("s_lshl_b32 s41, s41, 3")
    a("s_sub_u32 s41, s41, 4")
    a("v_min_u32 v4, 11, v0")
    a("v_add_u32 v5, s40, v4")
    a("v_cmp_gt_u32 vcc, 4, v4")
    a("v_add_u32 v4, s41, v4")
    a("s_lshl_b32 s40, s33, 9")
    a("v_cndmask_b32 v4, v4, v5, vcc")
    a("v_cndmask_b32 v5, 8, v205, vcc")
    a("v_lshl_add_u32 v4, v4, 7, v5")
    a(f"v_add_u32 v20, {F0}, v4")
    a(f"s_add_u32 s40, s40, {OFF_TS}")
    a("v_lshlrev_b32 v21, 4, v2")
    a(f"v_mul_u32_u24 v22, {8*7680}, v3")
    a("v_lshl_add_u32 v22, v2, 2, v22")
    a("s_lshl_b32 s41, s30, 2")
    a("s_add_u32 s41, s41, s28")
    a("s_lshl_b32 s41, s41, 7")
    a(f"s_add_u32 s41, s41, {OFF_CP}")
    PS = CFG["ps"]
    for s in range(10):
        wait(s)
        if CFG["prof"] > 1:
            a(f"s_memtime s[{4+0}:{5+0}]")
        a("s_barrier")
        if CFG["prof"] > 1:
            a("s_memtime s[6:7]")
            a("s_waitcnt lgkmcnt(0)")
            a(f"v_writelane_b32 v253, s4, {s}")
            a(f"v_writelane_b32 v253, s6, {16+s}")
        if s == PS:
            a("buffer_load_dword v204, v205, s[24:27], 0 offen sc1"); q.append("p")
            a("buffer_load_dwordx2 v[24:25], v20, s[20:23], 0 offen sc1"); q.append("p")
        if s == PS + 2:
            wait("p")
            tag_take(a)
            tagcheck(a, 24, 2)
            a("s_cbranch_scc0 Lh_ok")
            poll(a, 20, 64, 2)
            a.label("Lh_ok")
            a("buffer_load_dwordx4 v[40:43], v21, s[20:23], s40 offen sc1"); q.append("d")
            for i in range(8):
                a(f"buffer_load_dword v{48+i}, v22, s[20:23], s41 offen sc1"); q.append("d")
                a("s_add_u32 s41, s41, 7680")
        issue(8)
    a("s_waitcnt vmcnt(0)")
    for i in range(4): a(f"v_add_f32 v{48+i}, v{48+i}, v{52+i}")
    for i in range(2): a(f"v_add_f32 v{48+i}, v{48+i}, v{50+i}")
    a("v_add_f32 v36, v48, v49")
    a("v_mov_b32 v37, v36")
    a("s_nop 1")
    a("v_permlane32_swap_b32 v36, v37")
    a("v_add_f32 v36, v36, v37")
    bf16_round(a, 37, 36)
    a("v_sub_f32 v36, v36, v37")
    a("v_cvt_pk_bf16_f32 v44, v37, v36")
    a("v_mov_b32 v45, 0")
    a("s_lshl_b32 s33, s28, 5")
    a("v_add_u32 v2, s33, v2")
    a("v_lshlrev_b32 v3, 3, v2")
    a(f"v_add_u32 v3, {STAT}, v3")
    a("v_lshlrev_b32 v4, 2, v2")
    a(f"v_add_u32 v4, {STAT+1024}, v4")
    a("ds_write_b64 v3, v[40:41]")
    a("ds_write_b32 v4, v42")
    a("ds_write_b64 v3, v[44:45] offset:2048")
    a("s_waitcnt lgkmcnt(0)")
    a("s_barrier")

def ln_final(a, vs, vq, vo, vr_):
    a(f"v_mul_f32 v{vs}, {f32(1/640)}, v{vs}")
    a(f"v_mul_f32 v{vq}, {f32(1/640)}, v{vq}")
    a(f"v_fma_f32 v{vq}, -v{vs}, v{vs}, v{vq}")
    a(f"v_max_f32 v{vq}, 0, v{vq}")
    bf16_round(a, vq, vq)
    a(f"v_add_f32 v{vq}, {f32(1e-5)}, v{vq}")
    bf16_round(a, vq, vq)
    a(f"v_sqrt_f32 v{vq}, v{vq}")
    a(f"v_mul_f32 v{vs}, -0.5, v{vs}")
    bf16_round(a, vq, vq)
    a(f"v_cvt_pk_bf16_f32 v{vo}, v{vs}, v{vs}")
    a(f"v_rcp_f32 v{vr_}, v{vq}")
    a(f"v_mul_f32 v{vq}, 0.5, v{vq}")
    a(f"v_lshrrev_b32 v{vo+1}, 16, v{vq}")

def f1_addr(a, sn):
    lg = CFG["fpl"].bit_length() - 1
    a(f"s_lshl_b32 s58, s{sn}, {11-lg}")
    a(f"s_lshr_b32 s33, s29, {lg}")
    a("s_lshl_b32 s33, s33, 7")
    a("s_add_u32 s58, s58, s33")
    a(f"s_and_b32 s33, s29, {CFG['fpl']-1}")
    a("s_lshl_b32 s33, s33, 2")
    a("s_add_u32 s58, s58, s33")

def kappa(a, d, t):
    a(f"v_and_b32 v{d}, 19, v0")
    a(f"v_bfe_u32 v{t}, v0, 2, 1")
    a(f"v_lshl_add_u32 v{d}, v{t}, 3, v{d}")
    a(f"v_bfe_u32 v{t}, v0, 3, 1")
    a(f"v_lshl_add_u32 v{d}, v{t}, 2, v{d}")

def p1_compute(a):
    ACC = 64
    FRB = [32, 48, 176]
    AD = 128
    stats_issue(a)
    a("s_and_b32 s34, s28, 1")
    a("s_lshr_b32 s35, s28, 1")
    a("v_and_b32 v2, 31, v0")
    a("v_lshrrev_b32 v3, 5, v0")
    a("v_bfe_u32 v4, v0, 1, 3")
    a("v_xor_b32 v4, v4, v3")
    a("v_lshlrev_b32 v4, 4, v4")
    a("v_lshl_add_u32 v4, v2, 7, v4")
    a("s_lshl_b32 s33, s34, 13")
    a("v_add_u32 v10, s33, v4")
    for i in range(1, 4):
        a(f"v_xor_b32 v{10+i}, {32*i}, v10")
    for i in range(4):
        a(f"v_add_u32 v{14+i}, 0x10000, v{10+i}")
    a("v_bfe_u32 v4, v0, 2, 2")
    a("v_lshl_add_u32 v5, v3, 3, v4")
    a("v_lshlrev_b32 v5, 8, v5")
    a("v_bfe_u32 v6, v0, 4, 1")
    a("v_lshl_add_u32 v5, v6, 5, v5")
    a("v_and_b32 v6, 3, v0")
    a("v_lshl_add_u32 v5, v6, 3, v5")
    a("v_add_u32 v5, 16384, v5")
    a("s_lshl_b32 s33, s35, 1")
    a("v_xor_b32 v4, s33, v4")
    a("v_lshl_add_u32 v18, v4, 6, v5")
    a("v_xor_b32 v19, 64, v18")
    a("v_add_u32 v20, 0x10000, v18")
    a("v_add_u32 v21, 0x10000, v19")
    a("s_lshl_b32 s33, s34, 6")
    a("v_add_u32 v22, s33, v2")
    a("v_lshlrev_b32 v23, 2, v22")
    a(f"v_add_u32 v23, {STAT+1024}, v23")
    a("v_lshlrev_b32 v22, 3, v22")
    a(f"v_add_u32 v22, {STAT}, v22")
    a("s_lshl_b32 s33, s35, 6")
    a("v_add_u32 v24, s33, v2")
    a("v_lshlrev_b32 v24, 3, v24")
    a(f"v_add_u32 v24, {STAT+2048}, v24")
    ticket(a)
    stamp(a, 22)
    a("s_cmp_ge_u32 s32, 30")
    a("s_cbranch_scc1 Lspare_c")
    f1_addr(a, 30)
    a(f"s_add_u32 s58, s58, {F1}")

    def reads(t):
        s, st = t >> 2, t & 3
        se = (s >> 1) & 1
        io = (s & 1) * 32768
        F = FRB[t % 3]
        return [f"ds_read_b128 {vr(F,4)}, v{10+4*se+st} offset:{io}",
                f"ds_read_b64_tr_b16 {vr(F+8,2)}, v{18+2*se} offset:{io+st*4096}",
                f"ds_read_b64_tr_b16 {vr(F+10,2)}, v{18+2*se} offset:{io+st*4096+1024}",
                f"ds_read_b64_tr_b16 {vr(F+12,2)}, v{19+2*se} offset:{io+st*4096}",
                f"ds_read_b64_tr_b16 {vr(F+14,2)}, v{19+2*se} offset:{io+st*4096+1024}",
                f"ds_read_b128 {vr(F+4,4)}, v{10+4*se+st} offset:{io+4096}"]
    def mainloop(T, fill=()):
        fill = list(fill)
        stamp(a, 19)
        stats_finish(a)
        stamp(a, 23)
        a("s_barrier")
        stamp(a, 1)
        for r in reads(0) + reads(1): a(r)
        for t in range(40):
            F = FRB[t % 3]
            if t < 38 and (t & 3) == 2:
                a("s_waitcnt lgkmcnt(0)")
                if t == CFG["sg"]: stats_signal(a)
                a("s_barrier")
            else:
                a(f"s_waitcnt lgkmcnt({6 if t < 39 else 0})")
            rd = reads(t + 2) if t < 38 else []
            for i, (x, w) in enumerate(((0, 0), (0, 1), (1, 0), (1, 1))):
                d = vr(ACC + 32 * x + 16 * w, 16)
                xa, wa = vr(F + 4 * x, 4), vr(F + 8 + 4 * w, 4)
                c = "0" if t == 0 else d
                if CFG["x1"] & 1 and t > 0: pass
                elif T: a(f"v_mfma_f32_32x32x16_bf16 {d}, {wa}, {xa}, {c}")
                else: a(f"v_mfma_f32_32x32x16_bf16 {d}, {xa}, {wa}, {c}")
                if CFG["x1"] & 2: rd = []
                if i < 3:
                    for r in rd[2*i:2*i+2]: a(r)
                if t >= 8:
                    for _ in range(1 if i < 3 else 3):
                        if fill: a(fill.pop(0))
        assert not fill
        a("s_barrier")
        stamp(a, 2)
        a("ds_read_b64 v[176:177], v22")
        a("ds_read_b64 v[178:179], v22 offset:256")
        a("ds_read_b64 v[180:181], v24")
        a("ds_read_b64 v[182:183], v24 offset:256")
        if T:
            a("ds_read_b32 v40, v23")
            a("ds_read_b32 v42, v23 offset:128")
        else:
            for x in range(2):
                for j in range(4):
                    a(f"ds_read_b128 {vr(144+16*x+4*j,4)}, v25 offset:{128*x+32*j}")
        a("s_waitcnt lgkmcnt(0)")
        for x, w in ((0, 0), (1, 0), (0, 1), (1, 1)):
            d = vr(ACC + 32 * x + 16 * w, 16)
            xa, wa = vr(176 + 2 * x, 2), vr(180 + 2 * w, 2)
            if T: a(f"v_mfma_f32_32x32x8_bf16 {d}, {wa}, {xa}, {d}")
            else: a(f"v_mfma_f32_32x32x8_bf16 {d}, {xa}, {wa}, {d}")

    a("s_mul_i32 s36, s29, 10240")
    a("s_cmp_ge_u32 s30, 10")
    a("s_cbranch_scc1 Lc1v")
    kappa(a, 4, 5)
    a(f"v_lshlrev_b32 v4, 4, v4")
    a(f"v_lshl_add_u32 v{AD}, v3, 9, v4")
    a(f"v_mul_u32_u24 v5, {UNIT}, v3")
    a(f"v_add_u32 v{AD+1}, v5, v4")
    a("s_lshl_b32 s37, s30, 4")
    a("s_lshl_b32 s33, s35, 3")
    a("s_add_u32 s37, s37, s33")
    a("s_mov_b32 s57, s37")
    late = Asm()
    late("s_mov_b32 s59, 0")
    for q in range(8):
        late(f"s_add_u32 s56, s57, {q}")
        late("s_mul_i32 s38, s56, 52429")
        late("s_lshr_b32 s38, s38, 18")
        late("s_mul_i32 s39, s38, 5")
        late("s_sub_u32 s39, s56, s39")
        late(f"s_mul_i32 s38, s38, {2*UNIT}")
        late("s_add_u32 s38, s38, s36")
        late("s_lshl_b32 s56, s39, 11")
        late("s_add_u32 s38, s38, s56")
        late("s_cmp_gt_u32 s39, 2")
        late(f"s_cselect_b32 s56, {UNIT - 3*2048}, 0")
        late("s_add_u32 s38, s38, s56")
        late("s_cmp_eq_u32 s39, 2")
        late("s_cselect_b32 s56, 9, 10")
        late(f"s_cselect_b32 s39, {1 << q}, 0")
        late("s_lshl_b32 s56, s34, s56")
        late(f"s_add_u32 s{40+q}, s38, s56")
        late("s_or_b32 s59, s59, s39")
    c = (20 ** -0.5) * math.log2(math.e)
    a("s_cmp_lt_u32 s30, 5")
    a(f"s_cselect_b32 s37, {f32(c)}, 1.0")
    mainloop(True, list(late.lines))
    a("v_mul_f32 v40, s37, v40")
    a("v_mul_f32 v42, s37, v42")
    a("s_nop 7")
    for q in range(8):
        w, j = q >> 2, q & 3
        t = 44 + 4 * (q & 3)
        for x in range(2):
            b = ACC + 32 * x + 16 * w + 4 * j
            for i in (0, 2):
                a(f"v_pk_mul_f32 {vr(b+i,2)}, {vr(b+i,2)}, {vr(40+2*x,2)} op_sel_hi:[1,0]")
            a(f"v_cvt_pk_bf16_f32 v{t+2*x}, v{b}, v{b+1}")
            a(f"v_cvt_pk_bf16_f32 v{t+2*x+1}, v{b+2}, v{b+3}")
        L1, L2 = uid("s"), uid("s")
        a(f"s_bitcmp1_b32 s59, {q}")
        a(f"s_cbranch_scc1 {L1}")
        a(f"v_permlane32_swap_b32 v{t}, v{t+2}")
        a(f"v_permlane32_swap_b32 v{t+1}, v{t+3}")
        a(f"buffer_store_dwordx4 {vr(t,4)}, v{AD}, s[20:23], s{40+q} offen sc1")
        a(f"s_branch {L2}")
        a.label(L1)
        a(f"buffer_store_dwordx4 {vr(t,4)}, v{AD+1}, s[20:23], s{40+q} offen sc1")
        a.label(L2)
    a("s_branch Lc1e")
    a.label("Lc1v")
    a("s_sub_u32 s33, s30, 10")
    a("s_lshl_b32 s33, s33, 7")
    a("s_lshl_b32 s37, s35, 6")
    a("s_add_u32 s33, s33, s37")
    a("v_lshlrev_b32 v5, 6, v3")
    a("s_mul_i32 s37, s34, 2560")
    a(f"s_add_u32 s37, s37, {32*UNIT+5120}")
    a("v_add_u32 v5, s37, v5")
    for w in range(2):
        a(f"v_add_u32 v7, s33, v2")
        if w: a("v_add_u32 v7, 32, v7")
        a("v_mul_u32_u24 v9, 52429, v7")
        a("v_lshrrev_b32 v9, 20, v9")
        a("v_mul_u32_u24 v8, 20, v9")
        a("v_sub_u32 v8, v7, v8")
        a(f"v_mul_u32_u24 v9, {UNIT}, v9")
        a("v_lshl_add_u32 v9, v8, 4, v9")
        a("v_and_b32 v8, 28, v8")
        a("v_lshl_add_u32 v9, v8, 4, v9")
        a(f"v_add_u32 v{AD+w}, v9, v5")
    a("s_lshl_b32 s33, s34, 8")
    a(f"s_add_u32 s33, s33, {STAT+1024}")
    a("v_lshl_add_u32 v25, v3, 4, s33")
    mainloop(False)
    a("s_nop 9")
    for w in range(2):
        for x in range(2):
            b = ACC + 32 * x + 16 * w
            for g in range(2):
                for i in range(0, 8, 2):
                    a(f"v_pk_mul_f32 {vr(b+8*g+i,2)}, {vr(144+16*x+8*g+i,2)}, {vr(b+8*g+i,2)}")
                t = 44 + 4 * (g + 2 * x)
                for i in range(4):
                    a(f"v_cvt_pk_bf16_f32 v{t+i}, v{b+8*g+2*i}, v{b+8*g+2*i+1}")
                a(f"buffer_store_dwordx4 {vr(t,4)}, v{AD+w}, s[20:23], s36 offen offset:{1280*x+640*g} sc1")
    a.label("Lc1e")
    stamp(a, 3)
    a("s_waitcnt vmcnt(0)")
    stamp(a, 24)

def ids(a):
    a("s_and_b32 s33, s32, 3")
    a("s_lshl_b32 s29, s31, 2")
    a("s_add_u32 s29, s29, s33")
    a("s_lshr_b32 s30, s32, 2")
    a("s_and_b32 s33, s32, 1")
    a("s_lshl_b32 s62, s31, 1")
    a("s_add_u32 s62, s62, s33")
    a("s_lshr_b32 s63, s32, 1")

def w1_dma(a, r0, r1, lds0, thr=20):
    a(f"s_mul_i32 s36, s28, {4*3456}")
    a("s_lshl_b32 s33, s63, 8")
    a("s_add_u32 s36, s36, s33")
    a(f"s_add_u32 s36, s36, {r0*3456}")
    a("s_lshl_b32 s33, s28, 10")
    a(f"s_add_u32 m0, s33, {lds0}")
    L = uid("w")
    a(f"s_mov_b32 s37, {(r1-r0)//16}")
    a.label(L)
    a("buffer_load_dwordx4 v14, s[16:19], s36 offen lds")
    a(f"s_waitcnt vmcnt({thr})")
    a("s_add_u32 m0, m0, 4096")
    a(f"s_add_u32 s36, s36, {16*3456}")
    a("s_sub_u32 s37, s37, 1")
    a("s_cmp_lg_u32 s37, 0")
    a(f"s_cbranch_scc1 {L}")

def lin_dma(a, n, flag=" sc1"):
    L = uid("d")
    a(f"s_mov_b32 s37, {n}")
    a.label(L)
    a(f"buffer_load_dwordx4 v1, s[20:23], s39 offen{flag} lds")
    a(f"s_waitcnt vmcnt({CFG['thr']})")
    a("s_add_u32 m0, m0, 4096")
    a("s_add_u32 s39, s39, 4096")
    a("s_sub_u32 s37, s37, 1")
    a("s_cmp_lg_u32 s37, 0")
    a(f"s_cbranch_scc1 {L}")

def helper_rest(a):
    a.label("Lh2")
    a("s_setprio 3")
    ids(a)
    a("v_lshlrev_b32 v1, 4, v0")
    a("s_lshl_b32 s54, s28, 8")
    a("s_add_u32 s54, s54, s2")
    relayout_task(a)
    srd(a, 16, PW1, 640 * 3456)
    a("v_lshrrev_b32 v4, 4, v0")
    a("v_and_b32 v3, 15, v0")
    a("v_lshlrev_b32 v5, 2, v4")
    a("v_xor_b32 v3, v3, v5")
    a("v_mul_u32_u24 v14, 3456, v4")
    a("v_lshl_add_u32 v14, v3, 4, v14")
    a("s_lshl_b32 s38, s28, 10")
    a(f"s_mul_i32 s39, s29, {UNIT}")
    a(f"s_add_u32 s39, s39, {32*UNIT}")
    a("s_add_u32 s39, s39, s38")
    a("s_mov_b32 m0, s38")
    a("s_mul_i32 s33, s29, 20")
    a("s_add_u32 s34, s33, 19")
    a("s_lshr_b32 s33, s33, 7")
    a("s_lshr_b32 s34, s34, 7")
    a("s_sub_u32 s34, s34, s33")
    fpl = CFG["fpl"]; lg = fpl.bit_length() - 1; lb = 4 - lg
    a(f"v_bfe_u32 v3, v0, {lb}, 1")
    a("v_mul_u32_u24 v3, s34, v3")
    a(f"v_lshrrev_b32 v4, {lb+1}, v0")
    if fpl == 1:
        a("s_lshl_b32 s35, s28, 1")
        a("v_add_u32 v4, s35, v4")
        a("v_min_u32 v4, 2, v4")
    a("v_mul_u32_u24 v4, 5, v4")
    a("v_add3_u32 v3, v3, v4, s33")
    a(f"v_lshlrev_b32 v3, {11-lg}, v3")
    a(f"v_and_b32 v4, {(1<<lb)-1}, v0")
    a("v_lshlrev_b32 v4, 7, v4")
    a(f"v_add_u32 v15, {F1}, v4")
    a("v_add_u32 v3, v3, v15")
    stamp(a, 1)
    a("s_barrier")
    stamp(a, 2)
    a(f"s_cmp_gt_u32 s28, {1 if fpl == 1 else 0}")
    a("s_cbranch_scc1 Lh2s")
    poll(a, 3, min(64, 96 // fpl), fpl, sleep=CFG["sl1"])
    a.label("Lh2s")
    stamp(a, 3)
    a("s_barrier")
    def dma(n):
        for i in range(n):
            a(f"buffer_load_dwordx4 v1, s[20:23], s39 offen sc1 lds")
            a("s_add_u32 m0, m0, 4096")
            a("s_add_u32 s39, s39, 4096")
    dma(6)
    a("s_waitcnt vmcnt(3)")
    a("s_barrier")
    dma(10)
    a("s_waitcnt vmcnt(6)")
    a("s_barrier")
    dma(4)
    a("s_lshl_b32 s57, s2, 7")
    a(f"s_add_u32 s57, s57, {F2H}")
    a("v_mov_b32 v2, 0")
    a("buffer_load_dword v18, v2, s[20:23], s57 offen sc1")
    a("s_cmp_ge_u32 s54, 592")
    a("s_cbranch_scc1 Lh2n")
    relayout_load(a)
    relayout_store(a)
    a("s_branch Lh2a")
    a.label("Lh2n")
    a("s_waitcnt vmcnt(0)")
    a.label("Lh2a")
    stamp(a, 9)
    a("s_barrier")
    signal(a, 57, 2)
    lin_dma(a, 20)
    a("s_waitcnt vmcnt(0)")
    stamp(a, 10)
    def pollsp():
        a(f"v_add_u32 v3, {15*2048//fpl}, v15")
        poll(a, 3, 16 // fpl, fpl, sleep=8)
    only_h0(a, pollsp)
    a("s_lshl_b32 s33, s30, 7")
    a(f"s_add_u32 s33, s33, {F2H}")
    a("v_lshl_add_u32 v3, v0, 10, s33")
    poll(a, 3, 32, 4, sleep=8)
    a("v_and_b32 v2, 15, v0")
    a("v_min_u32 v2, 13, v2")
    a("v_and_b32 v3, 16, v0")
    a("v_add_u32 v2, v2, v3")
    a("s_lshl_b32 s33, s29, 12")
    a(f"s_add_u32 s33, s33, {F4}")
    a("v_lshl_add_u32 v10, v2, 7, s33")
    a(f"v_add_u32 v11, {FR}, v10")
    a(f"v_add_u32 v12, {2*FR}, v10")
    if CFG["pt"]:
        a(f"s_mul_i32 s33, s28, {FR}")
        a("buffer_load_dword v4, v10, s[20:23], s33 offen sc1")
        a("v_bfe_u32 v3, v0, 2, 1")
        a(f"v_mul_u32_u24 v3, {FR}, v3")
        a("v_and_b32 v2, 3, v0")
        a(f"v_mul_u32_u24 v2, {CFG['ls']}, v2")
        a("v_add_u32 v2, v2, v3")
        a(f"s_mul_i32 s33, s29, {4*CFG['ls']}")
        a(f"s_add_u32 s33, s33, {F2}")
        a("buffer_load_dword v4, v2, s[20:23], s33 offen sc1")
    STH = 20
    a(f"s_mul_i32 s55, s30, {54*5120}")
    a(f"s_add_u32 s55, s55, {OFF_W2}")
    a("s_add_u32 s55, s55, s38")
    a("s_mov_b32 s39, s55")
    stamp(a, 7)
    for i in range(58):
        a(f"buffer_load_dwordx4 {vr(STH+4*i,4)}, v1, s[20:23], s39 offen sc1")
        a(f"s_add_u32 s39, s39, {4096 if i != 29 else 4096 + 40960}")
        if i == 21:
            stamp(a, 11)
            a("s_barrier")
    stamp(a, 8)
    a(f"s_mul_i32 s39, s30, {20*5120}")
    a(f"s_add_u32 s39, s39, {OFF_WO}")
    a("s_add_u32 s39, s39, s38")
    a("s_mov_b32 m0, s38")
    a("s_barrier")
    lin_dma(a, 25)
    a("s_waitcnt vmcnt(0)")
    if CFG["pf"]:
        a("s_lshl_b32 s33, s32, 2")
        a("s_add_u32 s33, s33, s28")
        a(f"s_mul_i32 s34, s33, {17*1024}")
        a("v_lshlrev_b32 v2, 7, v0")
        a("v_min_u32 v3, 896, v2")
        a("buffer_load_dword v4, v2, s[16:19], s34 offen")
        a("s_add_u32 s34, s34, 8192")
        a("buffer_load_dword v4, v2, s[16:19], s34 offen")
        a("s_add_u32 s34, s34, 8192")
        a("buffer_load_dword v4, v3, s[16:19], s34 offen")
    stamp(a, 14)
    a("s_barrier")
    a("s_cmp_ge_u32 s32, 28")
    a("s_cbranch_scc1 Lh2b")
    w1_dma(a, 0, 240, 102400)
    a.label("Lh2b")
    a("s_barrier")
    a("s_waitcnt vmcnt(0)")
    stamp(a, 4)
    a("s_barrier")
    a("s_cmp_ge_u32 s32, 28")
    a("s_cbranch_scc1 Lh4")
    w1_dma(a, 240, 640, 0)
    a("s_waitcnt vmcnt(0)")
    stamp(a, 5)
    a("s_barrier")
    a.label("Lh4")
    a(f"s_add_u32 s39, s55, {6*20480}")
    a(f"s_add_u32 m0, s38, {6*20480}")
    a("v_add_u32 v8, s38, v1")
    a("v_add_u32 v9, 61440, v8")
    def put(i, slotpiece):
        a(f"ds_write_b128 v{8 + slotpiece // 15}, {vr(STH+4*i,4)} offset:{(slotpiece % 15) * 4096}")
    a("s_barrier")
    for i in range(30):
        if i % 3 == 0: dma(1)
        put(i, i)
    a("s_waitcnt lgkmcnt(0)")
    stamp(a, 6)
    a("s_or_b32 s33, s31, s32")
    a("s_or_b32 s33, s33, s28")
    a("s_cbranch_scc1 Lh5")
    srd(a, 24, PDBG, 256)
    a("v_lshlrev_b32 v2, 2, v0")
    a("v_mov_b32 v3, 0")
    a("buffer_store_dword v3, v2, s[24:27], 0 offen sc1")
    a.label("Lh5")
    a("v_mov_b32 v16, s100")
    a("v_lshlrev_b32 v17, 11, v0")
    a("s_lshl_b32 s34, s62, 6")
    a("s_add_u32 s34, s34, s63")
    a("s_lshl_b32 s34, s34, 7")
    a(f"s_add_u32 s34, s34, {F4}")
    a("s_waitcnt vmcnt(0)")
    only_h0(a, lambda: poll(a, 10, 32, sleep=CFG["sl4"]))
    stamp(a, 12)
    a("s_barrier")
    def announce(level):
        L = uid("a")
        a("s_cmp_lg_u32 s28, 1")
        a(f"s_cbranch_scc1 {L}")
        a("s_cmp_ge_u32 s32, 28")
        a(f"s_cbranch_scc1 {L}")
        a(f"s_add_u32 s33, s34, {level*FR}")
        a("s_mov_b64 exec, 15")
        a("buffer_store_dword v16, v17, s[20:23], s33 offen sc1")
        a("s_mov_b64 exec, -1")
        a.label(L)
    announce(2)
    only_h0(a, lambda: poll(a, 11, 32))
    stamp(a, 13)
    for s in range(1, 14):
        if s in (5, 8):
            def lv():
                L = uid("k")
                a("s_waitcnt vmcnt(0)")
                tagcheck(a, 13, 1)
                a(f"s_cbranch_scc0 {L}")
                poll(a, 12, 32)
                a.label(L)
                a(f"v_add_u32 v12, {FR}, v12")
            only_h0(a, lv)
        a("s_barrier")
        if s == 2: announce(3)
        if s in (2, 5): only_h0(a, lambda: a("buffer_load_dword v13, v12, s[20:23], 0 offen sc1"))
        if s >= 2:
            ks = [k for k in range(28) if 2 + k // 3 == s]
            for k in ks: put(30 + k, k)
            if s >= 7: a(f"s_waitcnt lgkmcnt({len(ks)})")
    finish(a)

def compute_rest(a):
    QA = [4, 8]; QB = 12; QBA = [12, 14]; QBB = [16, 18]
    IDX, AK, AV = 20, 21, 23
    O = [24, 40]
    S = [56, 72, 88, 104]
    KA = [120, 128]; KB = [136, 140]; V = [144, 160]
    T = 176
    a.label("Lc2")
    a("s_barrier")
    only_h0(a, lambda: ssignal(a, 58))
    ids(a)
    RES, XR = 232, 220
    a("v_and_b32 v4, 15, v0")
    a("v_lshrrev_b32 v5, 4, v0")
    a("v_mul_u32_u24 v252, 1280, v4")
    a("v_lshl_add_u32 v253, v5, 3, v252")
    a("v_lshl_add_u32 v252, v5, 5, v252")
    a("v_lshlrev_b32 v6, 5, v5")
    a("v_lshlrev_b32 v7, 3, v5")
    a("s_lshl_b32 s33, s29, 2")
    a("s_add_u32 s33, s33, s28")
    a("s_mul_i32 s59, s33, 20480")
    a("s_mul_i32 s38, s30, 160")
    a("s_add_u32 s59, s59, s38")
    srd(a, 12, PX, 2048 * 1280)
    srd(a, 16, PB2, 1280)
    a(f"buffer_load_dwordx4 {vr(XR,4)}, v252, s[12:15], s59 offen")
    a(f"buffer_load_dwordx4 {vr(XR+4,4)}, v252, s[12:15], s59 offen offset:16")
    a(f"buffer_load_dwordx2 {vr(XR+8,2)}, v253, s[12:15], s59 offen offset:128")
    a(f"buffer_load_dwordx4 {vr(S[0],4)}, v6, s[16:19], s38 offen")
    a(f"buffer_load_dwordx4 {vr(S[0]+4,4)}, v6, s[16:19], s38 offen offset:16")
    a(f"buffer_load_dwordx2 {vr(S[0]+8,2)}, v7, s[16:19], s38 offen offset:128")
    a("v_and_b32 v2, 31, v0")
    a("v_lshrrev_b32 v1, 5, v0")
    a("v_lshlrev_b32 v3, 4, v2")
    a(f"v_lshl_add_u32 v{AK}, v1, 11, v3")
    a(f"v_lshlrev_b32 v22, 4, v0")
    a(f"v_and_b32 v{AV}, 28, v0")
    a(f"v_lshl_add_u32 v{AV}, v{AV}, 4, v3")
    a(f"v_lshl_add_u32 v{AV}, v1, 6, v{AV}")
    a(f"s_mul_i32 s33, s29, {UNIT}")
    a("s_lshl_b32 s34, s30, 1")
    a("s_lshr_b32 s35, s28, 1")
    a("s_add_u32 s34, s34, s35")
    a("s_mul_i32 s34, s34, 10240")
    a("s_add_u32 s34, s34, s33")
    a("s_and_b32 s35, s28, 1")
    a("s_lshl_b32 s36, s35, 10")
    a("s_add_u32 s36, s36, s34")
    a("s_lshl_b32 s37, s35, 9")
    a("s_add_u32 s37, s37, s34")
    a("s_add_u32 s37, s37, 4096")
    a(f"v_mov_b32 v{IDX}, 0xdddddddd")
    a("s_mov_b32 s40, 0xfffff")
    a("s_mov_b32 s41, 0xfffff")
    for i in range(32): a(f"v_mov_b32 v{O[0]+i}, 0")
    for i in range(16): a(f"v_mov_b32 v{S[3]+i}, 0")
    a(f"v_and_b32 v{T}, 27, v0")
    a(f"v_cmp_eq_u32 vcc, 24, v{T}")
    a(f"v_mov_b32 v{T}, 0x3f803f80")
    a("s_mov_b32 s43, 4")
    a(f"v_cndmask_b32 v{V[0]}, v{O[0]}, v{T}, vcc")
    for i in range(1, 32): a(f"v_mov_b32 v{V[0]+i}, v{V[0]}")
    a("v_cmp_gt_u32 vcc, 32, v0")
    a("s_waitcnt vmcnt(0)")
    for i in range(10):
        a(f"v_lshlrev_b32 v{RES+2*i}, 16, v{S[0]+i}")
        a(f"v_and_b32 v{RES+2*i+1}, 0xffff0000, v{S[0]+i}")
    stamp(a, 4)
    a("s_barrier")
    stamp(a, 5)
    for q in range(2):
        a(f"buffer_load_dwordx4 {vr(QA[q],4)}, v{AK}, s[20:23], s36 offen offset:{512*q} sc1")
    a(f"buffer_load_dwordx4 {vr(QB,4)}, v3, s[20:23], s37 offen sc1")
    a("s_waitcnt vmcnt(0)")
    for i in range(4):
        a(f"v_cndmask_b32 v{QBB[0]+i}, v{QB+i}, v{O[0]}, vcc")
        a(f"v_cndmask_b32 v{QB+i}, v{O[0]}, v{QB+i}, vcc")
    def ka_off(t): return (t >> 2) * 10240 + (t & 3) * 512
    def kb_off(b): return b * 10240 + 4096
    def v_off(t, g): return (t >> 2) * 10240 + 5120 + (2 * (t & 3) + g) * 640
    def batch(p):
        r = [f"ds_read_b128 {vr(KA[p&1],4)}, v{AK} offset:{ka_off(2*p)}"]
        if p % 2 == 0:
            r.append(f"ds_read_b128 {vr(KB[(p>>1)&1],4)}, v22 offset:{kb_off(p>>1)}")
        r.append(f"ds_read_b128 {vr(KA[p&1]+4,4)}, v{AK} offset:{ka_off(2*p+1)}")
        r.append("s_mov_b64 exec, s[40:41]")
        for j in range(4):
            r.append(f"ds_read_b128 {vr(V[p&1]+4*j,4)}, v{AV} offset:{v_off(2*p+(j>>1), j&1)}")
        r.append("s_mov_b64 exec, -1")
        return r
    def sync(it, op="lg"):
        L = uid("n")
        a(f"s_cmp_{op}_u32 s43, {it}")
        a(f"s_cbranch_scc1 {L}")
        a("s_barrier")
        a.label(L)
    def qk16(u):
        t, q = u >> 1, u & 1
        return f"v_mfma_f32_32x32x16_bf16 {vr(S[u&3],16)}, {vr(KA[(t>>1)&1]+4*(t&1),4)}, {vr(QA[q],4)}, 0"
    def qk8(u):
        t, q = u >> 1, u & 1
        return f"v_mfma_f32_32x32x8_bf16 {vr(S[u&3],16)}, {vr(KB[(t>>2)&1]+2*(t&1),2)}, {vr((QBB if t&2 else QBA)[q],2)}, {vr(S[u&3],16)}"
    def pv(u, g):
        t, q = u >> 1, u & 1
        return f"v_smfmac_f32_32x32x32_bf16 {vr(O[q],16)}, {vr(V[(t>>1)&1]+8*(t&1)+4*g,4)}, {vr(S[u&3]+8*g,8)}, v{IDX}"
    a("s_barrier")
    stamp(a, 6)
    for r in batch(0): a(r)
    a("s_waitcnt lgkmcnt(4)")
    a(qk16(0)); a(qk8(0))
    a("s_waitcnt lgkmcnt(0)")
    a("s_nop 9")
    a(".p2align 6")
    a.label("Lattn")
    for u in range(32):
        s = S[u & 3]
        if u == 1: sync(1)
        if u == 5: sync(4)
        if u == 29: sync(3, "lt")
        if u % 4 == 3: a("s_waitcnt lgkmcnt(0)")
        a(qk16(u + 1))
        if u % 4 == 1:
            for r in batch((u + 3) // 4): a(r)
        for i in range(0, 4): a(f"v_exp_f32 v{s+i}, v{s+i}")
        a(qk8(u + 1))
        for i in range(4, 8): a(f"v_exp_f32 v{s+i}, v{s+i}")
        a(pv(u - 1, 0))
        for i in range(8, 12): a(f"v_exp_f32 v{s+i}, v{s+i}")
        a(pv(u - 1, 1))
        if u == 31:
            a(f"v_add_u32 v{AK}, 40960, v{AK}")
            a(f"v_add_u32 v22, 40960, v22")
            a(f"v_add_u32 v{AV}, 40960, v{AV}")
            a("s_sub_u32 s43, s43, 1")
            a("s_cmp_lg_u32 s43, 0")
        for i in range(12, 16): a(f"v_exp_f32 v{s+i}, v{s+i}")
    a("s_cbranch_scc1 Lattn")
    a("s_nop 0")
    a(pv(31, 0)); a(pv(31, 1))
    stamp(a, 7)
    a("s_mov_b64 s[46:47], -1")
    kappa(a, T, T + 1)
    a(f"v_lshrrev_b32 v{T+1}, 4, v{T}")
    a(f"v_mul_u32_u24 v{T+1}, 20480, v{T+1}")
    a(f"v_and_b32 v{T}, 15, v{T}")
    a(f"v_lshl_add_u32 v{T+2}, v{T}, 4, v{T+1}")
    a(f"v_lshl_add_u32 v{T}, v{T}, 3, v{T+1}")
    a(f"v_lshl_add_u32 v{T+1}, v1, 8, v{T+2}")
    a("s_lshl_b32 s33, s30, 4")
    a("s_lshl_b32 s34, s28, 2")
    a("s_add_u32 s33, s33, s34")
    a("s_mul_i32 s33, s33, 20480")
    a(f"s_add_u32 s33, s33, {OFF_O}")
    a("s_lshl_b32 s34, s29, 9")
    a("s_add_u32 s34, s34, s33")
    a("s_lshr_b32 s35, s29, 3")
    a("s_lshl_b32 s35, s35, 10")
    a("s_and_b32 s36, s29, 2")
    a("s_lshl_b32 s36, s36, 8")
    a("s_add_u32 s35, s35, s36")
    a("s_and_b32 s36, s29, 4")
    a("s_lshl_b32 s36, s36, 6")
    a("s_add_u32 s35, s35, s36")
    a("s_and_b32 s36, s29, 1")
    a("s_lshl_b32 s36, s36, 7")
    a("s_add_u32 s35, s35, s36")
    a("s_add_u32 s35, s35, s33")
    a("s_add_u32 s35, s35, 16384")
    a("s_add_u32 s38, s34, 40960")
    a("s_add_u32 s39, s35, 40960")
    a(f"s_mov_b32 s36, {f32(2.0**-64)}")
    a(f"s_mov_b32 s37, {f32(2.0**100)}")
    a.label("Lchk")
    for q in range(2):
        a(f"v_rcp_f32 v{T+2+2*q}, v{O[q]+12}")
        a(f"v_pk_add_f32 {vr(T+6,2)}, {vr(O[q],2)}, {vr(O[q]+2,2)}")
        for i in range(4, 12, 2):
            a(f"v_pk_add_f32 {vr(T+6,2)}, {vr(T+6,2)}, {vr(O[q]+i,2)}")
        a(f"v_add_f32 v{T+6}, v{T+6}, v{T+7}")
        a(f"v_fma_f32 v{T+6}, v{T+6}, 0, v{O[q]+12}")
        a(f"v_cmp_nle_f32 s[{50+4*q}:{51+4*q}], s36, v{T+6}")
        a(f"v_cmp_nge_f32 s[{52+4*q}:{53+4*q}], s37, v{T+6}")
    a("s_or_b64 s[50:51], s[50:51], s[52:53]")
    a("s_or_b64 s[54:55], s[54:55], s[56:57]")
    a("s_or_b64 s[50:51], s[50:51], s[54:55]")
    a("s_and_b64 s[50:51], s[50:51], s[46:47]")
    a("s_cbranch_scc1 Lfallback")
    for q in range(2):
        for i in range(0, 12, 2):
            a(f"v_pk_mul_f32 {vr(O[q]+i,2)}, {vr(O[q]+i,2)}, {vr(T+2+2*q,2)} op_sel_hi:[1,0]")
        for i in range(6):
            a(f"v_cvt_pk_bf16_f32 v{S[1]+8*q+i}, v{O[q]+2*i}, v{O[q]+2*i+1}")
        a(f"buffer_store_dwordx4 {vr(S[1]+8*q,4)}, v{T+1}, s[20:23], s{34+4*q} offen sc1")
    a("s_mov_b32 exec_hi, 0")
    for q in range(2):
        a(f"buffer_store_dwordx2 {vr(S[1]+8*q+4,2)}, v{T}, s[20:23], s{35+4*q} offen sc1")
    a("s_mov_b64 exec, -1")
    a("s_barrier")
    a("s_lshl_b32 s33, s30, 2")
    a("s_add_u32 s33, s33, s28")
    a("s_lshl_b32 s33, s33, 2")
    a("s_lshr_b32 s34, s29, 3")
    a("s_add_u32 s33, s33, s34")
    a(f"s_mul_i32 s33, s33, {CFG['ls']//4}")
    a("s_and_b32 s34, s29, 7")
    a("s_add_u32 s33, s33, s34")
    a("s_lshl_b32 s33, s33, 2")
    a(f"s_add_u32 s33, s33, {F2}")
    ssignal(a, 33, 20)
    stamp(a, 8)

    ACC, AR, WF, RS = 12, 32, 112, 192
    a("v_lshlrev_b32 v1, 4, v0")
    a("v_and_b32 v4, 15, v0")
    a("v_lshrrev_b32 v5, 4, v0")
    a("s_lshl_b32 s33, s29, 2")
    a("s_add_u32 s33, s33, s28")
    a("s_mul_i32 s34, s33, 20480")
    a(f"s_add_u32 s34, s34, {OFF_O}")
    a("v_add_u32 v6, 61440, v1")
    a("v_lshlrev_b32 v7, 3, v0")
    a("v_lshlrev_b32 v8, 4, v4")
    a("v_lshl_add_u32 v9, v5, 10, v8")
    a("v_lshrrev_b32 v10, 1, v5")
    a("v_lshl_add_u32 v8, v10, 9, v8")
    a("v_and_b32 v10, 1, v5")
    a("v_lshl_add_u32 v8, v10, 3, v8")
    a("s_lshr_b32 s35, s33, 1")
    a("s_mul_i32 s35, s35, 40960")
    a("s_and_b32 s36, s33, 1")
    a("s_lshl_b32 s36, s36, 8")
    a("s_add_u32 s35, s35, s36")
    a("s_mul_i32 s36, s30, 5120")
    a("s_add_u32 s35, s35, s36")
    a(f"s_add_u32 s35, s35, {OFF_H}")
    a("s_add_u32 s36, s35, 4096")
    a("v_lshlrev_b32 v10, 3, v4")
    a("s_lshl_b32 s37, s33, 10")
    a("s_lshl_b32 s39, s30, 7")
    a("s_add_u32 s37, s37, s39")
    a(f"s_add_u32 s37, s37, {OFF_ST}")
    a("v_mov_b32 v11, 0x3f803f80")
    def wreads(t, R, ads):
        s, st = t >> 2, t & 3
        sl = s % R
        F = WF + 20 * (t & 3)
        return [f"ds_read_b128 {vr(F+4*tt,4)}, v{ads[sl//3]} offset:{(sl%3)*20480+st*5120+1024*tt}" for tt in range(5)]
    for t in range(2):
        for r in wreads(t, 5, (1, 6)): a(r)
    for i in range(10):
        a(f"v_lshlrev_b32 v{ACC+2*i}, 16, v{XR+i}")
        a(f"v_and_b32 v{ACC+2*i+1}, 0xffff0000, v{XR+i}")
    a(f"s_mul_i32 s33, s29, {4*CFG['ls']}")
    a(f"s_add_u32 s33, s33, {F2}")
    only_h0(a, lambda: spoll(a, 33, [8, 8, 8, 8]))
    a("s_barrier")
    stamp(a, 9)
    vq = []
    def aload(i):
        if i < 16:
            r = [f"buffer_load_dwordx4 {vr(AR+4*i,4)}, v1, s[20:23], s34 offen offset:{1024*(i&3)} sc1"]
        else:
            r = [f"buffer_load_dwordx2 {vr(AR+4*i+2*e,2)}, v7, s[20:23], s34 offen offset:{1024*(i&3)+512*e} sc1" for e in range(2)]
        vq.extend([i] * len(r))
        if i & 3 == 3: r.append("s_add_u32 s34, s34, 4096")
        return r
    N0 = 11
    for i in range(N0):
        for x in aload(i): a(x)
    for t in range(20):
        F = WF + 20 * (t & 3)
        a(f"s_waitcnt vmcnt({sum(1 for x in vq if x > t)}) lgkmcnt({5 if t < 19 else 0})")
        rd = wreads(t + 2, 5, (1, 6)) if t < 18 else []
        for tt in range(5):
            d = vr(ACC + 4 * tt, 4)
            a(f"v_mfma_f32_16x16x32_bf16 {d}, {vr(F+4*tt,4)}, {vr(AR+4*t,4)}, {d}")
            if rd: a(rd[tt])
            if tt == 0 and t + N0 < 20:
                for x in aload(t + N0): a(x)
    stamp(a, 10)
    a("v_mov_b32 v2, 0")
    a("v_mov_b32 v3, 0")
    a("s_nop 2")
    for i in range(10):
        a(f"v_cvt_pk_bf16_f32 v{RS+i}, v{ACC+2*i}, v{ACC+2*i+1}")
        if i == 3: a(f"buffer_store_dwordx4 {vr(RS,4)}, v9, s[20:23], s35 offen sc1")
        if i == 7: a(f"buffer_store_dwordx4 {vr(RS+4,4)}, v9, s[20:23], s35 offen offset:512 sc1")
    a(f"buffer_store_dwordx2 {vr(RS+8,2)}, v8, s[20:23], s36 offen sc1")
    for i in range(10):
        a(f"v_dot2_f32_bf16 v2, v{RS+i}, v11, v2")
        a(f"v_dot2_f32_bf16 v3, v{RS+i}, v{RS+i}, v3")
    a("s_nop 2")
    for sw in ("v_permlane32_swap_b32", "v_permlane16_swap_b32"):
        a("v_mov_b32 v4, v2")
        a("v_mov_b32 v5, v3")
        a("s_nop 1")
        a(f"{sw} v2, v4")
        a(f"{sw} v3, v5")
        a("v_add_f32 v2, v2, v4")
        a("v_add_f32 v3, v3, v5")
    a("s_mov_b64 exec, 0xffff")
    a("buffer_store_dwordx2 v[2:3], v10, s[20:23], s37 offen sc1")
    a("s_mov_b64 exec, -1")
    a("s_barrier")
    for i in range(10):
        a(f"v_lshlrev_b32 v4, 16, v{RS+i}")
        a(f"v_and_b32 v5, 0xffff0000, v{RS+i}")
        a(f"v_pk_add_f32 {vr(RES+2*i,2)}, {vr(RES+2*i,2)}, v[4:5]")
    a("s_lshl_b32 s33, s29, 2")
    a("s_add_u32 s33, s33, s28")
    a(f"s_mul_i32 s33, s33, {CFG['ls']//4}")
    a("s_add_u32 s33, s33, s30")
    a("s_lshl_b32 s33, s33, 2")
    a(f"s_add_u32 s33, s33, {F3}")
    ssignal(a, 33, 21)
    stamp(a, 11)
    a("v_mov_b32 v30, s100")
    a("v_mov_b32 v31, 0")
    a("s_cmp_ge_u32 s32, 28")
    a("s_cbranch_scc1 Lc4skip")

    ACC, AR, NA, WF, CO, SP = 32, 96, 12, 144, 176, 184
    a("v_and_b32 v2, 31, v0")
    a("v_lshrrev_b32 v3, 5, v0")
    a("v_bfe_u32 v4, v0, 2, 2")
    a("v_lshl_add_u32 v5, v3, 3, v4")
    a("v_lshlrev_b32 v5, 8, v5")
    a("v_bfe_u32 v6, v0, 4, 1")
    a("v_lshl_add_u32 v5, v6, 5, v5")
    a("v_and_b32 v6, 3, v0")
    a("v_lshl_add_u32 v5, v6, 3, v5")
    a("v_lshl_add_u32 v16, v4, 6, v5")
    for b in range(1, 4): a(f"v_xor_b32 v{16+b}, {64*b}, v16")
    for b in range(4):
        a(f"v_add_u32 v{12+b}, 102400, v{16+b}")
        a(f"v_add_u32 v{20+b}, 61440, v{16+b}")
    a("v_lshlrev_b32 v6, 3, v2")
    a("s_lshl_b32 s56, s63, 10")
    a(f"s_add_u32 s56, s56, {OFF_CO}")
    a("s_lshl_b32 s33, s62, 2")
    a("s_add_u32 s33, s33, s28")
    a("s_mul_i32 s34, s33, 40960")
    a(f"s_add_u32 s34, s34, {OFF_H}")
    a("s_lshl_b32 s35, s33, 11")
    a(f"s_add_u32 s35, s35, {OFF_ST}")
    a("v_and_b32 v7, 15, v0")
    a("v_lshlrev_b32 v7, 3, v7")
    a("v_lshl_add_u32 v7, v3, 9, v7")
    a("v_bfe_u32 v4, v0, 4, 1")
    a("v_lshl_add_u32 v7, v4, 10, v7")
    a("v_bfe_u32 v4, v0, 4, 1")
    a(f"v_mul_u32_u24 v4, {54*1024}, v4")
    a("v_lshl_add_u32 v4, v3, 8, v4")
    a("v_and_b32 v5, 15, v0")
    a("v_lshl_add_u32 v8, v5, 4, v4")
    a(f"s_mul_i32 s36, s33, {2*54*1024}")
    a("s_lshl_b32 s37, s63, 10")
    a("s_add_u32 s36, s36, s37")
    a(f"s_add_u32 s36, s36, {OFF_G}")
    a("s_lshl_b32 s58, s33, 4")
    a("s_add_u32 s58, s58, s63")
    a("s_lshl_b32 s58, s58, 7")
    a(f"s_add_u32 s58, s58, {F4}")
    a(f"s_add_u32 s57, s58, {FR}")

    k0 = -2 * math.sqrt(2 / math.pi) * math.log2(math.e)
    def w1read(m):
        t, b = m >> 2, m & 3
        F = WF + 4 * (m & 7)
        ad = 12 + 4 * (t // 15) + b
        o = (t % 15) * 4096
        return [f"ds_read_b64_tr_b16 {vr(F,2)}, v{ad} offset:{o}", f"ds_read_b64_tr_b16 {vr(F+2,2)}, v{ad} offset:{o+1024}"]
    PD = 6
    for m in range(PD):
        for r in w1read(m): a(r)
    a(f"s_mul_i32 s37, s33, {2*CFG['ls']}")
    a(f"s_add_u32 s37, s37, {F3}")
    spoll(a, 37, [8, 8])
    a(f"s_mov_b32 s44, {f32(k0)}")
    a(f"s_mov_b32 s45, {f32(k0 * 0.044715)}")
    stamp(a, 12)
    def aload4(i):
        r = [f"buffer_load_dwordx4 {vr(AR+4*(i%NA),4)}, v1, s[20:23], s34 offen offset:{1024*(i&3)} sc1"]
        if i & 3 == 3: r.append("s_add_u32 s34, s34, 4096")
        return r
    N0 = NA - 1
    for i in range(N0):
        for x in aload4(i): a(x)
    extra = [f"buffer_load_dwordx2 {vr(SP+2*j,2)}, v7, s[20:23], s35 offen offset:{128*j} sc1" for j in range(4)]
    extra += [f"buffer_load_dwordx2 {vr(CO+2*b,2)}, v6, s[20:23], s56 offen offset:{256*b} sc1" for b in range(4)]
    fin = Asm()
    fin(f"v_pk_add_f32 {vr(SP,2)}, {vr(SP,2)}, {vr(SP+2,2)}")
    fin(f"v_pk_add_f32 {vr(SP+4,2)}, {vr(SP+4,2)}, {vr(SP+6,2)}")
    fin(f"v_pk_add_f32 {vr(SP,2)}, {vr(SP,2)}, {vr(SP+4,2)}")
    fin(f"v_mov_b32 v{SP+2}, v{SP}")
    fin(f"v_mov_b32 v{SP+3}, v{SP+1}")
    fin(f"v_permlane32_swap_b32 v{SP}, v{SP+2}")
    fin(f"v_permlane32_swap_b32 v{SP+1}, v{SP+3}")
    fin(f"v_pk_add_f32 {vr(SP,2)}, {vr(SP,2)}, {vr(SP+2,2)}")
    ln_final(fin, SP, SP + 1, SP + 2, SP + 4)
    fin(f"v_add_f32 v{SP+8}, v{SP+1}, v{SP+1}")
    fin(f"v_mul_f32 v{SP+6}, s44, v{SP+4}")
    fin(f"v_mul_f32 v{SP+7}, v{SP+4}, v{SP+4}")
    fin(f"v_mul_f32 v{SP+7}, v{SP+7}, v{SP+4}")
    fin(f"v_mul_f32 v{SP+7}, s45, v{SP+7}")
    fin = list(fin.lines)
    vq = list(range(N0))
    for m in range(160):
        t, b = m >> 2, m & 3
        if m + PD == 60: a("s_barrier")
        w = f"lgkmcnt({2 * min(PD - 1, 159 - m)})"
        if b == 0:
            w = f"vmcnt({len(vq) - 1 - vq.index(t)}) " + w
        a(f"s_waitcnt {w}")
        if m == 159: a("s_barrier")
        d = vr(ACC + 16 * b, 16)
        a(f"v_mfma_f32_32x32x16_bf16 {d}, {vr(WF+4*(m&7),4)}, {vr(AR+4*(t%NA),4)}, {'0' if t == 0 else d}")
        if m + PD < 160:
            for r in w1read(m + PD): a(r)
        if b == 1 and t + N0 < 40:
            for x in aload4(t + N0): a(x)
            vq.append(t + N0)
        if b == 3 and 2 <= t <= 9:
            a(extra.pop(0)); vq.append(-1)
        if t >= 20 and b in (0, 2, 3) and fin:
            a(fin.pop(0))
    assert not fin
    for b in range(4):
        d = vr(ACC + 16 * b, 16)
        a(f"v_mfma_f32_32x32x8_bf16 {d}, {vr(CO+2*b,2)}, {vr(SP+2,2)}, {d}")
    stamp(a, 13)
    a("s_nop 8")
    pr = lambda q: vr(q, 2)
    for b in range(4):
        if b == 2:
            a("s_cmp_eq_u32 s63, 13")
            a("s_cbranch_scc1 Lc4e")
        for g in range(2):
            r = ACC + 16 * b + 8 * g
            T0 = 96 + 8 * g
            for i in range(0, 8, 2): a(f"v_pk_mul_f32 {pr(T0+i)}, {pr(r+i)}, {pr(r+i)}")
            for i in range(0, 8, 2): a(f"v_pk_fma_f32 {pr(T0+i)}, {pr(T0+i)}, {pr(SP+6)}, {pr(SP+6)} op_sel:[0,1,0] op_sel_hi:[1,1,0]")
            for i in range(0, 8, 2): a(f"v_pk_mul_f32 {pr(T0+i)}, {pr(T0+i)}, {pr(r+i)}")
            for i in range(8): a(f"v_exp_f32 v{T0+i}, v{T0+i}")
            for i in range(0, 8, 2): a(f"v_pk_fma_f32 {pr(T0+i)}, {pr(T0+i)}, {pr(SP+8)}, {pr(SP+8)} op_sel_hi:[1,0,0]")
            for i in range(8): a(f"v_rcp_f32 v{T0+i}, v{T0+i}")
            for i in range(0, 8, 2): a(f"v_pk_mul_f32 {pr(r+i)}, {pr(r+i)}, {pr(T0+i)}")
            t = 112 + 4 * (g + 2 * (b & 1))
            for i in range(4):
                a(f"v_cvt_pk_bf16_f32 v{t+i}, v{r+2*i}, v{r+2*i+1}")
            a(f"buffer_store_dwordx4 {vr(t,4)}, v8, s[20:23], s36 offen offset:{512*g} sc1")
            if (b, g) == (2, 0): vsignal(a, 58, 3)
            if (b, g) == (3, 0): vsignal(a, 57, 4)
        if b < 3: a(f"s_add_u32 s36, s36, {(POS[b+1]-POS[b])*1024}")
    stamp(a, 14)
    a("s_waitcnt vmcnt(3)")
    a("s_branch Lc5")
    a.label("Lc4e")
    vsignal(a, 58, 0)
    vsignal(a, 57, 1)
    a("s_branch Lc5")
    a.label("Lc4skip")
    a("s_barrier")
    a.label("Lc5")
    stamp(a, 15)

    AR, NA, WF, OTH = 32, 8, 112, 172
    a("s_and_b32 s36, s28, 1")
    a("s_mul_i32 s37, s36, 5120")
    a("v_add_u32 v5, s37, v1")
    a("v_add_u32 v6, 61440, v5")
    a("v_add_u32 v7, 122880, v5")
    a("s_lshl_b32 s33, s29, 2")
    a("s_add_u32 s33, s33, s28")
    a(f"s_mul_i32 s34, s33, {54*1024}")
    a("s_xor_b32 s33, s33, 1")
    a(f"s_mul_i32 s35, s33, {54*1024}")
    a("s_lshl_b32 s36, s36, 10")
    a(f"s_add_u32 s36, s36, {OFF_G}")
    a("s_add_u32 s34, s34, s36")
    a("s_add_u32 s35, s35, s36")
    a("s_mul_i32 s36, s28, 5120")
    a(f"s_add_u32 s36, s36, {6*20480}")
    a("v_add_u32 v8, s36, v1")
    a("s_xor_b32 s36, s28, 1")
    a("s_mul_i32 s36, s36, 5120")
    a(f"s_add_u32 s36, s36, {6*20480}")
    a("v_add_u32 v9, s36, v1")
    srd(a, 16, POUT, 2048 * 1280)
    a("s_mul_i32 s36, s28, 2816")
    a(f"s_add_u32 s36, s36, {7*20480}")
    a("v_and_b32 v2, 15, v0")
    a("v_lshrrev_b32 v3, 4, v0")
    a("v_mul_u32_u24 v2, 176, v2")
    a("v_add_u32 v2, s36, v2")
    a("v_lshl_add_u32 v10, v3, 5, v2")
    a("v_lshl_add_u32 v11, v3, 3, v2")
    for i in range(3):
        a(f"v_add_u32 v2, {64*i}, v0")
        a("v_mul_u32_u24 v3, 52429, v2")
        a("v_lshrrev_b32 v3, 19, v3")
        a("v_mul_u32_u24 v4, 10, v3")
        a("v_sub_u32 v2, v2, v4")
        a("v_lshlrev_b32 v2, 4, v2")
        a("v_mul_u32_u24 v4, 176, v3")
        a(f"v_add3_u32 v{12+i}, v4, v2, s36")
        a("v_mul_u32_u24 v4, 1280, v3")
        a(f"v_add_u32 v{16+i}, v4, v2")
    def gload(i):
        r = [f"buffer_load_dwordx4 {vr(AR+8*(i%NA)+4*h,4)}, v1, s[20:23], s{34+h} offen offset:{2048*(i&1)} sc1" for h in range(2)]
        if i & 1: r += ["s_add_u32 s34, s34, 4096", "s_add_u32 s35, s35, 4096"]
        return r
    def w2reads(i):
        sl = (i >> 1) % 8
        F = WF + 20 * (i % 3)
        return [f"ds_read_b128 {vr(F+4*tt,4)}, v{5+sl//3} offset:{(sl%3)*20480+(i&1)*10240+1024*tt}" for tt in range(5)]
    a("s_barrier")
    stamp(a, 16)
    N0 = CFG["n5"]
    for i in range(N0):
        for x in gload(i): a(x)
    for r in w2reads(0) + w2reads(1): a(r)
    for i in range(27):
        F = WF + 20 * (i % 3)
        if i == 14: stamp(a, 26)
        if i + 2 < 27 and (i & 1) == 0: a("s_barrier")
        if i in (4, 14, 20): stamp(a, {4: 25, 14: 27, 20: 28}[i])
        a(f"s_waitcnt vmcnt({2*min(N0 - 1, 26 - i)}) lgkmcnt({5 if i < 26 else 0})")
        rd = w2reads(i + 2) if i < 25 else []
        gl = gload(i + N0) if i + N0 < 27 else []
        for h in (1, 0):
            for tt in range(5):
                d = vr((RES if h == 0 else OTH) + 4 * tt, 4)
                c = "0" if (h == 1 and i == 0) else d
                a(f"v_mfma_f32_16x16x32_bf16 {d}, {vr(F+4*tt,4)}, {vr(AR+8*(i%NA)+4*h,4)}, {c}")
                if h == 1 and rd: a(rd[tt])
                if h == 0 and gl and tt in (0, 2):
                    for x in (gl[:1] if tt == 0 else gl[1:]): a(x)
    stamp(a, 17)
    a("s_nop 2")
    for tt in range(5): a(f"ds_write_b128 v8, {vr(OTH+4*tt,4)} offset:{1024*tt}")
    a("s_waitcnt lgkmcnt(0)")
    a("s_barrier")
    for tt in range(5): a(f"ds_read_b128 {vr(OTH+4*tt,4)}, v9 offset:{1024*tt}")
    for tt in range(5):
        a(f"s_waitcnt lgkmcnt({4-tt})")
        for j in (0, 2): a(f"v_pk_add_f32 {vr(RES+4*tt+j,2)}, {vr(RES+4*tt+j,2)}, {vr(OTH+4*tt+j,2)}")
    for i in range(10):
        a(f"v_cvt_pk_bf16_f32 v{RS+i}, v{RES+2*i}, v{RES+2*i+1}")
        if i == 3: a(f"ds_write_b128 v10, {vr(RS,4)}")
        if i == 7: a(f"ds_write_b128 v10, {vr(RS+4,4)} offset:16")
    a(f"ds_write_b64 v11, {vr(RS+8,2)} offset:128")
    a("s_waitcnt lgkmcnt(0)")
    for i in range(3): a(f"ds_read_b128 {vr(RS+12+4*i,4)}, v{12+i}")
    for i in range(3):
        a(f"s_waitcnt lgkmcnt({2-i})")
        if i == 2: a("s_mov_b32 exec_hi, 0")
        a(f"buffer_store_dwordx4 {vr(RS+12+4*i,4)}, v{16+i}, s[16:19], s59 offen")
    finish(a)

    a.label("Lfallback")
    C = 188
    a("s_mov_b64 s[46:47], 0")
    a(f"v_subrev_u32 v{AK}, {4*40960}, v{AK}")
    a(f"v_subrev_u32 v22, {4*40960}, v22")
    a(f"v_subrev_u32 v{AV}, {4*40960}, v{AV}")
    a(f"v_add_u32 v{T+8}, 5120, v{AV}")
    a(f"v_add_u32 v{T+9}, {5120+2560}, v{AV}")
    a(f"v_add_u32 v22, 4096, v22")
    for ps in range(2):
        a(f"s_mul_i32 s42, s29, {UNIT}")
        a(f"s_add_u32 s42, s42, {32*UNIT}")
        a("s_mov_b32 s43, 16")
        if ps == 0:
            a(f"v_mov_b32 v{T+6}, 0xff800000")
            a(f"v_mov_b32 v{T+7}, 0xff800000")
        else:
            for i in range(32): a(f"v_mov_b32 v{O[0]+i}, 0")
        a.label(f"Lfb{ps}")
        for t in range(4):
            a(f"buffer_load_dwordx4 {vr(KA[0]+4*t,4)}, v{AK}, s[20:23], s42 offen offset:{512*t} sc1")
        a(f"buffer_load_dwordx4 {vr(KB[0],4)}, v22, s[20:23], s42 offen sc1")
        if ps:
            a("s_mov_b64 exec, s[40:41]")
            for j in range(8):
                a(f"buffer_load_dwordx4 {vr(V[0]+4*j,4)}, v{T+8+(j>>2)}, s[20:23], s42 offen offset:{640*(j&3)} sc1")
            a("s_mov_b64 exec, -1")
        a("s_waitcnt vmcnt(0)")
        for q in range(2):
            for t in range(4):
                d = vr(S[t], 16)
                a(f"v_mfma_f32_32x32x16_bf16 {d}, {vr(KA[0]+4*t,4)}, {vr(QA[q],4)}, {vr(C+16*q,16) if ps else '0'}")
                a(f"v_mfma_f32_32x32x8_bf16 {d}, {vr(KB[0]+2*(t&1),2)}, {vr((QBB if t&2 else QBA)[q],2)}, {d}")
            a("s_nop 15")
            if ps == 0:
                for i in range(32):
                    a(f"v_max3_f32 v{T+6+q}, v{T+6+q}, v{S[0]+2*i}, v{S[0]+2*i+1}")
            else:
                for i in range(64): a(f"v_exp_f32 v{S[0]+i}, v{S[0]+i}")
                a("s_nop 1")
                for j in range(8):
                    a(f"v_smfmac_f32_32x32x32_bf16 {vr(O[q],16)}, {vr(V[0]+4*j,4)}, {vr(S[0]+8*j,8)}, v{IDX}")
        a("s_add_u32 s42, s42, 10240")
        a("s_sub_u32 s43, s43, 1")
        a("s_cmp_lg_u32 s43, 0")
        a(f"s_cbranch_scc1 Lfb{ps}")
        if ps == 0:
            for q in range(2):
                a(f"v_mov_b32 v{T+2}, v{T+6+q}")
                a("s_nop 1")
                a(f"v_permlane32_swap_b32 v{T+6+q}, v{T+2}")
                a(f"v_max_f32 v{T+6+q}, v{T+6+q}, v{T+2}")
                for i in range(16):
                    a(f"v_sub_f32 v{C+16*q+i}, 0, v{T+6+q}")
    a("s_nop 15")
    a("s_branch Lchk")

def build():
    a = Asm()
    a(f".globl {KN}")
    a(".p2align 8")
    a(f".type {KN},@function")
    a.label(KN)
    a("s_cmp_ge_u32 s2, 256")
    a("s_cbranch_scc1 Lend")
    a("s_load_dwordx16 s[64:79], s[0:1], 0")
    a("s_load_dwordx4 s[80:83], s[0:1], 64")
    a("s_load_dwordx2 s[84:85], s[0:1], 80")
    a("v_lshrrev_b32 v1, 6, v0")
    a("v_and_b32 v0, 63, v0")
    a("s_getreg_b32 s60, hwreg(HW_REG_XCC_ID, 0, 4)")
    a("v_readfirstlane_b32 s3, v1")
    a(f"v_mov_b32 v201, {IDS}")
    if CFG["prof"]:
        a("v_mov_b32 v255, 0")
        stamp(a, 0)
    if CFG["cp0"]:
        CFG["_hi"][KN] = -1
        a("s_cmp_lg_u32 s3, 7")
        a("s_cbranch_scc1 Lnocp")
        code_prefetch(a, KN, CFG["cp0"], 204)
        a.label("Lnocp")
    a("s_and_b32 s28, s3, 3")
    a("s_cmp_lg_u32 s3, 0")
    a("s_waitcnt lgkmcnt(0)")
    a("s_cbranch_scc1 Lnoask")
    ticket_ask(a)
    a.label("Lnoask")
    srd(a, 20, PWS, WS_SIZE)
    a("s_cmp_lt_u32 s3, 4")
    a("s_cbranch_scc1 Lc1")
    p1_helper(a)
    a("s_branch Lh2")
    a.label("Lc1")
    p1_compute(a)
    compute_rest(a)
    helper_rest(a)
    a.label("Lend")
    a("s_endpgm")
    p1_spare(a)
    a.label("Lcode_end")
    errs = check(a.lines)
    for e in errs: print(e, file=sys.stderr)
    head = open(f"cdna_kernels/{NAME}.s.ref").read().split("; Override")[0]
    head += "; @launch grid=(256,1,1) block=(512,1,1) lds=163840\n"
    d = f""".section .rodata,"a"
.p2align 6
.amdhsa_kernel {KN}
  .amdhsa_next_free_vgpr 256
  .amdhsa_next_free_sgpr 102
  .amdhsa_accum_offset 256
  .amdhsa_group_segment_fixed_size 0
  .amdhsa_kernarg_size 88
  .amdhsa_user_sgpr_count 2
  .amdhsa_user_sgpr_kernarg_segment_ptr 1
  .amdhsa_system_sgpr_workgroup_id_x 1
.end_amdhsa_kernel
"""
    return head + '.amdgcn_target "amdgcn-amd-amdhsa--gfx950"\n.text\n' + a.text() + d, errs

if __name__ == "__main__":
    out = sys.argv[1] if len(sys.argv) > 1 else f"cdna_kernels/{NAME}.s"
    for kv in sys.argv[2:]:
        k, v = kv.split("="); CFG[k] = int(v)
    txt, errs = build()
    open(out, "w").write(txt)
    print("written", out, len(txt), "bytes; hazards:", len(errs))
```

```python
import sys, math, struct
from asmlib import Asm, vr, sr, check

NAME = "sequential_preLN__softmax_full_mha__dense_activation_gelu__prompt"
KN = NAME + "_kernel"
UNIT = 163840
OFF_O = 64 * UNIT
OFF_H = OFF_O + 2621440
OFF_G = OFF_H + 2621440
OFF_WO = OFF_G + 128 * 54 * 1024
OFF_W2 = OFF_WO + 640 * 1280
OFF_ST = OFF_W2 + 1728 * 1280
OFF_CO = OFF_ST + 2048 * 64
OFF_TS = OFF_CO + 16384
OFF_CP = OFF_TS + 32768
OFF_F = OFF_CP + 16 * 7680
F2H, F0, F1 = [OFF_F + 32768 * i for i in range(3)]
FR = 131072
F2, F3, F4 = [OFF_F + 98304 + FR * i for i in range(3)]
WS_END = F4 + 4 * FR
POS = [0, 14, 28, 41]
WS_SIZE = WS_END + 65536
OFF_PROF = 64 << 20
PX, PWQKV, PWO, PW1, PB1, PW2, PB2, POUT, PDBG, PWS = 64, 66, 68, 72, 74, 76, 78, 80, 82, 84
SPIN = 200000

CFG = dict(rot1=0, prof=0, n01=20, prio=1, pf=1, thr=8, cpf=1, ps=6, sl1=0, fpl=4, xpf=0, n5=6, ls=128, sl4=2, pt=1, cp0=2, x1=0, da=0, db=-1, sg=6, _hi={})

def f32(x):
    return "0x%08x" % struct.unpack("<I", struct.pack("<f", x))[0]

def srd(a, d, p, size, off=0):
    if off:
        a(f"s_add_u32 s{d}, s{p}, {off}")
        a(f"s_addc_u32 s{d+1}, s{p+1}, 0")
    else:
        a(f"s_mov_b32 s{d}, s{p}")
        a(f"s_mov_b32 s{d+1}, s{p+1}")
    a(f"s_mov_b32 s{d+2}, {size}")
    a(f"s_mov_b32 s{d+3}, 0x20000")

def stamp(a, i):
    if CFG["db"] >= 0:
        if i == CFG["da"]: a("s_memrealtime s[96:97]")
        if i == CFG["db"]: a("s_memrealtime s[98:99]")
    if CFG["prof"]:
        a("s_memrealtime s[96:97]")
        a("s_memtime s[98:99]")
        a("s_waitcnt lgkmcnt(0)")
        a(f"v_writelane_b32 v255, s96, {i}")
        a(f"v_writelane_b32 v255, s98, {32+i}")

def finish(a, c=False):
    if CFG["db"] >= 0 and c:
        if CFG["db"] == 31:
            a("s_waitcnt vmcnt(0)")
            stamp(a, 31)
        a("s_memrealtime s[92:93]")
        a("s_waitcnt lgkmcnt(0)")
        a("s_sub_u32 s98, s98, s96")
        a("s_cmp_gt_u32 s98, 5000")
        a("s_cselect_b32 s98, 0, s98")
        a("s_lshl_b32 s98, s98, 2")
        a.label("Ldiag")
        a("s_memrealtime s[94:95]")
        a("s_waitcnt lgkmcnt(0)")
        a("s_sub_u32 s94, s94, s92")
        a("s_cmp_lt_u32 s94, s98")
        a("s_cbranch_scc1 Ldiag")
    if CFG["prof"]:
        a("s_waitcnt vmcnt(0)")
        stamp(a, 31)
        a("s_mov_b64 exec, -1")
        srd(a, 92, PWS, "0x8000000")
        a("s_lshl_b32 s96, s2, 3")
        a("s_add_u32 s96, s96, s3")
        a("s_lshl_b32 s96, s96, 8")
        a(f"s_add_u32 s96, s96, {OFF_PROF}")
        a("v_lshlrev_b32 v254, 2, v0")
        a("buffer_store_dword v255, v254, s[92:95], s96 offen")
        if CFG["prof"] > 1:
            a("s_add_u32 s96, s96, 0x80000")
            a("buffer_store_dword v253, v254, s[92:95], s96 offen")
    a("s_endpgm")

def bf16_round(a, dst, src):
    a(f"v_cvt_pk_bf16_f32 v{dst}, v{src}, v{src}")
    a(f"v_lshlrev_b32 v{dst}, 16, v{dst}")

_uid = [0]
def uid(p):
    _uid[0] += 1
    return f"U{p}{_uid[0]}"

def signal(a, sflag, vt, st=None):
    a(f"v_mov_b32 v{vt}, s100")
    a(f"v_lshlrev_b32 v{vt+1}, 2, s28")
    if st is not None: stamp(a, st)
    a("s_waitcnt vmcnt(0)")
    a("s_mov_b64 exec, 1")
    a(f"buffer_store_dword v{vt}, v{vt+1}, s[20:23], s{sflag} offen sc1")
    a("s_mov_b64 exec, -1")

def ssignal(a, sflag, st=None, n=0):
    if st is not None: stamp(a, st)
    a(f"s_waitcnt vmcnt({n})")
    a(f"s_atomic_swap s100, s[{PWS}:{PWS+1}], s{sflag}")

def vsignal(a, sflag, n):
    a(f"s_waitcnt vmcnt({n})")
    a("s_mov_b64 exec, 1")
    a(f"buffer_store_dword v30, v31, s[20:23], s{sflag} offen sc1")
    a("s_mov_b64 exec, -1")

def poll(a, va, nl, width=1, vd=4, sleep=0):
    L, E = uid("p"), uid("e")
    a(f"s_mov_b32 s60, {SPIN}")
    m = (1 << nl) - 1
    if nl < 64:
        a(f"s_mov_b32 exec_lo, {hex(m & 0xffffffff)}")
        a(f"s_mov_b32 exec_hi, {hex(m >> 32)}")
    a.label(L)
    if sleep: a(f"s_sleep {sleep}")
    op = {1: "dword", 2: "dwordx2", 4: "dwordx4"}[width]
    a(f"buffer_load_{op} {vr(vd,width)}, v{va}, s[20:23], 0 offen sc1")
    a("s_sub_u32 s60, s60, 1")
    a(f"s_cbranch_scc1 {E}")
    a("s_waitcnt vmcnt(0)")
    tagcheck(a, vd, width)
    a(f"s_cbranch_scc1 {L}")
    a.label(E)
    a("s_waitcnt vmcnt(0)")
    a("s_mov_b64 exec, -1")

def tagcheck(a, vd, width):
    for i in range(width):
        a(f"v_xor_b32 v{vd+i}, s100, v{vd+i}")
    if width == 2: a(f"v_or_b32 v{vd}, v{vd}, v{vd+1}")
    if width == 4:
        a(f"v_or3_b32 v{vd}, v{vd}, v{vd+1}, v{vd+2}")
        a(f"v_or_b32 v{vd}, v{vd}, v{vd+3}")
    a(f"v_cmp_ne_u32 vcc, 0, v{vd}")
    a("s_nop 1")
    a("s_cmp_lg_u64 vcc, 0")

def spoll(a, soff, counts):
    L, E = uid("p"), uid("e")
    regs = [4, 40, 48, 88]
    a(f"s_add_u32 s86, s{PWS}, s{soff}")
    a(f"s_addc_u32 s87, s{PWS+1}, 0")
    a(f"s_mov_b32 s60, {SPIN}")
    a.label(L)
    for i in range(len(counts)):
        a(f"s_load_dwordx8 s[{regs[i]}:{regs[i]+7}], s[86:87], {CFG['ls']*i} glc")
    a("s_sub_u32 s60, s60, 1")
    a(f"s_cbranch_scc1 {E}")
    a("s_waitcnt lgkmcnt(0)")
    for i, n in enumerate(counts):
        for j in range(0, n, 2):
            a(f"s_cmp_lg_u64 s[{regs[i]+j}:{regs[i]+j+1}], s[100:101]")
            a(f"s_cbranch_scc1 {L}")
    a.label(E)
    a("s_waitcnt lgkmcnt(0)")

def tag_load(a):
    srd(a, 24, PDBG, 256)
    a("v_mov_b32 v205, 0")
    a("buffer_load_dword v204, v205, s[24:27], 0 offen sc1")

def tag_take(a):
    L, E = uid("z"), uid("z")
    a(f"s_mov_b32 s60, {SPIN}")
    a.label(L)
    a("v_readfirstlane_b32 s100, v204")
    a("s_nop 0")
    a("s_cmp_lg_u32 s100, 0")
    a(f"s_cbranch_scc1 {E}")
    a("buffer_load_dword v204, v205, s[24:27], 0 offen sc1")
    a("s_waitcnt vmcnt(0)")
    a("s_sub_u32 s60, s60, 1")
    a(f"s_cbranch_scc0 {L}")
    a.label(E)
    a("s_mov_b32 s101, s100")

def only_h0(a, body):
    L = uid("h")
    a("s_cmp_lg_u32 s28, 0")
    a(f"s_cbranch_scc1 {L}")
    body()
    a.label(L)

def relayout_task(a):
    a("s_and_b32 s34, s54, 7")
    a("s_lshr_b32 s35, s54, 3")
    a("s_and_b32 s36, s35, 3")
    a("s_mul_i32 s48, s36, 14")
    a("s_lshr_b32 s49, s35, 2")
    a("s_add_u32 s48, s48, s49")
    a("s_cmp_eq_u32 s36, 3")
    a("s_subb_u32 s48, s48, 0")
    a("s_sub_u32 s36, s35, 54")
    a("s_cselect_b32 s48, s48, s36")
    a(f"s_cselect_b32 s12, s{PW2}, s{PWO}")
    a(f"s_cselect_b32 s13, s{PW2+1}, s{PWO+1}")
    a(f"s_mov_b32 s14, {640*1280}")
    a(f"s_cselect_b32 s14, {1728*1280}, s14")
    a("s_mov_b32 s15, 0x20000")
    a("s_cselect_b32 s35, s35, s36")
    a("s_cselect_b32 s37, 54, 20")
    a(f"s_mov_b32 s56, {OFF_WO}")
    a(f"s_cselect_b32 s56, {OFF_W2}, s56")
    a("s_cselect_b32 s44, 16, 20")
    a("s_cselect_b32 s45, 32, 40")
    a("s_mul_i32 s37, s37, s34")
    a("s_add_u32 s37, s37, s48")
    a("s_mul_i32 s37, s37, 5120")
    a("s_add_u32 s56, s56, s37")
    a("s_cmp_ge_u32 s54, 560")
    a("s_cselect_b32 s44, 80, s44")
    a("s_cselect_b32 s45, 160, s45")
    a("s_cselect_b32 s46, 20, 4")
    a("s_cselect_b32 s47, 40, 8")
    a("s_cselect_b32 s36, -2544, 0")
    a("s_mul_i32 s50, s35, s45")
    a("s_add_u32 s50, s50, s36")
    a("s_add_u32 s51, s50, s47")
    a("s_mul_i32 s50, s50, 1280")
    a("s_mul_i32 s51, s51, 1280")
    a("s_mul_i32 s34, s34, 160")
    a("s_add_u32 s50, s50, s34")
    a("s_add_u32 s51, s51, s34")
    a("v_lshrrev_b32 v2, 5, v0")
    a("v_mul_u32_u24 v2, s44, v2")
    a("v_bfe_u32 v3, v0, 4, 1")
    a("v_mul_u32_u24 v3, s46, v3")
    a("v_add_u32 v2, v2, v3")
    a("v_mul_u32_u24 v2, 1280, v2")
    a("v_and_b32 v3, 15, v0")
    a("v_lshl_add_u32 v9, v3, 1, v2")
    a("v_bfe_u32 v3, v0, 2, 2")
    a("v_mul_u32_u24 v3, 24, v3")
    a("v_add_u32 v8, v9, v3")

def relayout_load(a):
    R = 32
    for tt in range(5):
        for e in range(8):
            op = "buffer_load_short_d16_hi" if e & 1 else "buffer_load_ushort"
            va, o = (8, 8 * tt) if tt < 4 else (9, 128)
            a(f"{op} v{R+8*tt+4*(e&1)+(e>>1)}, v{va}, s[12:15], s{50+(e>>2)} offen offset:{1280*(e&3)+o}")

def relayout_store(a):
    R = 32
    a("v_add_u32 v2, 4096, v1")
    a("s_mov_b32 s33, 0xffff0000")
    for tt in range(5):
        a(f"s_waitcnt vmcnt({32-7*tt})")
        for p in range(4):
            a(f"v_and_or_b32 v{R+8*tt+p}, v{R+8*tt+4+p}, s33, v{R+8*tt+p}")
        if tt < 4: a(f"buffer_store_dwordx4 {vr(R+8*tt,4)}, v1, s[20:23], s56 offen offset:{1024*tt} sc1")
        else: a(f"buffer_store_dwordx4 {vr(R+8*tt,4)}, v2, s[20:23], s56 offen sc1")

STAT = 131072
IDS = STAT + 3072

def ticket(a):
    L, E, X = uid("t"), uid("t"), uid("t")
    a("s_cmp_lg_u32 s3, 0")
    a(f"s_cbranch_scc1 {X}")
    a("s_mov_b32 s61, 7")
    a.label(L)
    a("s_waitcnt lgkmcnt(0)")
    a("s_cmp_lt_u32 s57, 32")
    a(f"s_cbranch_scc1 {E}")
    a("s_sub_u32 s61, s61, 1")
    a(f"s_cbranch_scc1 {E}")
    a("s_add_u32 s60, s60, 1")
    ticket_ask(a)
    a(f"s_branch {L}")
    a.label(E)
    a("s_and_b32 s57, s57, 31")
    a("s_lshl_b32 s57, s57, 3")
    a("s_add_u32 s57, s57, s60")
    a("v_mov_b32 v200, s57")
    a("ds_write_b32 v201, v200")
    a("s_waitcnt lgkmcnt(0)")
    a.label(X)
    a("s_barrier")
    a("ds_read_b32 v200, v201")
    a("s_waitcnt lgkmcnt(0)")
    a("v_readfirstlane_b32 s32, v200")
    a("s_nop 0")
    if CFG["prof"]:
        a("s_nop 2")
        a("v_writelane_b32 v255, s32, 62")
    a("s_and_b32 s31, s32, 7")
    a("s_lshr_b32 s32, s32, 3")
    a("s_and_b32 s33, s31, 1")
    a("s_mul_i32 s33, s33, 30")
    a("s_add_u32 s33, s33, s32")
    a("s_lshr_b32 s30, s33, 2")
    a("s_and_b32 s33, s33, 3")
    a("s_lshr_b32 s29, s31, 1")
    a("s_lshl_b32 s29, s29, 2")
    a("s_add_u32 s29, s29, s33")

def ticket_ask(a):
    a("s_and_b32 s60, s60, 7")
    a("s_lshl_b32 s57, s60, 5")
    a(f"s_add_u32 s86, s{PDBG}, s57")
    a(f"s_addc_u32 s87, s{PDBG+1}, 0")
    a("s_mov_b32 s57, 1")
    a("s_atomic_add s57, s[86:87], 16 glc")

def stats_issue(a):
    a("s_cmp_ge_u32 s3, 2")
    a("s_cbranch_scc1 Lst_w")
    srd(a, 12, PX, 2048 * 1280)
    a("v_lshrrev_b32 v228, 4, v0")
    a("v_and_b32 v229, 15, v0")
    a("v_mul_u32_u24 v230, 1280, v228")
    a("v_lshl_add_u32 v230, v229, 4, v230")
    a("s_lshl_b32 s33, s2, 1")
    a("s_add_u32 s33, s33, s3")
    a("s_mul_i32 s34, s33, 5120")
    for i in range(5):
        a(f"buffer_load_dwordx4 {vr(208+4*i,4)}, v230, s[12:15], s34 offen offset:{256*i}")
    a("s_branch Lst_i")
    a.label("Lst_w")
    srd(a, 12, PWQKV, 640 * 3840)
    a("v_lshrrev_b32 v228, 3, v0")
    a("v_and_b32 v229, 7, v0")
    a("v_mul_u32_u24 v230, 3840, v228")
    a("v_lshl_add_u32 v230, v229, 4, v230")
    a("s_and_b32 s33, s2, 7")
    a("s_lshl_b32 s33, s33, 1")
    a("s_add_u32 s33, s33, s3")
    a("s_sub_u32 s33, s33, 2")
    a(f"s_mul_i32 s34, s33, {40*3840}")
    a("s_lshr_b32 s35, s2, 3")
    a("s_min_u32 s35, s35, 29")
    a("s_lshl_b32 s36, s35, 7")
    a("s_add_u32 s34, s34, s36")
    for i in range(5):
        a(f"buffer_load_dwordx4 {vr(208+4*i,4)}, v230, s[12:15], s34 offen")
        a(f"s_add_u32 s34, s34, {8*3840}")
    a.label("Lst_i")
    a("s_mov_b32 s52, s33")
    a("s_mov_b32 s53, s35")

def stats_finish(a):
    W_, E_ = uid("w"), uid("w")
    a("s_cmp_ge_u32 s3, 2")
    a(f"s_cbranch_scc1 {W_}")
    a("v_mov_b32 v234, 0x3f803f80")
    for i in range(4): a(f"v_mov_b32 v{226+10+i}, 0")
    a("s_waitcnt vmcnt(0)")
    for i in range(20):
        a(f"v_dot2_f32_bf16 v{226+10+(i&1)}, v{208+i}, v234, v{226+10+(i&1)}")
        a(f"v_dot2_f32_bf16 v{226+12+(i&1)}, v{208+i}, v{208+i}, v{226+12+(i&1)}")
    a("s_nop 2")
    a("v_add_f32 v236, v236, v237")
    a("v_add_f32 v238, v238, v239")
    for r in (8, 4, 2, 1):
        a("s_nop 1")
        a(f"v_add_f32_dpp v236, v236, v236 row_ror:{r} row_mask:0xf bank_mask:0xf")
        a(f"v_add_f32_dpp v238, v238, v238 row_ror:{r} row_mask:0xf bank_mask:0xf")
    ln_final(a, 236, 238, 244, 246)
    a("v_and_b32 v230, 48, v0")
    a("s_lshl_b32 s54, s52, 6")
    a(f"s_add_u32 s54, s54, {OFF_TS}")
    a("s_mov_b32 exec_lo, 0x00010001")
    a("s_mov_b32 exec_hi, 0x00010001")
    a("buffer_store_dwordx4 v[244:247], v230, s[20:23], s54 offen sc1")
    a("s_mov_b64 exec, -1")
    a(f"s_branch {E_}")
    a.label(W_)
    a("v_mov_b32 v234, 0x3f80")
    a("v_mov_b32 v235, 0x3f800000")
    for i in range(8): a(f"v_mov_b32 v{226+10+i}, 0")
    a("s_waitcnt vmcnt(0)")
    for i in range(5):
        for j in range(4):
            a(f"v_dot2_f32_bf16 v{226+10+2*j}, v{208+4*i+j}, v234, v{226+10+2*j}")
            a(f"v_dot2_f32_bf16 v{226+11+2*j}, v{208+4*i+j}, v235, v{226+11+2*j}")
    a("s_nop 2")
    for j in range(4): a(f"v_permlane32_swap_b32 v{226+10+j}, v{226+14+j}")
    for j in range(4): a(f"v_add_f32 v{226+10+j}, v{226+10+j}, v{226+14+j}")
    a("s_nop 0")
    for j in range(2): a(f"v_permlane16_swap_b32 v{226+10+j}, v{226+12+j}")
    for j in range(2): a(f"v_add_f32 v{226+10+j}, v{226+10+j}, v{226+12+j}")
    a("v_and_b32 v230, 7, v0")
    a("v_lshlrev_b32 v230, 5, v230")
    for j in range(2): a(f"v_add_f32_dpp v{226+10+j}, v{226+10+j}, v{226+10+j} row_ror:8 row_mask:0xf bank_mask:0xf")
    a("v_lshrrev_b32 v231, 4, v0")
    a("v_lshl_add_u32 v230, v231, 3, v230")
    a("s_mul_i32 s54, s52, 7680")
    a("s_lshl_b32 s55, s53, 8")
    a("s_add_u32 s54, s54, s55")
    a(f"s_add_u32 s54, s54, {OFF_CP}")
    a("buffer_store_dwordx2 v[236:237], v230, s[20:23], s54 offen sc1")
    a.label(E_)
    tag_load(a)

def stats_signal(a):
    a("s_waitcnt vmcnt(0)")
    tag_take(a)
    a("s_lshl_b32 s33, s2, 7")
    a(f"s_add_u32 s33, s33, {F0}")
    signal(a, 33, 202)

def code_prefetch(a, l0, n, v):
    P = uid("c")
    a("s_getpc_b64 s[90:91]")
    a.label(P)
    a(f"s_add_u32 s90, s90, {l0}-{P}")
    a(f"s_addc_u32 s91, s91, {CFG['_hi'].get(l0, 0)}")
    a(f"v_lshlrev_b32 v{v+3}, 7, v0")
    for i in range(n):
        a(f"v_min_u32 v{v}, Lcode_end-{l0}-4, v{v+3}")
        a(f"v_mov_b32 v{v+1}, s91")
        a(f"v_add_co_u32 v{v}, vcc, s90, v{v}")
        a(f"v_add_u32 v{v+3}, 8192, v{v+3}")
        a("s_nop 0")
        a(f"v_addc_co_u32 v{v+1}, vcc, 0, v{v+1}, vcc")
        a(f"global_load_dword v{v+2}, v[{v}:{v+1}], off")

def p1_spare(a):
    a.label("Lspare_h")
    tag_load(a)
    a("s_waitcnt vmcnt(0)")
    tag_take(a)
    a("s_branch Lspare")
    a.label("Lspare_c")
    stats_finish(a)
    stats_signal(a)
    a.label("Lspare")
    a("s_sub_u32 s29, s32, 30")
    a("s_lshl_b32 s29, s29, 3")
    a("s_add_u32 s29, s29, s31")
    a("s_cmp_ge_u32 s29, 14")
    a("s_cbranch_scc1 Lsp_done")
    srd(a, 12, PW1, 640 * 3456)
    srd(a, 16, PB1, 1728 * 2)
    a("v_lshrrev_b32 v2, 4, v0")
    a("v_and_b32 v3, 15, v0")
    a("v_mul_u32_u24 v2, 3456, v2")
    a("v_lshl_add_u32 v2, v3, 4, v2")
    a(f"s_mul_i32 s33, s3, {80*3456}")
    a("s_lshl_b32 s34, s29, 8")
    a("s_add_u32 s33, s33, s34")
    for i in range(20):
        a(f"buffer_load_dwordx4 {vr(96+4*i,4)}, v2, s[12:15], s33 offen")
        a(f"s_add_u32 s33, s33, {4*3456}")
    a("v_lshlrev_b32 v4, 1, v0")
    a("s_lshl_b32 s35, s3, 7")
    a("s_add_u32 s35, s35, s34")
    a("buffer_load_ushort v90, v4, s[16:19], s35 offen")
    a("v_mov_b32 v88, 0x3f80")
    a("v_mov_b32 v89, 0x3f800000")
    for i in range(8): a(f"v_mov_b32 v{80+i}, 0")
    for i in range(20):
        a(f"s_waitcnt vmcnt({20-i})")
        for j in range(4):
            a(f"v_dot2_f32_bf16 v{80+2*j}, v{96+4*i+j}, v88, v{80+2*j}")
            a(f"v_dot2_f32_bf16 v{81+2*j}, v{96+4*i+j}, v89, v{81+2*j}")
    a("v_lshlrev_b32 v4, 5, v0")
    a("s_lshl_b32 s33, s3, 11")
    a("v_add_u32 v4, s33, v4")
    a("s_nop 0")
    a("ds_write_b128 v4, v[80:83]")
    a("ds_write_b128 v4, v[84:87] offset:16")
    a("s_waitcnt lgkmcnt(0)")
    a("s_barrier")
    a("s_cmp_ge_u32 s3, 2")
    a("s_cbranch_scc1 Lsp_done")
    a("v_lshlrev_b32 v4, 2, v0")
    a("s_lshl_b32 s33, s3, 8")
    a("v_add_u32 v4, s33, v4")
    for h in range(4):
        for i in range(8): a(f"ds_read_b32 v{96+8*h+i}, v4 offset:{512*(8*h+i)}")
        a("s_waitcnt lgkmcnt(0)")
    for i in range(1, 32): a(f"v_add_f32 v96, v96, v{96+i}")
    bf16_round(a, 97, 96)
    a("v_sub_f32 v96, v96, v97")
    a("v_cvt_pk_bf16_f32 v92, v97, v96")
    a("s_waitcnt vmcnt(0)")
    a("v_mov_b32 v93, v90")
    a("v_lshlrev_b32 v4, 3, v0")
    a("s_lshl_b32 s35, s35, 2")
    a(f"s_add_u32 s35, s35, {OFF_CO}")
    a("buffer_store_dwordx2 v[92:93], v4, s[20:23], s35 offen sc1")
    a.label("Lsp_done")
    a("s_waitcnt vmcnt(0)")
    a("s_barrier")
    a("s_cmp_ge_u32 s3, 4")
    a("s_cbranch_scc1 Lh2")
    a("s_mov_b32 s30, 15")
    f1_addr(a, 30)
    a(f"s_add_u32 s58, s58, {F1}")
    a("s_branch Lc2")

def p1_helper(a):
    WS = 3840
    a("v_lshrrev_b32 v2, 3, v0")
    a("v_and_b32 v3, 7, v0")
    a("v_lshrrev_b32 v4, 4, v0")
    a("v_xor_b32 v3, v3, v4")
    a("v_mul_u32_u24 v2, 1280, v2")
    a("v_lshl_add_u32 v10, v3, 4, v2")
    a("v_xor_b32 v5, 64, v10")
    a(f"v_add_u32 v11, {10240-1024}, v5")
    a(f"v_add_u32 v12, {2*(10240-1024)}, v10")
    a(f"v_add_u32 v13, {3*(10240-1024)}, v5")
    a("v_and_b32 v3, 15, v0")
    a("v_lshlrev_b32 v5, 2, v4")
    a("v_xor_b32 v3, v3, v5")
    a(f"v_mul_u32_u24 v14, {WS}, v4")
    a("v_lshl_add_u32 v14, v3, 4, v14")
    for i in range(1, 4):
        a(f"v_add_u32 v{14+i}, {i*(4*WS-1024)}, v14")
    srd(a, 12, PX, 2048 * 1280)
    srd(a, 16, PWQKV, 640 * 3840)
    if CFG["xpf"]:
        a("s_getreg_b32 s33, hwreg(HW_REG_HW_ID, 8, 3)")
        a("s_getreg_b32 s34, hwreg(HW_REG_HW_ID, 13, 2)")
        a("s_lshl_b32 s34, s34, 3")
        a("s_add_u32 s33, s33, s34")
        a("s_lshl_b32 s33, s33, 2")
        a("s_add_u32 s33, s33, s28")
        a("s_mul_i32 s34, s33, 40")
        a("v_min_u32 v6, 39, v0")
        a("v_add_u32 v6, s34, v6")
        a("v_and_b32 v7, 511, v6")
        a("v_lshrrev_b32 v6, 9, v6")
        a("v_mul_u32_u24 v7, 1280, v7")
        a("v_lshl_add_u32 v6, v6, 7, v7")
        a("s_bfe_u32 s34, s60, 0x20001")
        a(f"s_mul_i32 s34, s34, {512*1280}")
        a(f"v_mul_u32_u24 v7, {WS}, v4")
        a("v_and_b32 v8, 15, v0")
        a("v_lshl_add_u32 v7, v8, 7, v7")
        a(f"s_mul_i32 s35, s33, {5*WS}")
        a("s_and_b32 s36, s60, 1")
        a("s_mul_i32 s36, s36, 1792")
        a("s_add_u32 s35, s35, s36")
        a(f"s_add_u32 s36, s35, {4*WS}")
        a("v_lshlrev_b32 v8, 7, v8")
        a("buffer_load_dword v9, v7, s[16:19], s35 offen")
        a("buffer_load_dword v9, v6, s[12:15], s34 offen")
        a("buffer_load_dword v9, v8, s[16:19], s36 offen")
    a("s_or_b32 s33, s2, s28")
    a("s_cbranch_scc1 Lh_nz")
    a("s_memrealtime s[34:35]")
    a("s_waitcnt lgkmcnt(0)")
    a("s_or_b32 s34, s34, 1")
    a(f"s_atomic_swap s34, s[{PDBG}:{PDBG+1}], 0")
    a.label("Lh_nz")
    if CFG["cpf"]:
        CFG["_hi"][KN] = -1
        a("s_getreg_b32 s33, hwreg(HW_REG_HW_ID, 9, 7)")
        a("s_lshl_b32 s33, s33, 2")
        a("s_add_u32 s33, s33, s28")
        a("s_cmp_lg_u32 s33, 7")
        a("s_cbranch_scc1 Lh_np")
        code_prefetch(a, "Lc1e", 5, 204) if CFG["cp0"] else code_prefetch(a, KN, 7, 204)
        a.label("Lh_np")
    ticket(a)
    a("s_cmp_ge_u32 s32, 30")
    a("s_cbranch_scc1 Lspare_h")
    a("s_mul_i32 s34, s29, 163840")
    a("s_mul_i32 s33, s28, 40960")
    a("s_add_u32 s34, s34, s33")
    a("s_lshl_b32 s35, s30, 8")
    a(f"s_mul_i32 s33, s28, {16*WS}")
    a("s_add_u32 s35, s35, s33")
    rot = CFG["rot1"]
    if rot:
        a("s_mul_i32 s38, s29, 3")
        a("s_add_u32 s38, s38, s30")
        a("s_mul_i32 s33, s38, 6554")
        a("s_lshr_b32 s33, s33, 16")
        a("s_mul_i32 s33, s33, 10")
        a("s_sub_u32 s38, s38, s33")
        a("s_lshl_b32 s36, s38, 7")
        a("s_add_u32 s36, s36, s34")
        a(f"s_mul_i32 s37, s38, {64*WS}")
        a("s_add_u32 s37, s37, s35")
    else:
        a("s_mov_b32 s36, s34")
        a("s_mov_b32 s37, s35")
    a("s_lshl_b32 s39, s28, 12")
    stream = []
    for s in range(10):
        slot = (s & 3) * 32768
        for i in range(4):
            g = [f"s_add_u32 m0, s39, {slot}", "s_nop 0"] if i == 0 else []
            g.append(f"buffer_load_dwordx4 v{10+i}, s[12:15], s36 offen offset:{1024*i} lds")
            stream.append(g)
        for i in range(4):
            g = [f"s_add_u32 m0, s39, {slot+16384}", "s_add_u32 s36, s36, 128"] if i == 0 else []
            g.append(f"buffer_load_dwordx4 v{14+i}, s[16:19], s37 offen offset:{1024*i} lds")
            if i == 3:
                g.append(f"s_add_u32 s37, s37, {64*WS}")
                if rot:
                    g += ["s_add_u32 s38, s38, 1", "s_cmp_eq_u32 s38, 10", "s_cselect_b32 s36, s34, s36", "s_cselect_b32 s37, s35, s37"]
            stream.append(g)
    issued = [0]; q = []
    def issue(n=1):
        for _ in range(n):
            if issued[0] < 80:
                for x in stream[issued[0]]: a(x)
                q.append(issued[0] // 8)
                issued[0] += 1
    def wait(tag):
        last = max(i for i, t in enumerate(q) if t == tag)
        a(f"s_waitcnt vmcnt({len(q) - 1 - last})")
    issue(CFG["n01"])
    srd(a, 24, PDBG, 256)
    a("v_mov_b32 v205, 0")
    a("v_and_b32 v2, 31, v0")
    a("v_lshrrev_b32 v3, 5, v0")
    a("s_lshl_b32 s33, s29, 2")
    a("s_add_u32 s33, s33, s28")
    a("s_lshl_b32 s40, s33, 2")
    a("s_lshl_b32 s41, s30, 1")
    a("s_lshr_b32 s42, s28, 1")
    a("s_add_u32 s41, s41, s42")
    a("s_lshl_b32 s41, s41, 3")
    a("s_sub_u32 s41, s41, 4")
    a("v_min_u32 v4, 11, v0")
    a("v_add_u32 v5, s40, v4")
    a("v_cmp_gt_u32 vcc, 4, v4")
    a("v_add_u32 v4, s41, v4")
    a("s_lshl_b32 s40, s33, 9")
    a("v_cndmask_b32 v4, v4, v5, vcc")
    a("v_cndmask_b32 v5, 8, v205, vcc")
    a("v_lshl_add_u32 v4, v4, 7, v5")
    a(f"v_add_u32 v20, {F0}, v4")
    a(f"s_add_u32 s40, s40, {OFF_TS}")
    a("v_lshlrev_b32 v21, 4, v2")
    a(f"v_mul_u32_u24 v22, {8*7680}, v3")
    a("v_lshl_add_u32 v22, v2, 2, v22")
    a("s_lshl_b32 s41, s30, 2")
    a("s_add_u32 s41, s41, s28")
    a("s_lshl_b32 s41, s41, 7")
    a(f"s_add_u32 s41, s41, {OFF_CP}")
    PS = CFG["ps"]
    for s in range(10):
        wait(s)
        if CFG["prof"] > 1:
            a(f"s_memtime s[{4+0}:{5+0}]")
        a("s_barrier")
        if CFG["prof"] > 1:
            a("s_memtime s[6:7]")
            a("s_waitcnt lgkmcnt(0)")
            a(f"v_writelane_b32 v253, s4, {s}")
            a(f"v_writelane_b32 v253, s6, {16+s}")
        if s == PS:
            a("buffer_load_dword v204, v205, s[24:27], 0 offen sc1"); q.append("p")
            a("buffer_load_dwordx2 v[24:25], v20, s[20:23], 0 offen sc1"); q.append("p")
        if s == PS + 2:
            wait("p")
            tag_take(a)
            tagcheck(a, 24, 2)
            a("s_cbranch_scc0 Lh_ok")
            poll(a, 20, 64, 2)
            a.label("Lh_ok")
            a("buffer_load_dwordx4 v[40:43], v21, s[20:23], s40 offen sc1"); q.append("d")
            for i in range(8):
                a(f"buffer_load_dword v{48+i}, v22, s[20:23], s41 offen sc1"); q.append("d")
                a("s_add_u32 s41, s41, 7680")
        issue(8)
    a("s_waitcnt vmcnt(0)")
    for i in range(4): a(f"v_add_f32 v{48+i}, v{48+i}, v{52+i}")
    for i in range(2): a(f"v_add_f32 v{48+i}, v{48+i}, v{50+i}")
    a("v_add_f32 v36, v48, v49")
    a("v_mov_b32 v37, v36")
    a("s_nop 1")
    a("v_permlane32_swap_b32 v36, v37")
    a("v_add_f32 v36, v36, v37")
    bf16_round(a, 37, 36)
    a("v_sub_f32 v36, v36, v37")
    a("v_cvt_pk_bf16_f32 v44, v37, v36")
    a("v_mov_b32 v45, 0")
    a("s_lshl_b32 s33, s28, 5")
    a("v_add_u32 v2, s33, v2")
    a("v_lshlrev_b32 v3, 3, v2")
    a(f"v_add_u32 v3, {STAT}, v3")
    a("v_lshlrev_b32 v4, 2, v2")
    a(f"v_add_u32 v4, {STAT+1024}, v4")
    a("ds_write_b64 v3, v[40:41]")
    a("ds_write_b32 v4, v42")
    a("ds_write_b64 v3, v[44:45] offset:2048")
    a("s_waitcnt lgkmcnt(0)")
    a("s_barrier")

def ln_final(a, vs, vq, vo, vr_):
    a(f"v_mul_f32 v{vs}, {f32(1/640)}, v{vs}")
    a(f"v_mul_f32 v{vq}, {f32(1/640)}, v{vq}")
    a(f"v_fma_f32 v{vq}, -v{vs}, v{vs}, v{vq}")
    a(f"v_max_f32 v{vq}, 0, v{vq}")
    bf16_round(a, vq, vq)
    a(f"v_add_f32 v{vq}, {f32(1e-5)}, v{vq}")
    bf16_round(a, vq, vq)
    a(f"v_sqrt_f32 v{vq}, v{vq}")
    a(f"v_mul_f32 v{vs}, -0.5, v{vs}")
    bf16_round(a, vq, vq)
    a(f"v_cvt_pk_bf16_f32 v{vo}, v{vs}, v{vs}")
    a(f"v_rcp_f32 v{vr_}, v{vq}")
    a(f"v_mul_f32 v{vq}, 0.5, v{vq}")
    a(f"v_lshrrev_b32 v{vo+1}, 16, v{vq}")

def f1_addr(a, sn):
    lg = CFG["fpl"].bit_length() - 1
    a(f"s_lshl_b32 s58, s{sn}, {11-lg}")
    a(f"s_lshr_b32 s33, s29, {lg}")
    a("s_lshl_b32 s33, s33, 7")
    a("s_add_u32 s58, s58, s33")
    a(f"s_and_b32 s33, s29, {CFG['fpl']-1}")
    a("s_lshl_b32 s33, s33, 2")
    a("s_add_u32 s58, s58, s33")

def kappa(a, d, t):
    a(f"v_and_b32 v{d}, 19, v0")
    a(f"v_bfe_u32 v{t}, v0, 2, 1")
    a(f"v_lshl_add_u32 v{d}, v{t}, 3, v{d}")
    a(f"v_bfe_u32 v{t}, v0, 3, 1")
    a(f"v_lshl_add_u32 v{d}, v{t}, 2, v{d}")

def p1_compute(a):
    ACC = 64
    FRB = [32, 48, 176]
    AD = 128
    stats_issue(a)
    a("s_and_b32 s34, s28, 1")
    a("s_lshr_b32 s35, s28, 1")
    a("v_and_b32 v2, 31, v0")
    a("v_lshrrev_b32 v3, 5, v0")
    a("v_bfe_u32 v4, v0, 1, 3")
    a("v_xor_b32 v4, v4, v3")
    a("v_lshlrev_b32 v4, 4, v4")
    a("v_lshl_add_u32 v4, v2, 7, v4")
    a("s_lshl_b32 s33, s34, 13")
    a("v_add_u32 v10, s33, v4")
    for i in range(1, 4):
        a(f"v_xor_b32 v{10+i}, {32*i}, v10")
    for i in range(4):
        a(f"v_add_u32 v{14+i}, 0x10000, v{10+i}")
    a("v_bfe_u32 v4, v0, 2, 2")
    a("v_lshl_add_u32 v5, v3, 3, v4")
    a("v_lshlrev_b32 v5, 8, v5")
    a("v_bfe_u32 v6, v0, 4, 1")
    a("v_lshl_add_u32 v5, v6, 5, v5")
    a("v_and_b32 v6, 3, v0")
    a("v_lshl_add_u32 v5, v6, 3, v5")
    a("v_add_u32 v5, 16384, v5")
    a("s_lshl_b32 s33, s35, 1")
    a("v_xor_b32 v4, s33, v4")
    a("v_lshl_add_u32 v18, v4, 6, v5")
    a("v_xor_b32 v19, 64, v18")
    a("v_add_u32 v20, 0x10000, v18")
    a("v_add_u32 v21, 0x10000, v19")
    a("s_lshl_b32 s33, s34, 6")
    a("v_add_u32 v22, s33, v2")
    a("v_lshlrev_b32 v23, 2, v22")
    a(f"v_add_u32 v23, {STAT+1024}, v23")
    a("v_lshlrev_b32 v22, 3, v22")
    a(f"v_add_u32 v22, {STAT}, v22")
    a("s_lshl_b32 s33, s35, 6")
    a("v_add_u32 v24, s33, v2")
    a("v_lshlrev_b32 v24, 3, v24")
    a(f"v_add_u32 v24, {STAT+2048}, v24")
    ticket(a)
    stamp(a, 22)
    a("s_cmp_ge_u32 s32, 30")
    a("s_cbranch_scc1 Lspare_c")
    f1_addr(a, 30)
    a(f"s_add_u32 s58, s58, {F1}")

    def reads(t):
        s, st = t >> 2, t & 3
        se = (s >> 1) & 1
        io = (s & 1) * 32768
        F = FRB[t % 3]
        return [f"ds_read_b128 {vr(F,4)}, v{10+4*se+st} offset:{io}",
                f"ds_read_b64_tr_b16 {vr(F+8,2)}, v{18+2*se} offset:{io+st*4096}",
                f"ds_read_b64_tr_b16 {vr(F+10,2)}, v{18+2*se} offset:{io+st*4096+1024}",
                f"ds_read_b64_tr_b16 {vr(F+12,2)}, v{19+2*se} offset:{io+st*4096}",
                f"ds_read_b64_tr_b16 {vr(F+14,2)}, v{19+2*se} offset:{io+st*4096+1024}",
                f"ds_read_b128 {vr(F+4,4)}, v{10+4*se+st} offset:{io+4096}"]
    def mainloop(T, fill=()):
        fill = list(fill)
        stamp(a, 19)
        stats_finish(a)
        stamp(a, 23)
        a("s_barrier")
        stamp(a, 1)
        for r in reads(0) + reads(1): a(r)
        for t in range(40):
            F = FRB[t % 3]
            if t < 38 and (t & 3) == 2:
                a("s_waitcnt lgkmcnt(0)")
                if t == CFG["sg"]: stats_signal(a)
                a("s_barrier")
            else:
                a(f"s_waitcnt lgkmcnt({6 if t < 39 else 0})")
            rd = reads(t + 2) if t < 38 else []
            for i, (x, w) in enumerate(((0, 0), (0, 1), (1, 0), (1, 1))):
                d = vr(ACC + 32 * x + 16 * w, 16)
                xa, wa = vr(F + 4 * x, 4), vr(F + 8 + 4 * w, 4)
                c = "0" if t == 0 else d
                if CFG["x1"] & 1 and t > 0: pass
                elif T: a(f"v_mfma_f32_32x32x16_bf16 {d}, {wa}, {xa}, {c}")
                else: a(f"v_mfma_f32_32x32x16_bf16 {d}, {xa}, {wa}, {c}")
                if CFG["x1"] & 2: rd = []
                if i < 3:
                    for r in rd[2*i:2*i+2]: a(r)
                if t >= 8:
                    for _ in range(1 if i < 3 else 3):
                        if fill: a(fill.pop(0))
        assert not fill
        a("s_barrier")
        stamp(a, 2)
        a("ds_read_b64 v[176:177], v22")
        a("ds_read_b64 v[178:179], v22 offset:256")
        a("ds_read_b64 v[180:181], v24")
        a("ds_read_b64 v[182:183], v24 offset:256")
        if T:
            a("ds_read_b32 v40, v23")
            a("ds_read_b32 v42, v23 offset:128")
        else:
            for x in range(2):
                for j in range(4):
                    a(f"ds_read_b128 {vr(144+16*x+4*j,4)}, v25 offset:{128*x+32*j}")
        a("s_waitcnt lgkmcnt(0)")
        for x, w in ((0, 0), (1, 0), (0, 1), (1, 1)):
            d = vr(ACC + 32 * x + 16 * w, 16)
            xa, wa = vr(176 + 2 * x, 2), vr(180 + 2 * w, 2)
            if T: a(f"v_mfma_f32_32x32x8_bf16 {d}, {wa}, {xa}, {d}")
            else: a(f"v_mfma_f32_32x32x8_bf16 {d}, {xa}, {wa}, {d}")

    a("s_mul_i32 s36, s29, 10240")
    a("s_cmp_ge_u32 s30, 10")
    a("s_cbranch_scc1 Lc1v")
    kappa(a, 4, 5)
    a(f"v_lshlrev_b32 v4, 4, v4")
    a(f"v_lshl_add_u32 v{AD}, v3, 9, v4")
    a(f"v_mul_u32_u24 v5, {UNIT}, v3")
    a(f"v_add_u32 v{AD+1}, v5, v4")
    a("s_lshl_b32 s37, s30, 4")
    a("s_lshl_b32 s33, s35, 3")
    a("s_add_u32 s37, s37, s33")
    a("s_mov_b32 s57, s37")
    late = Asm()
    late("s_mov_b32 s59, 0")
    for q in range(8):
        late(f"s_add_u32 s56, s57, {q}")
        late("s_mul_i32 s38, s56, 52429")
        late("s_lshr_b32 s38, s38, 18")
        late("s_mul_i32 s39, s38, 5")
        late("s_sub_u32 s39, s56, s39")
        late(f"s_mul_i32 s38, s38, {2*UNIT}")
        late("s_add_u32 s38, s38, s36")
        late("s_lshl_b32 s56, s39, 11")
        late("s_add_u32 s38, s38, s56")
        late("s_cmp_gt_u32 s39, 2")
        late(f"s_cselect_b32 s56, {UNIT - 3*2048}, 0")
        late("s_add_u32 s38, s38, s56")
        late("s_cmp_eq_u32 s39, 2")
        late("s_cselect_b32 s56, 9, 10")
        late(f"s_cselect_b32 s39, {1 << q}, 0")
        late("s_lshl_b32 s56, s34, s56")
        late(f"s_add_u32 s{40+q}, s38, s56")
        late("s_or_b32 s59, s59, s39")
    c = (20 ** -0.5) * math.log2(math.e)
    a("s_cmp_lt_u32 s30, 5")
    a(f"s_cselect_b32 s37, {f32(c)}, 1.0")
    mainloop(True, list(late.lines))
    a("v_mul_f32 v40, s37, v40")
    a("v_mul_f32 v42, s37, v42")
    a("s_nop 7")
    for q in range(8):
        w, j = q >> 2, q & 3
        t = 44 + 4 * (q & 3)
        for x in range(2):
            b = ACC + 32 * x + 16 * w + 4 * j
            for i in (0, 2):
                a(f"v_pk_mul_f32 {vr(b+i,2)}, {vr(b+i,2)}, {vr(40+2*x,2)} op_sel_hi:[1,0]")
            a(f"v_cvt_pk_bf16_f32 v{t+2*x}, v{b}, v{b+1}")
            a(f"v_cvt_pk_bf16_f32 v{t+2*x+1}, v{b+2}, v{b+3}")
        L1, L2 = uid("s"), uid("s")
        a(f"s_bitcmp1_b32 s59, {q}")
        a(f"s_cbranch_scc1 {L1}")
        a(f"v_permlane32_swap_b32 v{t}, v{t+2}")
        a(f"v_permlane32_swap_b32 v{t+1}, v{t+3}")
        a(f"buffer_store_dwordx4 {vr(t,4)}, v{AD}, s[20:23], s{40+q} offen sc1")
        a(f"s_branch {L2}")
        a.label(L1)
        a(f"buffer_store_dwordx4 {vr(t,4)}, v{AD+1}, s[20:23], s{40+q} offen sc1")
        a.label(L2)
    a("s_branch Lc1e")
    a.label("Lc1v")
    a("s_sub_u32 s33, s30, 10")
    a("s_lshl_b32 s33, s33, 7")
    a("s_lshl_b32 s37, s35, 6")
    a("s_add_u32 s33, s33, s37")
    a("v_lshlrev_b32 v5, 6, v3")
    a("s_mul_i32 s37, s34, 2560")
    a(f"s_add_u32 s37, s37, {32*UNIT+5120}")
    a("v_add_u32 v5, s37, v5")
    for w in range(2):
        a(f"v_add_u32 v7, s33, v2")
        if w: a("v_add_u32 v7, 32, v7")
        a("v_mul_u32_u24 v9, 52429, v7")
        a("v_lshrrev_b32 v9, 20, v9")
        a("v_mul_u32_u24 v8, 20, v9")
        a("v_sub_u32 v8, v7, v8")
        a(f"v_mul_u32_u24 v9, {UNIT}, v9")
        a("v_lshl_add_u32 v9, v8, 4, v9")
        a("v_and_b32 v8, 28, v8")
        a("v_lshl_add_u32 v9, v8, 4, v9")
        a(f"v_add_u32 v{AD+w}, v9, v5")
    a("s_lshl_b32 s33, s34, 8")
    a(f"s_add_u32 s33, s33, {STAT+1024}")
    a("v_lshl_add_u32 v25, v3, 4, s33")
    mainloop(False)
    a("s_nop 9")
    for w in range(2):
        for x in range(2):
            b = ACC + 32 * x + 16 * w
            for g in range(2):
                for i in range(0, 8, 2):
                    a(f"v_pk_mul_f32 {vr(b+8*g+i,2)}, {vr(144+16*x+8*g+i,2)}, {vr(b+8*g+i,2)}")
                t = 44 + 4 * (g + 2 * x)
                for i in range(4):
                    a(f"v_cvt_pk_bf16_f32 v{t+i}, v{b+8*g+2*i}, v{b+8*g+2*i+1}")
                a(f"buffer_store_dwordx4 {vr(t,4)}, v{AD+w}, s[20:23], s36 offen offset:{1280*x+640*g} sc1")
    a.label("Lc1e")
    stamp(a, 3)
    a("s_waitcnt vmcnt(0)")
    stamp(a, 24)

def ids(a):
    a("s_and_b32 s33, s32, 3")
    a("s_lshl_b32 s29, s31, 2")
    a("s_add_u32 s29, s29, s33")
    a("s_lshr_b32 s30, s32, 2")
    a("s_and_b32 s33, s32, 1")
    a("s_lshl_b32 s62, s31, 1")
    a("s_add_u32 s62, s62, s33")
    a("s_lshr_b32 s63, s32, 1")

def w1_dma(a, r0, r1, lds0, thr=20):
    a(f"s_mul_i32 s36, s28, {4*3456}")
    a("s_lshl_b32 s33, s63, 8")
    a("s_add_u32 s36, s36, s33")
    a(f"s_add_u32 s36, s36, {r0*3456}")
    a("s_lshl_b32 s33, s28, 10")
    a(f"s_add_u32 m0, s33, {lds0}")
    L = uid("w")
    a(f"s_mov_b32 s37, {(r1-r0)//16}")
    a.label(L)
    a("buffer_load_dwordx4 v14, s[16:19], s36 offen lds")
    a(f"s_waitcnt vmcnt({thr})")
    a("s_add_u32 m0, m0, 4096")
    a(f"s_add_u32 s36, s36, {16*3456}")
    a("s_sub_u32 s37, s37, 1")
    a("s_cmp_lg_u32 s37, 0")
    a(f"s_cbranch_scc1 {L}")

def lin_dma(a, n, flag=" sc1"):
    L = uid("d")
    a(f"s_mov_b32 s37, {n}")
    a.label(L)
    a(f"buffer_load_dwordx4 v1, s[20:23], s39 offen{flag} lds")
    a(f"s_waitcnt vmcnt({CFG['thr']})")
    a("s_add_u32 m0, m0, 4096")
    a("s_add_u32 s39, s39, 4096")
    a("s_sub_u32 s37, s37, 1")
    a("s_cmp_lg_u32 s37, 0")
    a(f"s_cbranch_scc1 {L}")

def helper_rest(a):
    a.label("Lh2")
    a("s_setprio 3")
    ids(a)
    a("v_lshlrev_b32 v1, 4, v0")
    a("s_lshl_b32 s54, s28, 8")
    a("s_add_u32 s54, s54, s2")
    relayout_task(a)
    srd(a, 16, PW1, 640 * 3456)
    a("v_lshrrev_b32 v4, 4, v0")
    a("v_and_b32 v3, 15, v0")
    a("v_lshlrev_b32 v5, 2, v4")
    a("v_xor_b32 v3, v3, v5")
    a("v_mul_u32_u24 v14, 3456, v4")
    a("v_lshl_add_u32 v14, v3, 4, v14")
    a("s_lshl_b32 s38, s28, 10")
    a(f"s_mul_i32 s39, s29, {UNIT}")
    a(f"s_add_u32 s39, s39, {32*UNIT}")
    a("s_add_u32 s39, s39, s38")
    a("s_mov_b32 m0, s38")
    a("s_mul_i32 s33, s29, 20")
    a("s_add_u32 s34, s33, 19")
    a("s_lshr_b32 s33, s33, 7")
    a("s_lshr_b32 s34, s34, 7")
    a("s_sub_u32 s34, s34, s33")
    fpl = CFG["fpl"]; lg = fpl.bit_length() - 1; lb = 4 - lg
    a(f"v_bfe_u32 v3, v0, {lb}, 1")
    a("v_mul_u32_u24 v3, s34, v3")
    a(f"v_lshrrev_b32 v4, {lb+1}, v0")
    if fpl == 1:
        a("s_lshl_b32 s35, s28, 1")
        a("v_add_u32 v4, s35, v4")
        a("v_min_u32 v4, 2, v4")
    a("v_mul_u32_u24 v4, 5, v4")
    a("v_add3_u32 v3, v3, v4, s33")
    a(f"v_lshlrev_b32 v3, {11-lg}, v3")
    a(f"v_and_b32 v4, {(1<<lb)-1}, v0")
    a("v_lshlrev_b32 v4, 7, v4")
    a(f"v_add_u32 v15, {F1}, v4")
    a("v_add_u32 v3, v3, v15")
    stamp(a, 1)
    a("s_barrier")
    stamp(a, 2)
    a(f"s_cmp_gt_u32 s28, {1 if fpl == 1 else 0}")
    a("s_cbranch_scc1 Lh2s")
    poll(a, 3, min(64, 96 // fpl), fpl, sleep=CFG["sl1"])
    a.label("Lh2s")
    stamp(a, 3)
    a("s_barrier")
    def dma(n):
        for i in range(n):
            a(f"buffer_load_dwordx4 v1, s[20:23], s39 offen sc1 lds")
            a("s_add_u32 m0, m0, 4096")
            a("s_add_u32 s39, s39, 4096")
    dma(6)
    a("s_waitcnt vmcnt(3)")
    a("s_barrier")
    dma(10)
    a("s_waitcnt vmcnt(6)")
    a("s_barrier")
    dma(4)
    a("s_lshl_b32 s57, s2, 7")
    a(f"s_add_u32 s57, s57, {F2H}")
    a("v_mov_b32 v2, 0")
    a("buffer_load_dword v18, v2, s[20:23], s57 offen sc1")
    a("s_cmp_ge_u32 s54, 592")
    a("s_cbranch_scc1 Lh2n")
    relayout_load(a)
    relayout_store(a)
    a("s_branch Lh2a")
    a.label("Lh2n")
    a("s_waitcnt vmcnt(0)")
    a.label("Lh2a")
    stamp(a, 9)
    a("s_barrier")
    signal(a, 57, 2)
    lin_dma(a, 20)
    a("s_waitcnt vmcnt(0)")
    stamp(a, 10)
    def pollsp():
        a(f"v_add_u32 v3, {15*2048//fpl}, v15")
        poll(a, 3, 16 // fpl, fpl, sleep=8)
    only_h0(a, pollsp)
    a("s_lshl_b32 s33, s30, 7")
    a(f"s_add_u32 s33, s33, {F2H}")
    a("v_lshl_add_u32 v3, v0, 10, s33")
    poll(a, 3, 32, 4, sleep=8)
    a("v_and_b32 v2, 15, v0")
    a("v_min_u32 v2, 13, v2")
    a("v_and_b32 v3, 16, v0")
    a("v_add_u32 v2, v2, v3")
    a("s_lshl_b32 s33, s29, 12")
    a(f"s_add_u32 s33, s33, {F4}")
    a("v_lshl_add_u32 v10, v2, 7, s33")
    a(f"v_add_u32 v11, {FR}, v10")
    a(f"v_add_u32 v12, {2*FR}, v10")
    if CFG["pt"]:
        a(f"s_mul_i32 s33, s28, {FR}")
        a("buffer_load_dword v4, v10, s[20:23], s33 offen sc1")
        a("v_bfe_u32 v3, v0, 2, 1")
        a(f"v_mul_u32_u24 v3, {FR}, v3")
        a("v_and_b32 v2, 3, v0")
        a(f"v_mul_u32_u24 v2, {CFG['ls']}, v2")
        a("v_add_u32 v2, v2, v3")
        a(f"s_mul_i32 s33, s29, {4*CFG['ls']}")
        a(f"s_add_u32 s33, s33, {F2}")
        a("buffer_load_dword v4, v2, s[20:23], s33 offen sc1")
    STH = 20
    a(f"s_mul_i32 s55, s30, {54*5120}")
    a(f"s_add_u32 s55, s55, {OFF_W2}")
    a("s_add_u32 s55, s55, s38")
    a("s_mov_b32 s39, s55")
    stamp(a, 7)
    for i in range(58):
        a(f"buffer_load_dwordx4 {vr(STH+4*i,4)}, v1, s[20:23], s39 offen sc1")
        a(f"s_add_u32 s39, s39, {4096 if i != 29 else 4096 + 40960}")
        if i == 21:
            stamp(a, 11)
            a("s_barrier")
    stamp(a, 8)
    a(f"s_mul_i32 s39, s30, {20*5120}")
    a(f"s_add_u32 s39, s39, {OFF_WO}")
    a("s_add_u32 s39, s39, s38")
    a("s_mov_b32 m0, s38")
    a("s_barrier")
    lin_dma(a, 25)
    a("s_waitcnt vmcnt(0)")
    if CFG["pf"]:
        a("s_lshl_b32 s33, s32, 2")
        a("s_add_u32 s33, s33, s28")
        a(f"s_mul_i32 s34, s33, {17*1024}")
        a("v_lshlrev_b32 v2, 7, v0")
        a("v_min_u32 v3, 896, v2")
        a("buffer_load_dword v4, v2, s[16:19], s34 offen")
        a("s_add_u32 s34, s34, 8192")
        a("buffer_load_dword v4, v2, s[16:19], s34 offen")
        a("s_add_u32 s34, s34, 8192")
        a("buffer_load_dword v4, v3, s[16:19], s34 offen")
    stamp(a, 14)
    a("s_barrier")
    a("s_cmp_ge_u32 s32, 28")
    a("s_cbranch_scc1 Lh2b")
    w1_dma(a, 0, 240, 102400)
    a.label("Lh2b")
    a("s_barrier")
    a("s_waitcnt vmcnt(0)")
    stamp(a, 4)
    a("s_barrier")
    a("s_cmp_ge_u32 s32, 28")
    a("s_cbranch_scc1 Lh4")
    w1_dma(a, 240, 640, 0)
    a("s_waitcnt vmcnt(0)")
    stamp(a, 5)
    a("s_barrier")
    a.label("Lh4")
    a(f"s_add_u32 s39, s55, {6*20480}")
    a(f"s_add_u32 m0, s38, {6*20480}")
    a("v_add_u32 v8, s38, v1")
    a("v_add_u32 v9, 61440, v8")
    def put(i, slotpiece):
        a(f"ds_write_b128 v{8 + slotpiece // 15}, {vr(STH+4*i,4)} offset:{(slotpiece % 15) * 4096}")
    a("s_barrier")
    for i in range(30):
        if i % 3 == 0: dma(1)
        put(i, i)
    a("s_waitcnt lgkmcnt(0)")
    stamp(a, 6)
    a("s_or_b32 s33, s31, s32")
    a("s_or_b32 s33, s33, s28")
    a("s_cbranch_scc1 Lh5")
    srd(a, 24, PDBG, 256)
    a("v_lshlrev_b32 v2, 2, v0")
    a("v_mov_b32 v3, 0")
    a("buffer_store_dword v3, v2, s[24:27], 0 offen sc1")
    a.label("Lh5")
    a("v_mov_b32 v16, s100")
    a("v_lshlrev_b32 v17, 11, v0")
    a("s_lshl_b32 s34, s62, 6")
    a("s_add_u32 s34, s34, s63")
    a("s_lshl_b32 s34, s34, 7")
    a(f"s_add_u32 s34, s34, {F4}")
    a("s_waitcnt vmcnt(0)")
    only_h0(a, lambda: poll(a, 10, 32, sleep=CFG["sl4"]))
    stamp(a, 12)
    a("s_barrier")
    def announce(level):
        L = uid("a")
        a("s_cmp_lg_u32 s28, 1")
        a(f"s_cbranch_scc1 {L}")
        a("s_cmp_ge_u32 s32, 28")
        a(f"s_cbranch_scc1 {L}")
        a(f"s_add_u32 s33, s34, {level*FR}")
        a("s_mov_b64 exec, 15")
        a("buffer_store_dword v16, v17, s[20:23], s33 offen sc1")
        a("s_mov_b64 exec, -1")
        a.label(L)
    announce(2)
    only_h0(a, lambda: poll(a, 11, 32))
    stamp(a, 13)
    for s in range(1, 14):
        if s in (5, 8):
            def lv():
                L = uid("k")
                a("s_waitcnt vmcnt(0)")
                tagcheck(a, 13, 1)
                a(f"s_cbranch_scc0 {L}")
                poll(a, 12, 32)
                a.label(L)
                a(f"v_add_u32 v12, {FR}, v12")
            only_h0(a, lv)
        a("s_barrier")
        if s == 2: announce(3)
        if s in (2, 5): only_h0(a, lambda: a("buffer_load_dword v13, v12, s[20:23], 0 offen sc1"))
        if s >= 2:
            ks = [k for k in range(28) if 2 + k // 3 == s]
            for k in ks: put(30 + k, k)
            if s >= 7: a(f"s_waitcnt lgkmcnt({len(ks)})")
    finish(a)

def compute_rest(a):
    QA = [4, 8]; QB = 12; QBA = [12, 14]; QBB = [16, 18]
    IDX, AK, AV = 20, 21, 23
    O = [24, 40]
    S = [56, 72, 88, 104]
    KA = [120, 128]; KB = [136, 140]; V = [144, 160]
    T = 176
    a.label("Lc2")
    a("s_barrier")
    only_h0(a, lambda: ssignal(a, 58))
    ids(a)
    RES, XR = 232, 220
    a("v_and_b32 v4, 15, v0")
    a("v_lshrrev_b32 v5, 4, v0")
    a("v_mul_u32_u24 v252, 1280, v4")
    a("v_lshl_add_u32 v253, v5, 3, v252")
    a("v_lshl_add_u32 v252, v5, 5, v252")
    a("v_lshlrev_b32 v6, 5, v5")
    a("v_lshlrev_b32 v7, 3, v5")
    a("s_lshl_b32 s33, s29, 2")
    a("s_add_u32 s33, s33, s28")
    a("s_mul_i32 s59, s33, 20480")
    a("s_mul_i32 s38, s30, 160")
    a("s_add_u32 s59, s59, s38")
    srd(a, 12, PX, 2048 * 1280)
    srd(a, 16, PB2, 1280)
    a(f"buffer_load_dwordx4 {vr(XR,4)}, v252, s[12:15], s59 offen")
    a(f"buffer_load_dwordx4 {vr(XR+4,4)}, v252, s[12:15], s59 offen offset:16")
    a(f"buffer_load_dwordx2 {vr(XR+8,2)}, v253, s[12:15], s59 offen offset:128")
    a(f"buffer_load_dwordx4 {vr(S[0],4)}, v6, s[16:19], s38 offen")
    a(f"buffer_load_dwordx4 {vr(S[0]+4,4)}, v6, s[16:19], s38 offen offset:16")
    a(f"buffer_load_dwordx2 {vr(S[0]+8,2)}, v7, s[16:19], s38 offen offset:128")
    a("v_and_b32 v2, 31, v0")
    a("v_lshrrev_b32 v1, 5, v0")
    a("v_lshlrev_b32 v3, 4, v2")
    a(f"v_lshl_add_u32 v{AK}, v1, 11, v3")
    a(f"v_lshlrev_b32 v22, 4, v0")
    a(f"v_and_b32 v{AV}, 28, v0")
    a(f"v_lshl_add_u32 v{AV}, v{AV}, 4, v3")
    a(f"v_lshl_add_u32 v{AV}, v1, 6, v{AV}")
    a(f"s_mul_i32 s33, s29, {UNIT}")
    a("s_lshl_b32 s34, s30, 1")
    a("s_lshr_b32 s35, s28, 1")
    a("s_add_u32 s34, s34, s35")
    a("s_mul_i32 s34, s34, 10240")
    a("s_add_u32 s34, s34, s33")
    a("s_and_b32 s35, s28, 1")
    a("s_lshl_b32 s36, s35, 10")
    a("s_add_u32 s36, s36, s34")
    a("s_lshl_b32 s37, s35, 9")
    a("s_add_u32 s37, s37, s34")
    a("s_add_u32 s37, s37, 4096")
    a(f"v_mov_b32 v{IDX}, 0xdddddddd")
    a("s_mov_b32 s40, 0xfffff")
    a("s_mov_b32 s41, 0xfffff")
    for i in range(32): a(f"v_mov_b32 v{O[0]+i}, 0")
    for i in range(16): a(f"v_mov_b32 v{S[3]+i}, 0")
    a(f"v_and_b32 v{T}, 27, v0")
    a(f"v_cmp_eq_u32 vcc, 24, v{T}")
    a(f"v_mov_b32 v{T}, 0x3f803f80")
    a("s_mov_b32 s43, 4")
    a(f"v_cndmask_b32 v{V[0]}, v{O[0]}, v{T}, vcc")
    for i in range(1, 32): a(f"v_mov_b32 v{V[0]+i}, v{V[0]}")
    a("v_cmp_gt_u32 vcc, 32, v0")
    a("s_waitcnt vmcnt(0)")
    for i in range(10):
        a(f"v_lshlrev_b32 v{RES+2*i}, 16, v{S[0]+i}")
        a(f"v_and_b32 v{RES+2*i+1}, 0xffff0000, v{S[0]+i}")
    stamp(a, 4)
    a("s_barrier")
    stamp(a, 5)
    for q in range(2):
        a(f"buffer_load_dwordx4 {vr(QA[q],4)}, v{AK}, s[20:23], s36 offen offset:{512*q} sc1")
    a(f"buffer_load_dwordx4 {vr(QB,4)}, v3, s[20:23], s37 offen sc1")
    a("s_waitcnt vmcnt(0)")
    for i in range(4):
        a(f"v_cndmask_b32 v{QBB[0]+i}, v{QB+i}, v{O[0]}, vcc")
        a(f"v_cndmask_b32 v{QB+i}, v{O[0]}, v{QB+i}, vcc")
    def ka_off(t): return (t >> 2) * 10240 + (t & 3) * 512
    def kb_off(b): return b * 10240 + 4096
    def v_off(t, g): return (t >> 2) * 10240 + 5120 + (2 * (t & 3) + g) * 640
    def batch(p):
        r = [f"ds_read_b128 {vr(KA[p&1],4)}, v{AK} offset:{ka_off(2*p)}"]
        if p % 2 == 0:
            r.append(f"ds_read_b128 {vr(KB[(p>>1)&1],4)}, v22 offset:{kb_off(p>>1)}")
        r.append(f"ds_read_b128 {vr(KA[p&1]+4,4)}, v{AK} offset:{ka_off(2*p+1)}")
        r.append("s_mov_b64 exec, s[40:41]")
        for j in range(4):
            r.append(f"ds_read_b128 {vr(V[p&1]+4*j,4)}, v{AV} offset:{v_off(2*p+(j>>1), j&1)}")
        r.append("s_mov_b64 exec, -1")
        return r
    def sync(it, op="lg"):
        L = uid("n")
        a(f"s_cmp_{op}_u32 s43, {it}")
        a(f"s_cbranch_scc1 {L}")
        a("s_barrier")
        a.label(L)
    def qk16(u):
        t, q = u >> 1, u & 1
        return f"v_mfma_f32_32x32x16_bf16 {vr(S[u&3],16)}, {vr(KA[(t>>1)&1]+4*(t&1),4)}, {vr(QA[q],4)}, 0"
    def qk8(u):
        t, q = u >> 1, u & 1
        return f"v_mfma_f32_32x32x8_bf16 {vr(S[u&3],16)}, {vr(KB[(t>>2)&1]+2*(t&1),2)}, {vr((QBB if t&2 else QBA)[q],2)}, {vr(S[u&3],16)}"
    def pv(u, g):
        t, q = u >> 1, u & 1
        return f"v_smfmac_f32_32x32x32_bf16 {vr(O[q],16)}, {vr(V[(t>>1)&1]+8*(t&1)+4*g,4)}, {vr(S[u&3]+8*g,8)}, v{IDX}"
    a("s_barrier")
    stamp(a, 6)
    for r in batch(0): a(r)
    a("s_waitcnt lgkmcnt(4)")
    a(qk16(0)); a(qk8(0))
    a("s_waitcnt lgkmcnt(0)")
    a("s_nop 9")
    a(".p2align 6")
    a.label("Lattn")
    for u in range(32):
        s = S[u & 3]
        if u == 1: sync(1)
        if u == 5: sync(4)
        if u == 29: sync(3, "lt")
        if u % 4 == 3: a("s_waitcnt lgkmcnt(0)")
        a(qk16(u + 1))
        if u % 4 == 1:
            for r in batch((u + 3) // 4): a(r)
        for i in range(0, 4): a(f"v_exp_f32 v{s+i}, v{s+i}")
        a(qk8(u + 1))
        for i in range(4, 8): a(f"v_exp_f32 v{s+i}, v{s+i}")
        a(pv(u - 1, 0))
        for i in range(8, 12): a(f"v_exp_f32 v{s+i}, v{s+i}")
        a(pv(u - 1, 1))
        if u == 31:
            a(f"v_add_u32 v{AK}, 40960, v{AK}")
            a(f"v_add_u32 v22, 40960, v22")
            a(f"v_add_u32 v{AV}, 40960, v{AV}")
            a("s_sub_u32 s43, s43, 1")
            a("s_cmp_lg_u32 s43, 0")
        for i in range(12, 16): a(f"v_exp_f32 v{s+i}, v{s+i}")
    a("s_cbranch_scc1 Lattn")
    a("s_nop 0")
    a(pv(31, 0)); a(pv(31, 1))
    stamp(a, 7)
    a("s_mov_b64 s[46:47], -1")
    kappa(a, T, T + 1)
    a(f"v_lshrrev_b32 v{T+1}, 4, v{T}")
    a(f"v_mul_u32_u24 v{T+1}, 20480, v{T+1}")
    a(f"v_and_b32 v{T}, 15, v{T}")
    a(f"v_lshl_add_u32 v{T+2}, v{T}, 4, v{T+1}")
    a(f"v_lshl_add_u32 v{T}, v{T}, 3, v{T+1}")
    a(f"v_lshl_add_u32 v{T+1}, v1, 8, v{T+2}")
    a("s_lshl_b32 s33, s30, 4")
    a("s_lshl_b32 s34, s28, 2")
    a("s_add_u32 s33, s33, s34")
    a("s_mul_i32 s33, s33, 20480")
    a(f"s_add_u32 s33, s33, {OFF_O}")
    a("s_lshl_b32 s34, s29, 9")
    a("s_add_u32 s34, s34, s33")
    a("s_lshr_b32 s35, s29, 3")
    a("s_lshl_b32 s35, s35, 10")
    a("s_and_b32 s36, s29, 2")
    a("s_lshl_b32 s36, s36, 8")
    a("s_add_u32 s35, s35, s36")
    a("s_and_b32 s36, s29, 4")
    a("s_lshl_b32 s36, s36, 6")
    a("s_add_u32 s35, s35, s36")
    a("s_and_b32 s36, s29, 1")
    a("s_lshl_b32 s36, s36, 7")
    a("s_add_u32 s35, s35, s36")
    a("s_add_u32 s35, s35, s33")
    a("s_add_u32 s35, s35, 16384")
    a("s_add_u32 s38, s34, 40960")
    a("s_add_u32 s39, s35, 40960")
    a(f"s_mov_b32 s36, {f32(2.0**-64)}")
    a(f"s_mov_b32 s37, {f32(2.0**100)}")
    a.label("Lchk")
    for q in range(2):
        a(f"v_rcp_f32 v{T+2+2*q}, v{O[q]+12}")
        a(f"v_pk_add_f32 {vr(T+6,2)}, {vr(O[q],2)}, {vr(O[q]+2,2)}")
        for i in range(4, 12, 2):
            a(f"v_pk_add_f32 {vr(T+6,2)}, {vr(T+6,2)}, {vr(O[q]+i,2)}")
        a(f"v_add_f32 v{T+6}, v{T+6}, v{T+7}")
        a(f"v_fma_f32 v{T+6}, v{T+6}, 0, v{O[q]+12}")
        a(f"v_cmp_nle_f32 s[{50+4*q}:{51+4*q}], s36, v{T+6}")
        a(f"v_cmp_nge_f32 s[{52+4*q}:{53+4*q}], s37, v{T+6}")
    a("s_or_b64 s[50:51], s[50:51], s[52:53]")
    a("s_or_b64 s[54:55], s[54:55], s[56:57]")
    a("s_or_b64 s[50:51], s[50:51], s[54:55]")
    a("s_and_b64 s[50:51], s[50:51], s[46:47]")
    a("s_cbranch_scc1 Lfallback")
    for q in range(2):
        for i in range(0, 12, 2):
            a(f"v_pk_mul_f32 {vr(O[q]+i,2)}, {vr(O[q]+i,2)}, {vr(T+2+2*q,2)} op_sel_hi:[1,0]")
        for i in range(6):
            a(f"v_cvt_pk_bf16_f32 v{S[1]+8*q+i}, v{O[q]+2*i}, v{O[q]+2*i+1}")
        a(f"buffer_store_dwordx4 {vr(S[1]+8*q,4)}, v{T+1}, s[20:23], s{34+4*q} offen sc1")
    a("s_mov_b32 exec_hi, 0")
    for q in range(2):
        a(f"buffer_store_dwordx2 {vr(S[1]+8*q+4,2)}, v{T}, s[20:23], s{35+4*q} offen sc1")
    a("s_mov_b64 exec, -1")
    a("s_barrier")
    a("s_lshl_b32 s33, s30, 2")
    a("s_add_u32 s33, s33, s28")
    a("s_lshl_b32 s33, s33, 2")
    a("s_lshr_b32 s34, s29, 3")
    a("s_add_u32 s33, s33, s34")
    a(f"s_mul_i32 s33, s33, {CFG['ls']//4}")
    a("s_and_b32 s34, s29, 7")
    a("s_add_u32 s33, s33, s34")
    a("s_lshl_b32 s33, s33, 2")
    a(f"s_add_u32 s33, s33, {F2}")
    ssignal(a, 33, 20)
    stamp(a, 8)

    ACC, AR, WF, RS = 12, 32, 112, 192
    a("v_lshlrev_b32 v1, 4, v0")
    a("v_and_b32 v4, 15, v0")
    a("v_lshrrev_b32 v5, 4, v0")
    a("s_lshl_b32 s33, s29, 2")
    a("s_add_u32 s33, s33, s28")
    a("s_mul_i32 s34, s33, 20480")
    a(f"s_add_u32 s34, s34, {OFF_O}")
    a("v_add_u32 v6, 61440, v1")
    a("v_lshlrev_b32 v7, 3, v0")
    a("v_lshlrev_b32 v8, 4, v4")
    a("v_lshl_add_u32 v9, v5, 10, v8")
    a("v_lshrrev_b32 v10, 1, v5")
    a("v_lshl_add_u32 v8, v10, 9, v8")
    a("v_and_b32 v10, 1, v5")
    a("v_lshl_add_u32 v8, v10, 3, v8")
    a("s_lshr_b32 s35, s33, 1")
    a("s_mul_i32 s35, s35, 40960")
    a("s_and_b32 s36, s33, 1")
    a("s_lshl_b32 s36, s36, 8")
    a("s_add_u32 s35, s35, s36")
    a("s_mul_i32 s36, s30, 5120")
    a("s_add_u32 s35, s35, s36")
    a(f"s_add_u32 s35, s35, {OFF_H}")
    a("s_add_u32 s36, s35, 4096")
    a("v_lshlrev_b32 v10, 3, v4")
    a("s_lshl_b32 s37, s33, 10")
    a("s_lshl_b32 s39, s30, 7")
    a("s_add_u32 s37, s37, s39")
    a(f"s_add_u32 s37, s37, {OFF_ST}")
    a("v_mov_b32 v11, 0x3f803f80")
    def wreads(t, R, ads):
        s, st = t >> 2, t & 3
        sl = s % R
        F = WF + 20 * (t & 3)
        return [f"ds_read_b128 {vr(F+4*tt,4)}, v{ads[sl//3]} offset:{(sl%3)*20480+st*5120+1024*tt}" for tt in range(5)]
    for t in range(2):
        for r in wreads(t, 5, (1, 6)): a(r)
    for i in range(10):
        a(f"v_lshlrev_b32 v{ACC+2*i}, 16, v{XR+i}")
        a(f"v_and_b32 v{ACC+2*i+1}, 0xffff0000, v{XR+i}")
    a(f"s_mul_i32 s33, s29, {4*CFG['ls']}")
    a(f"s_add_u32 s33, s33, {F2}")
    only_h0(a, lambda: spoll(a, 33, [8, 8, 8, 8]))
    a("s_barrier")
    stamp(a, 9)
    vq = []
    def aload(i):
        if i < 16:
            r = [f"buffer_load_dwordx4 {vr(AR+4*i,4)}, v1, s[20:23], s34 offen offset:{1024*(i&3)} sc1"]
        else:
            r = [f"buffer_load_dwordx2 {vr(AR+4*i+2*e,2)}, v7, s[20:23], s34 offen offset:{1024*(i&3)+512*e} sc1" for e in range(2)]
        vq.extend([i] * len(r))
        if i & 3 == 3: r.append("s_add_u32 s34, s34, 4096")
        return r
    N0 = 11
    for i in range(N0):
        for x in aload(i): a(x)
    for t in range(20):
        F = WF + 20 * (t & 3)
        a(f"s_waitcnt vmcnt({sum(1 for x in vq if x > t)}) lgkmcnt({5 if t < 19 else 0})")
        rd = wreads(t + 2, 5, (1, 6)) if t < 18 else []
        for tt in range(5):
            d = vr(ACC + 4 * tt, 4)
            a(f"v_mfma_f32_16x16x32_bf16 {d}, {vr(F+4*tt,4)}, {vr(AR+4*t,4)}, {d}")
            if rd: a(rd[tt])
            if tt == 0 and t + N0 < 20:
                for x in aload(t + N0): a(x)
    stamp(a, 10)
    a("v_mov_b32 v2, 0")
    a("v_mov_b32 v3, 0")
    a("s_nop 2")
    for i in range(10):
        a(f"v_cvt_pk_bf16_f32 v{RS+i}, v{ACC+2*i}, v{ACC+2*i+1}")
        if i == 3: a(f"buffer_store_dwordx4 {vr(RS,4)}, v9, s[20:23], s35 offen sc1")
        if i == 7: a(f"buffer_store_dwordx4 {vr(RS+4,4)}, v9, s[20:23], s35 offen offset:512 sc1")
    a(f"buffer_store_dwordx2 {vr(RS+8,2)}, v8, s[20:23], s36 offen sc1")
    for i in range(10):
        a(f"v_dot2_f32_bf16 v2, v{RS+i}, v11, v2")
        a(f"v_dot2_f32_bf16 v3, v{RS+i}, v{RS+i}, v3")
    a("s_nop 2")
    for sw in ("v_permlane32_swap_b32", "v_permlane16_swap_b32"):
        a("v_mov_b32 v4, v2")
        a("v_mov_b32 v5, v3")
        a("s_nop 1")
        a(f"{sw} v2, v4")
        a(f"{sw} v3, v5")
        a("v_add_f32 v2, v2, v4")
        a("v_add_f32 v3, v3, v5")
    a("s_mov_b64 exec, 0xffff")
    a("buffer_store_dwordx2 v[2:3], v10, s[20:23], s37 offen sc1")
    a("s_mov_b64 exec, -1")
    a("s_barrier")
    for i in range(10):
        a(f"v_lshlrev_b32 v4, 16, v{RS+i}")
        a(f"v_and_b32 v5, 0xffff0000, v{RS+i}")
        a(f"v_pk_add_f32 {vr(RES+2*i,2)}, {vr(RES+2*i,2)}, v[4:5]")
    a("s_lshl_b32 s33, s29, 2")
    a("s_add_u32 s33, s33, s28")
    a(f"s_mul_i32 s33, s33, {CFG['ls']//4}")
    a("s_add_u32 s33, s33, s30")
    a("s_lshl_b32 s33, s33, 2")
    a(f"s_add_u32 s33, s33, {F3}")
    ssignal(a, 33, 21)
    stamp(a, 11)
    a("v_mov_b32 v30, s100")
    a("v_mov_b32 v31, 0")
    a("s_cmp_ge_u32 s32, 28")
    a("s_cbranch_scc1 Lc4skip")

    ACC, AR, NA, WF, CO, SP = 32, 96, 12, 144, 176, 184
    a("v_and_b32 v2, 31, v0")
    a("v_lshrrev_b32 v3, 5, v0")
    a("v_bfe_u32 v4, v0, 2, 2")
    a("v_lshl_add_u32 v5, v3, 3, v4")
    a("v_lshlrev_b32 v5, 8, v5")
    a("v_bfe_u32 v6, v0, 4, 1")
    a("v_lshl_add_u32 v5, v6, 5, v5")
    a("v_and_b32 v6, 3, v0")
    a("v_lshl_add_u32 v5, v6, 3, v5")
    a("v_lshl_add_u32 v16, v4, 6, v5")
    for b in range(1, 4): a(f"v_xor_b32 v{16+b}, {64*b}, v16")
    for b in range(4):
        a(f"v_add_u32 v{12+b}, 102400, v{16+b}")
        a(f"v_add_u32 v{20+b}, 61440, v{16+b}")
    a("v_lshlrev_b32 v6, 3, v2")
    a("s_lshl_b32 s56, s63, 10")
    a(f"s_add_u32 s56, s56, {OFF_CO}")
    a("s_lshl_b32 s33, s62, 2")
    a("s_add_u32 s33, s33, s28")
    a("s_mul_i32 s34, s33, 40960")
    a(f"s_add_u32 s34, s34, {OFF_H}")
    a("s_lshl_b32 s35, s33, 11")
    a(f"s_add_u32 s35, s35, {OFF_ST}")
    a("v_and_b32 v7, 15, v0")
    a("v_lshlrev_b32 v7, 3, v7")
    a("v_lshl_add_u32 v7, v3, 9, v7")
    a("v_bfe_u32 v4, v0, 4, 1")
    a("v_lshl_add_u32 v7, v4, 10, v7")
    a("v_bfe_u32 v4, v0, 4, 1")
    a(f"v_mul_u32_u24 v4, {54*1024}, v4")
    a("v_lshl_add_u32 v4, v3, 8, v4")
    a("v_and_b32 v5, 15, v0")
    a("v_lshl_add_u32 v8, v5, 4, v4")
    a(f"s_mul_i32 s36, s33, {2*54*1024}")
    a("s_lshl_b32 s37, s63, 10")
    a("s_add_u32 s36, s36, s37")
    a(f"s_add_u32 s36, s36, {OFF_G}")
    a("s_lshl_b32 s58, s33, 4")
    a("s_add_u32 s58, s58, s63")
    a("s_lshl_b32 s58, s58, 7")
    a(f"s_add_u32 s58, s58, {F4}")
    a(f"s_add_u32 s57, s58, {FR}")

    k0 = -2 * math.sqrt(2 / math.pi) * math.log2(math.e)
    def w1read(m):
        t, b = m >> 2, m & 3
        F = WF + 4 * (m & 7)
        ad = 12 + 4 * (t // 15) + b
        o = (t % 15) * 4096
        return [f"ds_read_b64_tr_b16 {vr(F,2)}, v{ad} offset:{o}", f"ds_read_b64_tr_b16 {vr(F+2,2)}, v{ad} offset:{o+1024}"]
    PD = 6
    for m in range(PD):
        for r in w1read(m): a(r)
    a(f"s_mul_i32 s37, s33, {2*CFG['ls']}")
    a(f"s_add_u32 s37, s37, {F3}")
    spoll(a, 37, [8, 8])
    a(f"s_mov_b32 s44, {f32(k0)}")
    a(f"s_mov_b32 s45, {f32(k0 * 0.044715)}")
    stamp(a, 12)
    def aload4(i):
        r = [f"buffer_load_dwordx4 {vr(AR+4*(i%NA),4)}, v1, s[20:23], s34 offen offset:{1024*(i&3)} sc1"]
        if i & 3 == 3: r.append("s_add_u32 s34, s34, 4096")
        return r
    N0 = NA - 1
    for i in range(N0):
        for x in aload4(i): a(x)
    extra = [f"buffer_load_dwordx2 {vr(SP+2*j,2)}, v7, s[20:23], s35 offen offset:{128*j} sc1" for j in range(4)]
    extra += [f"buffer_load_dwordx2 {vr(CO+2*b,2)}, v6, s[20:23], s56 offen offset:{256*b} sc1" for b in range(4)]
    fin = Asm()
    fin(f"v_pk_add_f32 {vr(SP,2)}, {vr(SP,2)}, {vr(SP+2,2)}")
    fin(f"v_pk_add_f32 {vr(SP+4,2)}, {vr(SP+4,2)}, {vr(SP+6,2)}")
    fin(f"v_pk_add_f32 {vr(SP,2)}, {vr(SP,2)}, {vr(SP+4,2)}")
    fin(f"v_mov_b32 v{SP+2}, v{SP}")
    fin(f"v_mov_b32 v{SP+3}, v{SP+1}")
    fin(f"v_permlane32_swap_b32 v{SP}, v{SP+2}")
    fin(f"v_permlane32_swap_b32 v{SP+1}, v{SP+3}")
    fin(f"v_pk_add_f32 {vr(SP,2)}, {vr(SP,2)}, {vr(SP+2,2)}")
    ln_final(fin, SP, SP + 1, SP + 2, SP + 4)
    fin(f"v_add_f32 v{SP+8}, v{SP+1}, v{SP+1}")
    fin(f"v_mul_f32 v{SP+6}, s44, v{SP+4}")
    fin(f"v_mul_f32 v{SP+7}, v{SP+4}, v{SP+4}")
    fin(f"v_mul_f32 v{SP+7}, v{SP+7}, v{SP+4}")
    fin(f"v_mul_f32 v{SP+7}, s45, v{SP+7}")
    fin = list(fin.lines)
    vq = list(range(N0))
    for m in range(160):
        t, b = m >> 2, m & 3
        if m + PD == 60: a("s_barrier")
        w = f"lgkmcnt({2 * min(PD - 1, 159 - m)})"
        if b == 0:
            w = f"vmcnt({len(vq) - 1 - vq.index(t)}) " + w
        a(f"s_waitcnt {w}")
        if m == 159: a("s_barrier")
        d = vr(ACC + 16 * b, 16)
        a(f"v_mfma_f32_32x32x16_bf16 {d}, {vr(WF+4*(m&7),4)}, {vr(AR+4*(t%NA),4)}, {'0' if t == 0 else d}")
        if m + PD < 160:
            for r in w1read(m + PD): a(r)
        if b == 1 and t + N0 < 40:
            for x in aload4(t + N0): a(x)
            vq.append(t + N0)
        if b == 3 and 2 <= t <= 9:
            a(extra.pop(0)); vq.append(-1)
        if t >= 20 and b in (0, 2, 3) and fin:
            a(fin.pop(0))
    assert not fin
    for b in range(4):
        d = vr(ACC + 16 * b, 16)
        a(f"v_mfma_f32_32x32x8_bf16 {d}, {vr(CO+2*b,2)}, {vr(SP+2,2)}, {d}")
    stamp(a, 13)
    a("s_nop 8")
    pr = lambda q: vr(q, 2)
    for b in range(4):
        if b == 2:
            a("s_cmp_eq_u32 s63, 13")
            a("s_cbranch_scc1 Lc4e")
        for g in range(2):
            r = ACC + 16 * b + 8 * g
            T0 = 96 + 8 * g
            for i in range(0, 8, 2): a(f"v_pk_mul_f32 {pr(T0+i)}, {pr(r+i)}, {pr(r+i)}")
            for i in range(0, 8, 2): a(f"v_pk_fma_f32 {pr(T0+i)}, {pr(T0+i)}, {pr(SP+6)}, {pr(SP+6)} op_sel:[0,1,0] op_sel_hi:[1,1,0]")
            for i in range(0, 8, 2): a(f"v_pk_mul_f32 {pr(T0+i)}, {pr(T0+i)}, {pr(r+i)}")
            for i in range(8): a(f"v_exp_f32 v{T0+i}, v{T0+i}")
            for i in range(0, 8, 2): a(f"v_pk_fma_f32 {pr(T0+i)}, {pr(T0+i)}, {pr(SP+8)}, {pr(SP+8)} op_sel_hi:[1,0,0]")
            for i in range(8): a(f"v_rcp_f32 v{T0+i}, v{T0+i}")
            for i in range(0, 8, 2): a(f"v_pk_mul_f32 {pr(r+i)}, {pr(r+i)}, {pr(T0+i)}")
            t = 112 + 4 * (g + 2 * (b & 1))
            for i in range(4):
                a(f"v_cvt_pk_bf16_f32 v{t+i}, v{r+2*i}, v{r+2*i+1}")
            a(f"buffer_store_dwordx4 {vr(t,4)}, v8, s[20:23], s36 offen offset:{512*g} sc1")
            if (b, g) == (2, 0): vsignal(a, 58, 3)
            if (b, g) == (3, 0): vsignal(a, 57, 4)
        if b < 3: a(f"s_add_u32 s36, s36, {(POS[b+1]-POS[b])*1024}")
    stamp(a, 14)
    a("s_waitcnt vmcnt(3)")
    a("s_branch Lc5")
    a.label("Lc4e")
    vsignal(a, 58, 0)
    vsignal(a, 57, 1)
    a("s_branch Lc5")
    a.label("Lc4skip")
    a("s_barrier")
    a.label("Lc5")
    stamp(a, 15)

    AR, NA, WF, OTH = 32, 8, 112, 172
    a("s_and_b32 s36, s28, 1")
    a("s_mul_i32 s37, s36, 5120")
    a("v_add_u32 v5, s37, v1")
    a("v_add_u32 v6, 61440, v5")
    a("v_add_u32 v7, 122880, v5")
    a("s_lshl_b32 s33, s29, 2")
    a("s_add_u32 s33, s33, s28")
    a(f"s_mul_i32 s34, s33, {54*1024}")
    a("s_xor_b32 s33, s33, 1")
    a(f"s_mul_i32 s35, s33, {54*1024}")
    a("s_lshl_b32 s36, s36, 10")
    a(f"s_add_u32 s36, s36, {OFF_G}")
    a("s_add_u32 s34, s34, s36")
    a("s_add_u32 s35, s35, s36")
    a("s_mul_i32 s36, s28, 5120")
    a(f"s_add_u32 s36, s36, {6*20480}")
    a("v_add_u32 v8, s36, v1")
    a("s_xor_b32 s36, s28, 1")
    a("s_mul_i32 s36, s36, 5120")
    a(f"s_add_u32 s36, s36, {6*20480}")
    a("v_add_u32 v9, s36, v1")
    srd(a, 16, POUT, 2048 * 1280)
    a("s_mul_i32 s36, s28, 2816")
    a(f"s_add_u32 s36, s36, {7*20480}")
    a("v_and_b32 v2, 15, v0")
    a("v_lshrrev_b32 v3, 4, v0")
    a("v_mul_u32_u24 v2, 176, v2")
    a("v_add_u32 v2, s36, v2")
    a("v_lshl_add_u32 v10, v3, 5, v2")
    a("v_lshl_add_u32 v11, v3, 3, v2")
    for i in range(3):
        a(f"v_add_u32 v2, {64*i}, v0")
        a("v_mul_u32_u24 v3, 52429, v2")
        a("v_lshrrev_b32 v3, 19, v3")
        a("v_mul_u32_u24 v4, 10, v3")
        a("v_sub_u32 v2, v2, v4")
        a("v_lshlrev_b32 v2, 4, v2")
        a("v_mul_u32_u24 v4, 176, v3")
        a(f"v_add3_u32 v{12+i}, v4, v2, s36")
        a("v_mul_u32_u24 v4, 1280, v3")
        a(f"v_add_u32 v{16+i}, v4, v2")
    def gload(i):
        r = [f"buffer_load_dwordx4 {vr(AR+8*(i%NA)+4*h,4)}, v1, s[20:23], s{34+h} offen offset:{2048*(i&1)} sc1" for h in range(2)]
        if i & 1: r += ["s_add_u32 s34, s34, 4096", "s_add_u32 s35, s35, 4096"]
        return r
    def w2reads(i):
        sl = (i >> 1) % 8
        F = WF + 20 * (i % 3)
        return [f"ds_read_b128 {vr(F+4*tt,4)}, v{5+sl//3} offset:{(sl%3)*20480+(i&1)*10240+1024*tt}" for tt in range(5)]
    a("s_barrier")
    stamp(a, 16)
    N0 = CFG["n5"]
    for i in range(N0):
        for x in gload(i): a(x)
    for r in w2reads(0) + w2reads(1): a(r)
    for i in range(27):
        F = WF + 20 * (i % 3)
        if i == 14: stamp(a, 26)
        if i + 2 < 27 and (i & 1) == 0: a("s_barrier")
        if i in (4, 14, 20): stamp(a, {4: 25, 14: 27, 20: 28}[i])
        a(f"s_waitcnt vmcnt({2*min(N0 - 1, 26 - i)}) lgkmcnt({5 if i < 26 else 0})")
        rd = w2reads(i + 2) if i < 25 else []
        gl = gload(i + N0) if i + N0 < 27 else []
        for h in (1, 0):
            for tt in range(5):
                d = vr((RES if h == 0 else OTH) + 4 * tt, 4)
                c = "0" if (h == 1 and i == 0) else d
                a(f"v_mfma_f32_16x16x32_bf16 {d}, {vr(F+4*tt,4)}, {vr(AR+8*(i%NA)+4*h,4)}, {c}")
                if h == 1 and rd: a(rd[tt])
                if h == 0 and gl and tt in (0, 2):
                    for x in (gl[:1] if tt == 0 else gl[1:]): a(x)
    stamp(a, 17)
    a("s_nop 2")
    for tt in range(5): a(f"ds_write_b128 v8, {vr(OTH+4*tt,4)} offset:{1024*tt}")
    a("s_waitcnt lgkmcnt(0)")
    a("s_barrier")
    for tt in range(5): a(f"ds_read_b128 {vr(OTH+4*tt,4)}, v9 offset:{1024*tt}")
    for tt in range(5):
        a(f"s_waitcnt lgkmcnt({4-tt})")
        for j in (0, 2): a(f"v_pk_add_f32 {vr(RES+4*tt+j,2)}, {vr(RES+4*tt+j,2)}, {vr(OTH+4*tt+j,2)}")
    for i in range(10):
        a(f"v_cvt_pk_bf16_f32 v{RS+i}, v{RES+2*i}, v{RES+2*i+1}")
        if i == 3: a(f"ds_write_b128 v10, {vr(RS,4)}")
        if i == 7: a(f"ds_write_b128 v10, {vr(RS+4,4)} offset:16")
    a(f"ds_write_b64 v11, {vr(RS+8,2)} offset:128")
    a("s_waitcnt lgkmcnt(0)")
    for i in range(3): a(f"ds_read_b128 {vr(RS+12+4*i,4)}, v{12+i}")
    for i in range(3):
        a(f"s_waitcnt lgkmcnt({2-i})")
        if i == 2: a("s_mov_b32 exec_hi, 0")
        a(f"buffer_store_dwordx4 {vr(RS+12+4*i,4)}, v{16+i}, s[16:19], s59 offen")
    finish(a, True)

    a.label("Lfallback")
    C = 188
    a("s_mov_b64 s[46:47], 0")
    a(f"v_subrev_u32 v{AK}, {4*40960}, v{AK}")
    a(f"v_subrev_u32 v22, {4*40960}, v22")
    a(f"v_subrev_u32 v{AV}, {4*40960}, v{AV}")
    a(f"v_add_u32 v{T+8}, 5120, v{AV}")
    a(f"v_add_u32 v{T+9}, {5120+2560}, v{AV}")
    a(f"v_add_u32 v22, 4096, v22")
    for ps in range(2):
        a(f"s_mul_i32 s42, s29, {UNIT}")
        a(f"s_add_u32 s42, s42, {32*UNIT}")
        a("s_mov_b32 s43, 16")
        if ps == 0:
            a(f"v_mov_b32 v{T+6}, 0xff800000")
            a(f"v_mov_b32 v{T+7}, 0xff800000")
        else:
            for i in range(32): a(f"v_mov_b32 v{O[0]+i}, 0")
        a.label(f"Lfb{ps}")
        for t in range(4):
            a(f"buffer_load_dwordx4 {vr(KA[0]+4*t,4)}, v{AK}, s[20:23], s42 offen offset:{512*t} sc1")
        a(f"buffer_load_dwordx4 {vr(KB[0],4)}, v22, s[20:23], s42 offen sc1")
        if ps:
            a("s_mov_b64 exec, s[40:41]")
            for j in range(8):
                a(f"buffer_load_dwordx4 {vr(V[0]+4*j,4)}, v{T+8+(j>>2)}, s[20:23], s42 offen offset:{640*(j&3)} sc1")
            a("s_mov_b64 exec, -1")
        a("s_waitcnt vmcnt(0)")
        for q in range(2):
            for t in range(4):
                d = vr(S[t], 16)
                a(f"v_mfma_f32_32x32x16_bf16 {d}, {vr(KA[0]+4*t,4)}, {vr(QA[q],4)}, {vr(C+16*q,16) if ps else '0'}")
                a(f"v_mfma_f32_32x32x8_bf16 {d}, {vr(KB[0]+2*(t&1),2)}, {vr((QBB if t&2 else QBA)[q],2)}, {d}")
            a("s_nop 15")
            if ps == 0:
                for i in range(32):
                    a(f"v_max3_f32 v{T+6+q}, v{T+6+q}, v{S[0]+2*i}, v{S[0]+2*i+1}")
            else:
                for i in range(64): a(f"v_exp_f32 v{S[0]+i}, v{S[0]+i}")
                a("s_nop 1")
                for j in range(8):
                    a(f"v_smfmac_f32_32x32x32_bf16 {vr(O[q],16)}, {vr(V[0]+4*j,4)}, {vr(S[0]+8*j,8)}, v{IDX}")
        a("s_add_u32 s42, s42, 10240")
        a("s_sub_u32 s43, s43, 1")
        a("s_cmp_lg_u32 s43, 0")
        a(f"s_cbranch_scc1 Lfb{ps}")
        if ps == 0:
            for q in range(2):
                a(f"v_mov_b32 v{T+2}, v{T+6+q}")
                a("s_nop 1")
                a(f"v_permlane32_swap_b32 v{T+6+q}, v{T+2}")
                a(f"v_max_f32 v{T+6+q}, v{T+6+q}, v{T+2}")
                for i in range(16):
                    a(f"v_sub_f32 v{C+16*q+i}, 0, v{T+6+q}")
    a("s_nop 15")
    a("s_branch Lchk")

def build():
    a = Asm()
    a(f".globl {KN}")
    a(".p2align 8")
    a(f".type {KN},@function")
    a.label(KN)
    a("s_cmp_ge_u32 s2, 256")
    a("s_cbranch_scc1 Lend")
    a("s_load_dwordx16 s[64:79], s[0:1], 0")
    a("s_load_dwordx4 s[80:83], s[0:1], 64")
    a("s_load_dwordx2 s[84:85], s[0:1], 80")
    a("v_lshrrev_b32 v1, 6, v0")
    a("v_and_b32 v0, 63, v0")
    a("s_getreg_b32 s60, hwreg(HW_REG_XCC_ID, 0, 4)")
    a("v_readfirstlane_b32 s3, v1")
    a(f"v_mov_b32 v201, {IDS}")
    if CFG["db"] >= 0:
        a("s_mov_b32 s96, 0")
        a("s_mov_b32 s98, 0")
    if CFG["prof"]:
        a("v_mov_b32 v255, 0")
    stamp(a, 0)
    if CFG["cp0"]:
        CFG["_hi"][KN] = -1
        a("s_cmp_lg_u32 s3, 7")
        a("s_cbranch_scc1 Lnocp")
        code_prefetch(a, KN, CFG["cp0"], 204)
        a.label("Lnocp")
    a("s_and_b32 s28, s3, 3")
    a("s_cmp_lg_u32 s3, 0")
    a("s_waitcnt lgkmcnt(0)")
    a("s_cbranch_scc1 Lnoask")
    ticket_ask(a)
    a.label("Lnoask")
    srd(a, 20, PWS, WS_SIZE)
    a("s_cmp_lt_u32 s3, 4")
    a("s_cbranch_scc1 Lc1")
    p1_helper(a)
    a("s_branch Lh2")
    a.label("Lc1")
    p1_compute(a)
    compute_rest(a)
    helper_rest(a)
    a.label("Lend")
    a("s_endpgm")
    p1_spare(a)
    a.label("Lcode_end")
    errs = check(a.lines)
    for e in errs: print(e, file=sys.stderr)
    head = open(f"cdna_kernels/{NAME}.s.ref").read().split("; Override")[0]
    head += "; @launch grid=(256,1,1) block=(512,1,1) lds=163840\n"
    d = f""".section .rodata,"a"
.p2align 6
.amdhsa_kernel {KN}
  .amdhsa_next_free_vgpr 256
  .amdhsa_next_free_sgpr 102
  .amdhsa_accum_offset 256
  .amdhsa_group_segment_fixed_size 0
  .amdhsa_kernarg_size 88
  .amdhsa_user_sgpr_count 2
  .amdhsa_user_sgpr_kernarg_segment_ptr 1
  .amdhsa_system_sgpr_workgroup_id_x 1
.end_amdhsa_kernel
"""
    return head + '.amdgcn_target "amdgcn-amd-amdhsa--gfx950"\n.text\n' + a.text() + d, errs

if __name__ == "__main__":
    out = sys.argv[1] if len(sys.argv) > 1 else f"cdna_kernels/{NAME}.s"
    for kv in sys.argv[2:]:
        k, v = kv.split("="); CFG[k] = int(v)
    txt, errs = build()
    open(out, "w").write(txt)
    print("written", out, len(txt), "bytes; hazards:", len(errs))
```

```python
import sys, math, struct
from asmlib import Asm, vr, sr, check

NAME = "sequential_preLN__softmax_full_mha__dense_activation_gelu__prompt"
KN = NAME + "_kernel"
UNIT = 163840
OFF_O = 64 * UNIT
OFF_H = OFF_O + 2621440
OFF_G = OFF_H + 2621440
OFF_WO = OFF_G + 128 * 54 * 1024
OFF_W2 = OFF_WO + 640 * 1280
OFF_W1 = OFF_W2 + 1728 * 1280
W1T = 143360
OFF_ST = OFF_W1 + 16 * W1T
OFF_CO = OFF_ST + 2048 * 64
OFF_TS = OFF_CO + 16384
OFF_CP = OFF_TS + 32768
OFF_F = OFF_CP + 16 * 7680
F2H, F0, F1 = [OFF_F + 32768 * i for i in range(3)]
FR = 131072
F2, F3, F4 = [OFF_F + 98304 + FR * i for i in range(3)]
WS_END = F4 + 3 * FR
WS_SIZE = WS_END + 65536
OFF_PROF = 64 << 20
PX, PWQKV, PWO, PW1, PB1, PW2, PB2, POUT, PDBG, PWS = 64, 66, 68, 72, 74, 76, 78, 80, 82, 84
SPIN = 200000

CFG = dict(rot1=0, prof=0, n01=20, prio=1, pf=1, thr=8, cpf=1, ps=6, sl1=0, fpl=1, ru=28, xpf=0, n5=6, ls=128, sl4=2, pt=1, cp0=2, x1=0, pt1=1, w64=0, wsl=0, hp5=0, hp3=0, hp4=0, pre=12, fr=11, ss0=1, sp0=3, x4=0, pd4=10, wg4=2, hp=3, so=0, da=0, db=-1, sg=6, _hi={})

def f32(x):
    return "0x%08x" % struct.unpack("<I", struct.pack("<f", x))[0]

def srd(a, d, p, size, off=0):
    if off:
        a(f"s_add_u32 s{d}, s{p}, {off}")
        a(f"s_addc_u32 s{d+1}, s{p+1}, 0")
    else:
        a(f"s_mov_b32 s{d}, s{p}")
        a(f"s_mov_b32 s{d+1}, s{p+1}")
    a(f"s_mov_b32 s{d+2}, {size}")
    a(f"s_mov_b32 s{d+3}, 0x20000")

LREG = [96, 98, 94, 92, 90, 88]
LIGHT = []
def stamp(a, i):
    if LIGHT:
        if i in LIGHT and CFG.get("_c"):
            r = LREG[LIGHT.index(i)]
            a(f"s_memtime s[{r}:{r+1}]")
        return
    if CFG["db"] >= 0:
        if i == CFG["da"]: a("s_memrealtime s[96:97]")
        if i == CFG["db"]: a("s_memrealtime s[98:99]")
    if CFG["prof"]:
        a("s_memrealtime s[96:97]")
        a("s_memtime s[98:99]")
        a("s_waitcnt lgkmcnt(0)")
        a(f"v_writelane_b32 v255, s96, {i}")
        a(f"v_writelane_b32 v255, s98, {32+i}")

def finish(a, c=False):
    if LIGHT:
        if c:
            a("s_waitcnt vmcnt(0)")
            stamp(a, 31)
            a("s_waitcnt lgkmcnt(0)")
            a("s_mov_b64 exec, -1")
            for k, r in enumerate(LREG[:len(LIGHT)]): a(f"v_writelane_b32 v255, s{r}, {k}")
            srd(a, 24, PWS, "0x8000000")
            a("s_lshl_b32 s33, s2, 3")
            a("s_add_u32 s33, s33, s3")
            a("s_lshl_b32 s33, s33, 8")
            a(f"s_add_u32 s33, s33, {OFF_PROF}")
            a("v_lshlrev_b32 v254, 2, v0")
            a("buffer_store_dword v255, v254, s[24:27], s33 offen")
        a("s_endpgm")
        return
    if CFG["db"] >= 0 and c:
        if CFG["db"] == 31:
            a("s_waitcnt vmcnt(0)")
            stamp(a, 31)
        a("s_memrealtime s[92:93]")
        a("s_waitcnt lgkmcnt(0)")
        a("s_sub_u32 s98, s98, s96")
        a("s_cmp_gt_u32 s98, 5000")
        a("s_cselect_b32 s98, 0, s98")
        a("s_lshl_b32 s98, s98, 2")
        a.label("Ldiag")
        a("s_memrealtime s[94:95]")
        a("s_waitcnt lgkmcnt(0)")
        a("s_sub_u32 s94, s94, s92")
        a("s_cmp_lt_u32 s94, s98")
        a("s_cbranch_scc1 Ldiag")
    if CFG["prof"]:
        a("s_waitcnt vmcnt(0)")
        stamp(a, 31)
        a("s_mov_b64 exec, -1")
        srd(a, 92, PWS, "0x8000000")
        a("s_lshl_b32 s96, s2, 3")
        a("s_add_u32 s96, s96, s3")
        a("s_lshl_b32 s96, s96, 8")
        a(f"s_add_u32 s96, s96, {OFF_PROF}")
        a("v_lshlrev_b32 v254, 2, v0")
        a("buffer_store_dword v255, v254, s[92:95], s96 offen")
        if CFG["prof"] > 1:
            a("s_add_u32 s96, s96, 0x80000")
            a(f"buffer_store_dword v{230 if c else 253}, v254, s[92:95], s96 offen")
    a("s_endpgm")

def bf16_round(a, dst, src):
    a(f"v_cvt_pk_bf16_f32 v{dst}, v{src}, v{src}")
    a(f"v_lshlrev_b32 v{dst}, 16, v{dst}")

_uid = [0]
def uid(p):
    _uid[0] += 1
    return f"U{p}{_uid[0]}"

def signal(a, sflag, vt, st=None):
    a(f"v_mov_b32 v{vt}, s100")
    a(f"v_lshlrev_b32 v{vt+1}, 2, s28")
    if st is not None: stamp(a, st)
    a("s_waitcnt vmcnt(0)")
    a("s_mov_b64 exec, 1")
    a(f"buffer_store_dword v{vt}, v{vt+1}, s[20:23], s{sflag} offen sc1")
    a("s_mov_b64 exec, -1")

def ssignal(a, sflag, st=None, n=0):
    if st is not None: stamp(a, st)
    a(f"s_waitcnt vmcnt({n})")
    a(f"s_atomic_swap s100, s[{PWS}:{PWS+1}], s{sflag}")

def vsignal(a, sflag, n):
    a(f"s_waitcnt vmcnt({n})")
    a("s_mov_b64 exec, 1")
    a(f"buffer_store_dword v30, v31, s[20:23], s{sflag} offen sc1")
    a("s_mov_b64 exec, -1")

def poll(a, va, nl, width=1, vd=4, sleep=0):
    L, E = uid("p"), uid("e")
    a(f"s_mov_b32 s60, {SPIN}")
    m = (1 << nl) - 1
    if nl < 64:
        a(f"s_mov_b32 exec_lo, {hex(m & 0xffffffff)}")
        a(f"s_mov_b32 exec_hi, {hex(m >> 32)}")
    a.label(L)
    if sleep: a(f"s_sleep {sleep}")
    op = {1: "dword", 2: "dwordx2", 4: "dwordx4"}[width]
    a(f"buffer_load_{op} {vr(vd,width)}, v{va}, s[20:23], 0 offen sc1")
    a("s_sub_u32 s60, s60, 1")
    a(f"s_cbranch_scc1 {E}")
    a("s_waitcnt vmcnt(0)")
    tagcheck(a, vd, width)
    a(f"s_cbranch_scc1 {L}")
    a.label(E)
    a("s_waitcnt vmcnt(0)")
    a("s_mov_b64 exec, -1")

def tagcheck(a, vd, width):
    for i in range(width):
        a(f"v_xor_b32 v{vd+i}, s100, v{vd+i}")
    if width == 2: a(f"v_or_b32 v{vd}, v{vd}, v{vd+1}")
    if width == 4:
        a(f"v_or3_b32 v{vd}, v{vd}, v{vd+1}, v{vd+2}")
        a(f"v_or_b32 v{vd}, v{vd}, v{vd+3}")
    a(f"v_cmp_ne_u32 vcc, 0, v{vd}")
    a("s_nop 1")
    a("s_cmp_lg_u64 vcc, 0")

def spoll(a, soff, counts):
    L, E = uid("p"), uid("e")
    regs = [4, 40, 48, 12]
    a(f"s_add_u32 s86, s{PWS}, s{soff}")
    a(f"s_addc_u32 s87, s{PWS+1}, 0")
    a(f"s_mov_b32 s60, {SPIN}")
    a.label(L)
    for i in range(len(counts)):
        a(f"s_load_dwordx8 s[{regs[i]}:{regs[i]+7}], s[86:87], {CFG['ls']*i} glc")
    a("s_sub_u32 s60, s60, 1")
    a(f"s_cbranch_scc1 {E}")
    a("s_waitcnt lgkmcnt(0)")
    for i, n in enumerate(counts):
        for j in range(0, n, 2):
            a(f"s_cmp_lg_u64 s[{regs[i]+j}:{regs[i]+j+1}], s[100:101]")
            a(f"s_cbranch_scc1 {L}")
    a.label(E)
    a("s_waitcnt lgkmcnt(0)")

def tag_load(a):
    srd(a, 24, PDBG, 256)
    a("v_mov_b32 v205, 0")
    a("buffer_load_dword v204, v205, s[24:27], 0 offen sc1")

def tag_take(a):
    L, E = uid("z"), uid("z")
    a(f"s_mov_b32 s60, {SPIN}")
    a.label(L)
    a("v_readfirstlane_b32 s100, v204")
    a("s_nop 0")
    a("s_cmp_lg_u32 s100, 0")
    a(f"s_cbranch_scc1 {E}")
    a("buffer_load_dword v204, v205, s[24:27], 0 offen sc1")
    a("s_waitcnt vmcnt(0)")
    a("s_sub_u32 s60, s60, 1")
    a(f"s_cbranch_scc0 {L}")
    a.label(E)
    a("s_mov_b32 s101, s100")

def only_h0(a, body):
    L = uid("h")
    a("s_cmp_lg_u32 s28, 0")
    a(f"s_cbranch_scc1 {L}")
    body()
    a.label(L)

def relayout_task(a):
    a("s_and_b32 s34, s54, 7")
    a("s_lshr_b32 s35, s54, 3")
    a("s_mul_i32 s49, s35, 21846")
    a("s_lshr_b32 s49, s49, 16")
    a("s_mul_i32 s48, s49, 3")
    a("s_sub_u32 s48, s35, s48")
    a("s_lshl_b32 s48, s48, 4")
    a("s_add_u32 s48, s48, s49")
    a("s_cmp_ge_u32 s35, 48")
    a("s_cselect_b32 s48, s35, s48")
    a("s_sub_u32 s36, s35, 54")
    a("s_cselect_b32 s48, s48, s36")
    a(f"s_cselect_b32 s12, s{PW2}, s{PWO}")
    a(f"s_cselect_b32 s13, s{PW2+1}, s{PWO+1}")
    a(f"s_mov_b32 s14, {640*1280}")
    a(f"s_cselect_b32 s14, {1728*1280}, s14")
    a("s_mov_b32 s15, 0x20000")
    a("s_cselect_b32 s35, s35, s36")
    a("s_cselect_b32 s37, 54, 20")
    a(f"s_mov_b32 s56, {OFF_WO}")
    a(f"s_cselect_b32 s56, {OFF_W2}, s56")
    a("s_cselect_b32 s44, 8, 20")
    a("s_cselect_b32 s47, 16, 8")
    a("s_cselect_b32 s45, 32, 40")
    a("s_mul_i32 s37, s37, s34")
    a("s_add_u32 s37, s37, s48")
    a("s_mul_i32 s37, s37, 5120")
    a("s_add_u32 s56, s56, s37")
    a("s_cmp_ge_u32 s54, 560")
    a("s_cselect_b32 s44, 80, s44")
    a("s_cselect_b32 s45, 160, s45")
    a("s_cselect_b32 s46, 20, 4")
    a("s_cselect_b32 s47, 40, s47")
    a("s_cselect_b32 s36, -2544, 0")
    a("s_mul_i32 s50, s35, s45")
    a("s_add_u32 s50, s50, s36")
    a("s_add_u32 s51, s50, s47")
    a("s_mul_i32 s50, s50, 1280")
    a("s_mul_i32 s51, s51, 1280")
    a("s_mul_i32 s34, s34, 160")
    a("s_add_u32 s50, s50, s34")
    a("s_add_u32 s51, s51, s34")
    a("v_lshrrev_b32 v2, 5, v0")
    a("v_mul_u32_u24 v2, s44, v2")
    a("v_bfe_u32 v3, v0, 4, 1")
    a("v_mul_u32_u24 v3, s46, v3")
    a("v_add_u32 v2, v2, v3")
    a("v_mul_u32_u24 v2, 1280, v2")
    a("v_and_b32 v3, 15, v0")
    a("v_lshl_add_u32 v9, v3, 1, v2")
    a("v_bfe_u32 v3, v0, 2, 2")
    a("v_mul_u32_u24 v3, 24, v3")
    a("v_add_u32 v8, v9, v3")

def cbar(a):
    a(f"s_waitcnt vmcnt({CFG['pre'] + 1})")
    stamp(a, 9)
    a("s_barrier")

def relayout_w1(a):
    R = 32
    a("s_sub_u32 s34, s54, 592")
    a("s_min_u32 s34, s34, 359")
    a("s_mul_i32 s35, s34, 3277")
    a("s_lshr_b32 s35, s35, 16")
    a("s_mul_i32 s36, s35, 20")
    a("s_sub_u32 s34, s34, s36")
    a(f"s_mul_i32 s50, s34, {32*3456}")
    a("s_mul_i32 s36, s35, 192")
    a("s_add_u32 s50, s50, s36")
    for i in range(1, 4): a(f"s_add_u32 s{50+i}, s50, {2*3456*i}")
    a(f"s_mul_i32 s56, s35, {W1T}")
    a("s_sub_u32 s36, s35, 16")
    a(f"s_mul_i32 s36, s36, {6*W1T}")
    a("s_add_u32 s36, s36, 6144")
    a("s_cmp_lt_u32 s35, 16")
    a("s_cselect_b32 s56, s56, s36")
    a(f"s_mov_b32 s37, {W1T}")
    a("s_cselect_b32 s37, 1024, s37")
    a("s_mul_i32 s34, s34, 7168")
    a("s_add_u32 s56, s56, s34")
    a(f"s_add_u32 s56, s56, {OFF_W1}")
    a("v_lshrrev_b32 v2, 4, v0")
    a(f"v_mul_u32_u24 v2, {8*3456}, v2")
    a("v_and_b32 v3, 15, v0")
    a("v_lshl_add_u32 v8, v3, 1, v2")
    a("s_cmp_ge_u32 s54, 952")
    a("s_cbranch_scc0 Lrw1")
    a("s_waitcnt vmcnt(0)")
    a("s_barrier")
    a("s_branch Lh2a")
    a.label("Lrw1")
    for i in range(6):
        for e in range(8):
            op = "buffer_load_short_d16_hi" if e & 1 else "buffer_load_ushort"
            if 8 * i + e == CFG["pre"]: cbar(a)
            a(f"{op} v{R+8*i+4*(e&1)+(e>>1)}, v8, s[16:19], s{50+(e>>1)} offen offset:{3456*(e&1)+32*i}")
    a("s_mov_b32 s33, 0xffff0000")
    for i in range(6):
        a(f"s_waitcnt vmcnt({40-7*i})")
        for p in range(4):
            a(f"v_and_or_b32 v{R+8*i+p}, v{R+8*i+4+p}, s33, v{R+8*i+p}")
        a(f"buffer_store_dwordx4 {vr(R+8*i,4)}, v1, s[20:23], s56 offen sc1")
        a("s_add_u32 s56, s56, s37")

def relayout_load(a):
    R = 32
    for tt in range(5):
        for e in range(8):
            op = "buffer_load_short_d16_hi" if e & 1 else "buffer_load_ushort"
            va, o = (8, 8 * tt) if tt < 4 else (9, 128)
            if 8 * tt + e == CFG["pre"]: cbar(a)
            a(f"{op} v{R+8*tt+4*(e&1)+(e>>1)}, v{va}, s[12:15], s{50+(e>>2)} offen offset:{1280*(e&3)+o}")

def relayout_store(a):
    R = 32
    a("v_add_u32 v2, 4096, v1")
    a("s_mov_b32 s33, 0xffff0000")
    for tt in range(5):
        a(f"s_waitcnt vmcnt({32-7*tt})")
        for p in range(4):
            a(f"v_and_or_b32 v{R+8*tt+p}, v{R+8*tt+4+p}, s33, v{R+8*tt+p}")
        if tt < 4: a(f"buffer_store_dwordx4 {vr(R+8*tt,4)}, v1, s[20:23], s56 offen offset:{1024*tt} sc1")
        else: a(f"buffer_store_dwordx4 {vr(R+8*tt,4)}, v2, s[20:23], s56 offen sc1")

STAT = 131072
IDS = STAT + 3072

def ticket(a):
    L, E, X = uid("t"), uid("t"), uid("t")
    a("s_cmp_lg_u32 s3, 0")
    a(f"s_cbranch_scc1 {X}")
    a("s_mov_b32 s61, 7")
    a.label(L)
    a("s_waitcnt lgkmcnt(0)")
    a("s_cmp_lt_u32 s57, 32")
    a(f"s_cbranch_scc1 {E}")
    a("s_sub_u32 s61, s61, 1")
    a(f"s_cbranch_scc1 {E}")
    a("s_add_u32 s60, s60, 1")
    ticket_ask(a)
    a(f"s_branch {L}")
    a.label(E)
    a("s_and_b32 s57, s57, 31")
    a("s_lshl_b32 s57, s57, 3")
    a("s_add_u32 s57, s57, s60")
    a("v_mov_b32 v200, s57")
    a("ds_write_b32 v201, v200")
    a("s_waitcnt lgkmcnt(0)")
    a.label(X)
    a("s_barrier")
    a("ds_read_b32 v200, v201")
    a("s_waitcnt lgkmcnt(0)")
    a("v_readfirstlane_b32 s32, v200")
    a("s_nop 0")
    if CFG["prof"]:
        a("s_nop 2")
        a("v_writelane_b32 v255, s32, 36")
    a("s_and_b32 s31, s32, 7")
    a("s_lshr_b32 s32, s32, 3")
    a("s_and_b32 s33, s31, 1")
    a("s_mul_i32 s33, s33, 30")
    a("s_add_u32 s33, s33, s32")
    a("s_lshr_b32 s30, s33, 2")
    a("s_and_b32 s33, s33, 3")
    a("s_lshr_b32 s29, s31, 1")
    a("s_lshl_b32 s29, s29, 2")
    a("s_add_u32 s29, s29, s33")

def ticket_ask(a):
    a("s_and_b32 s60, s60, 7")
    a("s_lshl_b32 s57, s60, 5")
    a(f"s_add_u32 s86, s{PDBG}, s57")
    a(f"s_addc_u32 s87, s{PDBG+1}, 0")
    a("s_mov_b32 s57, 1")
    a("s_atomic_add s57, s[86:87], 16 glc")

def stats_issue(a):
    a("s_cmp_ge_u32 s3, 2")
    a("s_cbranch_scc1 Lst_w")
    srd(a, 12, PX, 2048 * 1280)
    a("v_lshrrev_b32 v228, 4, v0")
    a("v_and_b32 v229, 15, v0")
    a("v_mul_u32_u24 v230, 1280, v228")
    a("v_lshl_add_u32 v230, v229, 4, v230")
    a("s_lshl_b32 s33, s2, 1")
    a("s_add_u32 s33, s33, s3")
    a("s_mul_i32 s34, s33, 5120")
    for i in range(5):
        a(f"buffer_load_dwordx4 {vr(208+4*i,4)}, v230, s[12:15], s34 offen offset:{256*i}")
    a("s_branch Lst_i")
    a.label("Lst_w")
    srd(a, 12, PWQKV, 640 * 3840)
    a("v_lshrrev_b32 v228, 3, v0")
    a("v_and_b32 v229, 7, v0")
    a("v_mul_u32_u24 v230, 3840, v228")
    a("v_lshl_add_u32 v230, v229, 4, v230")
    a("s_and_b32 s33, s2, 7")
    a("s_lshl_b32 s33, s33, 1")
    a("s_add_u32 s33, s33, s3")
    a("s_sub_u32 s33, s33, 2")
    a(f"s_mul_i32 s34, s33, {40*3840}")
    a("s_lshr_b32 s35, s2, 3")
    a("s_min_u32 s35, s35, 29")
    a("s_lshl_b32 s36, s35, 7")
    a("s_add_u32 s34, s34, s36")
    for i in range(5):
        a(f"buffer_load_dwordx4 {vr(208+4*i,4)}, v230, s[12:15], s34 offen")
        a(f"s_add_u32 s34, s34, {8*3840}")
    a.label("Lst_i")
    a("s_mov_b32 s52, s33")
    a("s_mov_b32 s53, s35")

def stats_finish(a):
    W_, E_ = uid("w"), uid("w")
    a("s_cmp_ge_u32 s3, 2")
    a(f"s_cbranch_scc1 {W_}")
    a("v_mov_b32 v234, 0x3f803f80")
    for i in range(4): a(f"v_mov_b32 v{226+10+i}, 0")
    a("s_waitcnt vmcnt(0)")
    for i in range(20):
        a(f"v_dot2_f32_bf16 v{226+10+(i&1)}, v{208+i}, v234, v{226+10+(i&1)}")
        a(f"v_dot2_f32_bf16 v{226+12+(i&1)}, v{208+i}, v{208+i}, v{226+12+(i&1)}")
    a("s_nop 2")
    a("v_add_f32 v236, v236, v237")
    a("v_add_f32 v238, v238, v239")
    for r in (8, 4, 2, 1):
        a("s_nop 1")
        a(f"v_add_f32_dpp v236, v236, v236 row_ror:{r} row_mask:0xf bank_mask:0xf")
        a(f"v_add_f32_dpp v238, v238, v238 row_ror:{r} row_mask:0xf bank_mask:0xf")
    ln_final(a, 236, 238, 244, 246)
    a("v_and_b32 v230, 48, v0")
    a("s_lshl_b32 s54, s52, 6")
    a(f"s_add_u32 s54, s54, {OFF_TS}")
    a("s_mov_b32 exec_lo, 0x00010001")
    a("s_mov_b32 exec_hi, 0x00010001")
    a("buffer_store_dwordx4 v[244:247], v230, s[20:23], s54 offen sc1")
    a("s_mov_b64 exec, -1")
    a(f"s_branch {E_}")
    a.label(W_)
    a("v_mov_b32 v234, 0x3f80")
    a("v_mov_b32 v235, 0x3f800000")
    for i in range(8): a(f"v_mov_b32 v{226+10+i}, 0")
    a("s_waitcnt vmcnt(0)")
    for i in range(5):
        for j in range(4):
            a(f"v_dot2_f32_bf16 v{226+10+2*j}, v{208+4*i+j}, v234, v{226+10+2*j}")
            a(f"v_dot2_f32_bf16 v{226+11+2*j}, v{208+4*i+j}, v235, v{226+11+2*j}")
    a("s_nop 2")
    for j in range(4): a(f"v_permlane32_swap_b32 v{226+10+j}, v{226+14+j}")
    for j in range(4): a(f"v_add_f32 v{226+10+j}, v{226+10+j}, v{226+14+j}")
    a("s_nop 0")
    for j in range(2): a(f"v_permlane16_swap_b32 v{226+10+j}, v{226+12+j}")
    for j in range(2): a(f"v_add_f32 v{226+10+j}, v{226+10+j}, v{226+12+j}")
    a("v_and_b32 v230, 7, v0")
    a("v_lshlrev_b32 v230, 5, v230")
    for j in range(2): a(f"v_add_f32_dpp v{226+10+j}, v{226+10+j}, v{226+10+j} row_ror:8 row_mask:0xf bank_mask:0xf")
    a("v_lshrrev_b32 v231, 4, v0")
    a("v_lshl_add_u32 v230, v231, 3, v230")
    a("s_mul_i32 s54, s52, 7680")
    a("s_lshl_b32 s55, s53, 8")
    a("s_add_u32 s54, s54, s55")
    a(f"s_add_u32 s54, s54, {OFF_CP}")
    a("buffer_store_dwordx2 v[236:237], v230, s[20:23], s54 offen sc1")
    a.label(E_)
    tag_load(a)

def stats_signal(a):
    a("s_waitcnt vmcnt(0)")
    tag_take(a)
    a("s_lshl_b32 s33, s2, 7")
    a(f"s_add_u32 s33, s33, {F0}")
    signal(a, 33, 202)

def code_prefetch(a, l0, n, v):
    P = uid("c")
    a("s_getpc_b64 s[90:91]")
    a.label(P)
    a(f"s_add_u32 s90, s90, {l0}-{P}")
    a(f"s_addc_u32 s91, s91, {CFG['_hi'].get(l0, 0)}")
    a(f"v_lshlrev_b32 v{v+3}, 7, v0")
    for i in range(n):
        a(f"v_min_u32 v{v}, Lcode_end-{l0}-4, v{v+3}")
        a(f"v_mov_b32 v{v+1}, s91")
        a(f"v_add_co_u32 v{v}, vcc, s90, v{v}")
        a(f"v_add_u32 v{v+3}, 8192, v{v+3}")
        a("s_nop 0")
        a(f"v_addc_co_u32 v{v+1}, vcc, 0, v{v+1}, vcc")
        a(f"global_load_dword v{v+2}, v[{v}:{v+1}], off")

def p1_spare(a):
    a.label("Lspare_h")
    tag_load(a)
    a("s_waitcnt vmcnt(0)")
    tag_take(a)
    a("s_branch Lspare")
    a.label("Lspare_c")
    stats_finish(a)
    stats_signal(a)
    a.label("Lspare")
    a("s_sub_u32 s29, s32, 30")
    a("s_lshl_b32 s29, s29, 3")
    a("s_add_u32 s29, s29, s31")
    a("s_cmp_ge_u32 s29, 14")
    a("s_cbranch_scc1 Lsp_done")
    srd(a, 12, PW1, 640 * 3456)
    srd(a, 16, PB1, 1728 * 2)
    a("v_lshrrev_b32 v2, 4, v0")
    a("v_and_b32 v3, 15, v0")
    a("v_mul_u32_u24 v2, 3456, v2")
    a("v_lshl_add_u32 v2, v3, 4, v2")
    a(f"s_mul_i32 s33, s3, {80*3456}")
    a("s_lshl_b32 s34, s29, 8")
    a("s_add_u32 s33, s33, s34")
    for i in range(20):
        a(f"buffer_load_dwordx4 {vr(96+4*i,4)}, v2, s[12:15], s33 offen")
        a(f"s_add_u32 s33, s33, {4*3456}")
    a("v_lshlrev_b32 v4, 1, v0")
    a("s_lshl_b32 s35, s3, 7")
    a("s_add_u32 s35, s35, s34")
    a("buffer_load_ushort v90, v4, s[16:19], s35 offen")
    a("v_mov_b32 v88, 0x3f80")
    a("v_mov_b32 v89, 0x3f800000")
    for i in range(8): a(f"v_mov_b32 v{80+i}, 0")
    for i in range(20):
        a(f"s_waitcnt vmcnt({20-i})")
        for j in range(4):
            a(f"v_dot2_f32_bf16 v{80+2*j}, v{96+4*i+j}, v88, v{80+2*j}")
            a(f"v_dot2_f32_bf16 v{81+2*j}, v{96+4*i+j}, v89, v{81+2*j}")
    a("v_lshlrev_b32 v4, 5, v0")
    a("s_lshl_b32 s33, s3, 11")
    a("v_add_u32 v4, s33, v4")
    a("s_nop 0")
    a("ds_write_b128 v4, v[80:83]")
    a("ds_write_b128 v4, v[84:87] offset:16")
    a("s_waitcnt lgkmcnt(0)")
    a("s_barrier")
    a("s_cmp_ge_u32 s3, 2")
    a("s_cbranch_scc1 Lsp_done")
    a("v_lshlrev_b32 v4, 2, v0")
    a("s_lshl_b32 s33, s3, 8")
    a("v_add_u32 v4, s33, v4")
    for h in range(4):
        for i in range(8): a(f"ds_read_b32 v{96+8*h+i}, v4 offset:{512*(8*h+i)}")
        a("s_waitcnt lgkmcnt(0)")
    for i in range(1, 32): a(f"v_add_f32 v96, v96, v{96+i}")
    bf16_round(a, 97, 96)
    a("v_sub_f32 v96, v96, v97")
    a("v_cvt_pk_bf16_f32 v92, v97, v96")
    a("s_waitcnt vmcnt(0)")
    a("v_mov_b32 v93, v90")
    a("v_lshlrev_b32 v4, 3, v0")
    a("s_lshl_b32 s35, s35, 2")
    a(f"s_add_u32 s35, s35, {OFF_CO}")
    a("buffer_store_dwordx2 v[92:93], v4, s[20:23], s35 offen sc1")
    a.label("Lsp_done")
    a("s_waitcnt vmcnt(0)")
    a("s_barrier")
    a("s_cmp_ge_u32 s3, 4")
    a("s_cbranch_scc1 Lh2")
    a("s_mov_b32 s30, 15")
    f1_addr(a, 30)
    a(f"s_add_u32 s58, s58, {F1}")
    a("s_branch Lc2")

def p1_helper(a):
    WS = 3840
    a("v_lshrrev_b32 v2, 3, v0")
    a("v_and_b32 v3, 7, v0")
    a("v_lshrrev_b32 v4, 4, v0")
    a("v_xor_b32 v3, v3, v4")
    a("v_mul_u32_u24 v2, 1280, v2")
    a("v_lshl_add_u32 v10, v3, 4, v2")
    a("v_xor_b32 v5, 64, v10")
    a(f"v_add_u32 v11, {10240-1024}, v5")
    a(f"v_add_u32 v12, {2*(10240-1024)}, v10")
    a(f"v_add_u32 v13, {3*(10240-1024)}, v5")
    a("v_and_b32 v3, 15, v0")
    a("v_lshlrev_b32 v5, 2, v4")
    a("v_xor_b32 v3, v3, v5")
    a(f"v_mul_u32_u24 v14, {WS}, v4")
    a("v_lshl_add_u32 v14, v3, 4, v14")
    for i in range(1, 4):
        a(f"v_add_u32 v{14+i}, {i*(4*WS-1024)}, v14")
    srd(a, 12, PX, 2048 * 1280)
    srd(a, 16, PWQKV, 640 * 3840)
    if CFG["xpf"]:
        a("s_getreg_b32 s33, hwreg(HW_REG_HW_ID, 8, 3)")
        a("s_getreg_b32 s34, hwreg(HW_REG_HW_ID, 13, 2)")
        a("s_lshl_b32 s34, s34, 3")
        a("s_add_u32 s33, s33, s34")
        a("s_lshl_b32 s33, s33, 2")
        a("s_add_u32 s33, s33, s28")
        a("s_mul_i32 s34, s33, 40")
        a("v_min_u32 v6, 39, v0")
        a("v_add_u32 v6, s34, v6")
        a("v_and_b32 v7, 511, v6")
        a("v_lshrrev_b32 v6, 9, v6")
        a("v_mul_u32_u24 v7, 1280, v7")
        a("v_lshl_add_u32 v6, v6, 7, v7")
        a("s_bfe_u32 s34, s60, 0x20001")
        a(f"s_mul_i32 s34, s34, {512*1280}")
        a(f"v_mul_u32_u24 v7, {WS}, v4")
        a("v_and_b32 v8, 15, v0")
        a("v_lshl_add_u32 v7, v8, 7, v7")
        a(f"s_mul_i32 s35, s33, {5*WS}")
        a("s_and_b32 s36, s60, 1")
        a("s_mul_i32 s36, s36, 1792")
        a("s_add_u32 s35, s35, s36")
        a(f"s_add_u32 s36, s35, {4*WS}")
        a("v_lshlrev_b32 v8, 7, v8")
        a("buffer_load_dword v9, v7, s[16:19], s35 offen")
        a("buffer_load_dword v9, v6, s[12:15], s34 offen")
        a("buffer_load_dword v9, v8, s[16:19], s36 offen")
    a("s_or_b32 s33, s2, s28")
    a("s_cbranch_scc1 Lh_nz")
    a("s_memrealtime s[34:35]")
    a("s_waitcnt lgkmcnt(0)")
    a("s_or_b32 s34, s34, 1")
    a(f"s_atomic_swap s34, s[{PDBG}:{PDBG+1}], 0")
    a.label("Lh_nz")
    if CFG["cpf"]:
        CFG["_hi"][KN] = -1
        a("s_getreg_b32 s33, hwreg(HW_REG_HW_ID, 9, 7)")
        a("s_lshl_b32 s33, s33, 2")
        a("s_add_u32 s33, s33, s28")
        a("s_cmp_lg_u32 s33, 7")
        a("s_cbranch_scc1 Lh_np")
        code_prefetch(a, "Lc1e", 5, 204) if CFG["cp0"] else code_prefetch(a, KN, 7, 204)
        a.label("Lh_np")
    ticket(a)
    a("s_cmp_ge_u32 s32, 30")
    a("s_cbranch_scc1 Lspare_h")
    a("s_mul_i32 s34, s29, 163840")
    a("s_mul_i32 s33, s28, 40960")
    a("s_add_u32 s34, s34, s33")
    a("s_lshl_b32 s35, s30, 8")
    a(f"s_mul_i32 s33, s28, {16*WS}")
    a("s_add_u32 s35, s35, s33")
    rot = CFG["rot1"]
    if rot:
        a("s_mul_i32 s38, s29, 3")
        a("s_add_u32 s38, s38, s30")
        a("s_mul_i32 s33, s38, 6554")
        a("s_lshr_b32 s33, s33, 16")
        a("s_mul_i32 s33, s33, 10")
        a("s_sub_u32 s38, s38, s33")
        a("s_lshl_b32 s36, s38, 7")
        a("s_add_u32 s36, s36, s34")
        a(f"s_mul_i32 s37, s38, {64*WS}")
        a("s_add_u32 s37, s37, s35")
    else:
        a("s_mov_b32 s36, s34")
        a("s_mov_b32 s37, s35")
    a("s_lshl_b32 s39, s28, 12")
    stream = []
    for s in range(10):
        slot = (s & 3) * 32768
        for i in range(4):
            g = [f"s_add_u32 m0, s39, {slot}", "s_nop 0"] if i == 0 else []
            g.append(f"buffer_load_dwordx4 v{10+i}, s[12:15], s36 offen offset:{1024*i} lds")
            stream.append(g)
        for i in range(4):
            g = [f"s_add_u32 m0, s39, {slot+16384}", "s_add_u32 s36, s36, 128"] if i == 0 else []
            g.append(f"buffer_load_dwordx4 v{14+i}, s[16:19], s37 offen offset:{1024*i} lds")
            if i == 3:
                g.append(f"s_add_u32 s37, s37, {64*WS}")
                if rot:
                    g += ["s_add_u32 s38, s38, 1", "s_cmp_eq_u32 s38, 10", "s_cselect_b32 s36, s34, s36", "s_cselect_b32 s37, s35, s37"]
            stream.append(g)
    issued = [0]; q = []
    def issue(n=1):
        for _ in range(n):
            if issued[0] < 80:
                for x in stream[issued[0]]: a(x)
                q.append(issued[0] // 8)
                issued[0] += 1
    def wait(tag):
        last = max(i for i, t in enumerate(q) if t == tag)
        a(f"s_waitcnt vmcnt({len(q) - 1 - last})")
    issue(CFG["n01"])
    srd(a, 24, PDBG, 256)
    a("v_mov_b32 v205, 0")
    a("v_and_b32 v2, 31, v0")
    a("v_lshrrev_b32 v3, 5, v0")
    a("s_lshl_b32 s33, s29, 2")
    a("s_add_u32 s33, s33, s28")
    a("s_lshl_b32 s40, s33, 2")
    a("s_lshl_b32 s41, s30, 1")
    a("s_lshr_b32 s42, s28, 1")
    a("s_add_u32 s41, s41, s42")
    a("s_lshl_b32 s41, s41, 3")
    a("s_sub_u32 s41, s41, 4")
    a("v_min_u32 v4, 11, v0")
    a("v_add_u32 v5, s40, v4")
    a("v_cmp_gt_u32 vcc, 4, v4")
    a("v_add_u32 v4, s41, v4")
    a("s_lshl_b32 s40, s33, 9")
    a("v_cndmask_b32 v4, v4, v5, vcc")
    a("v_cndmask_b32 v5, 8, v205, vcc")
    a("v_lshl_add_u32 v4, v4, 7, v5")
    a(f"v_add_u32 v20, {F0}, v4")
    a(f"s_add_u32 s40, s40, {OFF_TS}")
    a("v_lshlrev_b32 v21, 4, v2")
    a(f"v_mul_u32_u24 v22, {8*7680}, v3")
    a("v_lshl_add_u32 v22, v2, 2, v22")
    a("s_lshl_b32 s41, s30, 2")
    a("s_add_u32 s41, s41, s28")
    a("s_lshl_b32 s41, s41, 7")
    a(f"s_add_u32 s41, s41, {OFF_CP}")
    PS = CFG["ps"]
    for s in range(10):
        wait(s)
        if CFG["prof"] > 1:
            a(f"s_memtime s[{4+0}:{5+0}]")
        a("s_barrier")
        if CFG["prof"] > 1:
            a("s_memtime s[6:7]")
            a("s_waitcnt lgkmcnt(0)")
            a(f"v_writelane_b32 v253, s4, {s}")
            a(f"v_writelane_b32 v253, s6, {16+s}")
        if s == PS:
            a("buffer_load_dword v204, v205, s[24:27], 0 offen sc1"); q.append("p")
            a("buffer_load_dwordx2 v[24:25], v20, s[20:23], 0 offen sc1"); q.append("p")
        if s == PS + 2:
            wait("p")
            tag_take(a)
            tagcheck(a, 24, 2)
            a("s_cbranch_scc0 Lh_ok")
            poll(a, 20, 64, 2)
            a.label("Lh_ok")
            a("buffer_load_dwordx4 v[40:43], v21, s[20:23], s40 offen sc1"); q.append("d")
            for i in range(8):
                a(f"buffer_load_dword v{48+i}, v22, s[20:23], s41 offen sc1"); q.append("d")
                a("s_add_u32 s41, s41, 7680")
        issue(8)
    a("s_waitcnt vmcnt(0)")
    for i in range(4): a(f"v_add_f32 v{48+i}, v{48+i}, v{52+i}")
    for i in range(2): a(f"v_add_f32 v{48+i}, v{48+i}, v{50+i}")
    a("v_add_f32 v36, v48, v49")
    a("v_mov_b32 v37, v36")
    a("s_nop 1")
    a("v_permlane32_swap_b32 v36, v37")
    a("v_add_f32 v36, v36, v37")
    bf16_round(a, 37, 36)
    a("v_sub_f32 v36, v36, v37")
    a("v_cvt_pk_bf16_f32 v44, v37, v36")
    a("v_mov_b32 v45, 0")
    a("s_lshl_b32 s33, s28, 5")
    a("v_add_u32 v2, s33, v2")
    a("v_lshlrev_b32 v3, 3, v2")
    a(f"v_add_u32 v3, {STAT}, v3")
    a("v_lshlrev_b32 v4, 2, v2")
    a(f"v_add_u32 v4, {STAT+1024}, v4")
    a("ds_write_b64 v3, v[40:41]")
    a("ds_write_b32 v4, v42")
    a("ds_write_b64 v3, v[44:45] offset:2048")
    a("s_waitcnt lgkmcnt(0)")
    a("s_barrier")

def ln_final(a, vs, vq, vo, vr_, f="0.5"):
    a(f"v_mul_f32 v{vs}, {f32(1/640)}, v{vs}")
    a(f"v_mul_f32 v{vq}, {f32(1/640)}, v{vq}")
    a(f"v_fma_f32 v{vq}, -v{vs}, v{vs}, v{vq}")
    a(f"v_max_f32 v{vq}, 0, v{vq}")
    bf16_round(a, vq, vq)
    a(f"v_add_f32 v{vq}, {f32(1e-5)}, v{vq}")
    bf16_round(a, vq, vq)
    a(f"v_sqrt_f32 v{vq}, v{vq}")
    a(f"v_mul_f32 v{vs}, {f}, v{vs}")
    bf16_round(a, vq, vq)
    a(f"v_cvt_pk_bf16_f32 v{vo}, -v{vs}, -v{vs}")
    a(f"v_rcp_f32 v{vr_}, v{vq}")
    a(f"v_mul_f32 v{vq}, {f}, v{vq}")
    a(f"v_lshrrev_b32 v{vo+1}, 16, v{vq}")

def f1_addr(a, sn):
    lg = CFG["fpl"].bit_length() - 1
    a(f"s_lshl_b32 s58, s{sn}, {11-lg}")
    a(f"s_lshr_b32 s33, s29, {lg}")
    a("s_lshl_b32 s33, s33, 7")
    a("s_add_u32 s58, s58, s33")
    a(f"s_and_b32 s33, s29, {CFG['fpl']-1}")
    a("s_lshl_b32 s33, s33, 2")
    a("s_add_u32 s58, s58, s33")

def kappa(a, d, t):
    a(f"v_and_b32 v{d}, 19, v0")
    a(f"v_bfe_u32 v{t}, v0, 2, 1")
    a(f"v_lshl_add_u32 v{d}, v{t}, 3, v{d}")
    a(f"v_bfe_u32 v{t}, v0, 3, 1")
    a(f"v_lshl_add_u32 v{d}, v{t}, 2, v{d}")

def p1_compute(a):
    ACC = 64
    FRB = [32, 48, 176]
    AD = 128
    stats_issue(a)
    a("s_and_b32 s34, s28, 1")
    a("s_lshr_b32 s35, s28, 1")
    a("v_and_b32 v2, 31, v0")
    a("v_lshrrev_b32 v3, 5, v0")
    a("v_bfe_u32 v4, v0, 1, 3")
    a("v_xor_b32 v4, v4, v3")
    a("v_lshlrev_b32 v4, 4, v4")
    a("v_lshl_add_u32 v4, v2, 7, v4")
    a("s_lshl_b32 s33, s34, 13")
    a("v_add_u32 v10, s33, v4")
    for i in range(1, 4):
        a(f"v_xor_b32 v{10+i}, {32*i}, v10")
    for i in range(4):
        a(f"v_add_u32 v{14+i}, 0x10000, v{10+i}")
    a("v_bfe_u32 v4, v0, 2, 2")
    a("v_lshl_add_u32 v5, v3, 3, v4")
    a("v_lshlrev_b32 v5, 8, v5")
    a("v_bfe_u32 v6, v0, 4, 1")
    a("v_lshl_add_u32 v5, v6, 5, v5")
    a("v_and_b32 v6, 3, v0")
    a("v_lshl_add_u32 v5, v6, 3, v5")
    a("v_add_u32 v5, 16384, v5")
    a("s_lshl_b32 s33, s35, 1")
    a("v_xor_b32 v4, s33, v4")
    a("v_lshl_add_u32 v18, v4, 6, v5")
    a("v_xor_b32 v19, 64, v18")
    a("v_add_u32 v20, 0x10000, v18")
    a("v_add_u32 v21, 0x10000, v19")
    a("s_lshl_b32 s33, s34, 6")
    a("v_add_u32 v22, s33, v2")
    a("v_lshlrev_b32 v23, 2, v22")
    a(f"v_add_u32 v23, {STAT+1024}, v23")
    a("v_lshlrev_b32 v22, 3, v22")
    a(f"v_add_u32 v22, {STAT}, v22")
    a("s_lshl_b32 s33, s35, 6")
    a("v_add_u32 v24, s33, v2")
    a("v_lshlrev_b32 v24, 3, v24")
    a(f"v_add_u32 v24, {STAT+2048}, v24")
    ticket(a)
    stamp(a, 22)
    a("s_cmp_ge_u32 s32, 30")
    a("s_cbranch_scc1 Lspare_c")
    f1_addr(a, 30)
    a(f"s_add_u32 s58, s58, {F1}")
    if CFG["pt1"]:
        a("v_mov_b32 v206, 0")
        only_h0(a, lambda: a("buffer_load_dword v207, v206, s[20:23], s58 offen sc1"))

    def reads(t):
        s, st = t >> 2, t & 3
        se = (s >> 1) & 1
        io = (s & 1) * 32768
        F = FRB[t % 3]
        return [f"ds_read_b128 {vr(F,4)}, v{10+4*se+st} offset:{io}",
                f"ds_read_b64_tr_b16 {vr(F+8,2)}, v{18+2*se} offset:{io+st*4096}",
                f"ds_read_b64_tr_b16 {vr(F+10,2)}, v{18+2*se} offset:{io+st*4096+1024}",
                f"ds_read_b64_tr_b16 {vr(F+12,2)}, v{19+2*se} offset:{io+st*4096}",
                f"ds_read_b64_tr_b16 {vr(F+14,2)}, v{19+2*se} offset:{io+st*4096+1024}",
                f"ds_read_b128 {vr(F+4,4)}, v{10+4*se+st} offset:{io+4096}"]
    def mainloop(T, fill=()):
        fill = list(fill)
        stamp(a, 19)
        stats_finish(a)
        stamp(a, 23)
        a("s_barrier")
        stamp(a, 1)
        for r in reads(0) + reads(1): a(r)
        for t in range(40):
            F = FRB[t % 3]
            if t < 38 and (t & 3) == 2:
                a("s_waitcnt lgkmcnt(0)")
                if t == CFG["sg"]: stats_signal(a)
                a("s_barrier")
            else:
                a(f"s_waitcnt lgkmcnt({6 if t < 39 else 0})")
            rd = reads(t + 2) if t < 38 else []
            for i, (x, w) in enumerate(((0, 0), (0, 1), (1, 0), (1, 1))):
                d = vr(ACC + 32 * x + 16 * w, 16)
                xa, wa = vr(F + 4 * x, 4), vr(F + 8 + 4 * w, 4)
                c = "0" if t == 0 else d
                if CFG["x1"] & 1 and t > 0: pass
                elif T: a(f"v_mfma_f32_32x32x16_bf16 {d}, {wa}, {xa}, {c}")
                else: a(f"v_mfma_f32_32x32x16_bf16 {d}, {xa}, {wa}, {c}")
                if CFG["x1"] & 2: rd = []
                if i < 3:
                    for r in rd[2*i:2*i+2]: a(r)
                if t >= 8:
                    for _ in range(1 if i < 3 else 3):
                        if fill: a(fill.pop(0))
        assert not fill
        a("s_barrier")
        stamp(a, 2)
        a("ds_read_b64 v[176:177], v22")
        a("ds_read_b64 v[178:179], v22 offset:256")
        a("ds_read_b64 v[180:181], v24")
        a("ds_read_b64 v[182:183], v24 offset:256")
        if T:
            a("ds_read_b32 v40, v23")
            a("ds_read_b32 v42, v23 offset:128")
        else:
            for x in range(2):
                for j in range(4):
                    a(f"ds_read_b128 {vr(144+16*x+4*j,4)}, v25 offset:{128*x+32*j}")
        a("s_waitcnt lgkmcnt(0)")
        for x, w in ((0, 0), (1, 0), (0, 1), (1, 1)):
            d = vr(ACC + 32 * x + 16 * w, 16)
            xa, wa = vr(176 + 2 * x, 2), vr(180 + 2 * w, 2)
            if T: a(f"v_mfma_f32_32x32x8_bf16 {d}, {wa}, {xa}, {d}")
            else: a(f"v_mfma_f32_32x32x8_bf16 {d}, {xa}, {wa}, {d}")

    a("s_mul_i32 s36, s29, 10240")
    a("s_cmp_ge_u32 s30, 10")
    a("s_cbranch_scc1 Lc1v")
    kappa(a, 4, 5)
    a(f"v_lshlrev_b32 v4, 4, v4")
    a(f"v_lshl_add_u32 v{AD}, v3, 9, v4")
    a(f"v_mul_u32_u24 v5, {UNIT}, v3")
    a(f"v_add_u32 v{AD+1}, v5, v4")
    a("s_lshl_b32 s37, s30, 4")
    a("s_lshl_b32 s33, s35, 3")
    a("s_add_u32 s37, s37, s33")
    a("s_mov_b32 s57, s37")
    late = Asm()
    late("s_mov_b32 s59, 0")
    for q in range(8):
        late(f"s_add_u32 s56, s57, {q}")
        late("s_mul_i32 s38, s56, 52429")
        late("s_lshr_b32 s38, s38, 18")
        late("s_mul_i32 s39, s38, 5")
        late("s_sub_u32 s39, s56, s39")
        late(f"s_mul_i32 s38, s38, {2*UNIT}")
        late("s_add_u32 s38, s38, s36")
        late("s_lshl_b32 s56, s39, 11")
        late("s_add_u32 s38, s38, s56")
        late("s_cmp_gt_u32 s39, 2")
        late(f"s_cselect_b32 s56, {UNIT - 3*2048}, 0")
        late("s_add_u32 s38, s38, s56")
        late("s_cmp_eq_u32 s39, 2")
        late("s_cselect_b32 s56, 9, 10")
        late(f"s_cselect_b32 s39, {1 << q}, 0")
        late("s_lshl_b32 s56, s34, s56")
        late(f"s_add_u32 s{40+q}, s38, s56")
        late("s_or_b32 s59, s59, s39")
    c = (20 ** -0.5) * math.log2(math.e)
    a("s_cmp_lt_u32 s30, 5")
    a(f"s_cselect_b32 s37, {f32(c)}, 1.0")
    mainloop(True, list(late.lines))
    a("v_mul_f32 v40, s37, v40")
    a("v_mul_f32 v42, s37, v42")
    a("s_nop 7")
    for q in range(8):
        w, j = q >> 2, q & 3
        t = 44 + 4 * (q & 3)
        for x in range(2):
            b = ACC + 32 * x + 16 * w + 4 * j
            for i in (0, 2):
                a(f"v_pk_mul_f32 {vr(b+i,2)}, {vr(b+i,2)}, {vr(40+2*x,2)} op_sel_hi:[1,0]")
            a(f"v_cvt_pk_bf16_f32 v{t+2*x}, v{b}, v{b+1}")
            a(f"v_cvt_pk_bf16_f32 v{t+2*x+1}, v{b+2}, v{b+3}")
        L1, L2 = uid("s"), uid("s")
        a(f"s_bitcmp1_b32 s59, {q}")
        a(f"s_cbranch_scc1 {L1}")
        a(f"v_permlane32_swap_b32 v{t}, v{t+2}")
        a(f"v_permlane32_swap_b32 v{t+1}, v{t+3}")
        a(f"buffer_store_dwordx4 {vr(t,4)}, v{AD}, s[20:23], s{40+q} offen sc1")
        a(f"s_branch {L2}")
        a.label(L1)
        a(f"buffer_store_dwordx4 {vr(t,4)}, v{AD+1}, s[20:23], s{40+q} offen sc1")
        a.label(L2)
    a("s_branch Lc1e")
    a.label("Lc1v")
    a("s_sub_u32 s33, s30, 10")
    a("s_lshl_b32 s33, s33, 7")
    a("s_lshl_b32 s37, s35, 6")
    a("s_add_u32 s33, s33, s37")
    a("v_lshlrev_b32 v5, 6, v3")
    a("s_mul_i32 s37, s34, 2560")
    a(f"s_add_u32 s37, s37, {32*UNIT+5120}")
    a("v_add_u32 v5, s37, v5")
    for w in range(2):
        a(f"v_add_u32 v7, s33, v2")
        if w: a("v_add_u32 v7, 32, v7")
        a("v_mul_u32_u24 v9, 52429, v7")
        a("v_lshrrev_b32 v9, 20, v9")
        a("v_mul_u32_u24 v8, 20, v9")
        a("v_sub_u32 v8, v7, v8")
        a(f"v_mul_u32_u24 v9, {UNIT}, v9")
        a("v_lshl_add_u32 v9, v8, 4, v9")
        a("v_and_b32 v8, 28, v8")
        a("v_lshl_add_u32 v9, v8, 4, v9")
        a(f"v_add_u32 v{AD+w}, v9, v5")
    a("s_lshl_b32 s33, s34, 8")
    a(f"s_add_u32 s33, s33, {STAT+1024}")
    a("v_lshl_add_u32 v25, v3, 4, s33")
    mainloop(False)
    a("s_nop 9")
    for w in range(2):
        for x in range(2):
            b = ACC + 32 * x + 16 * w
            for g in range(2):
                for i in range(0, 8, 2):
                    a(f"v_pk_mul_f32 {vr(b+8*g+i,2)}, {vr(144+16*x+8*g+i,2)}, {vr(b+8*g+i,2)}")
                t = 44 + 4 * (g + 2 * x)
                for i in range(4):
                    a(f"v_cvt_pk_bf16_f32 v{t+i}, v{b+8*g+2*i}, v{b+8*g+2*i+1}")
                a(f"buffer_store_dwordx4 {vr(t,4)}, v{AD+w}, s[20:23], s36 offen offset:{1280*x+640*g} sc1")
    a.label("Lc1e")
    stamp(a, 3)
    a("s_waitcnt vmcnt(0)")
    stamp(a, 24)

def ids(a):
    a("s_and_b32 s33, s32, 3")
    a("s_lshl_b32 s29, s31, 2")
    a("s_add_u32 s29, s29, s33")
    a("s_lshr_b32 s30, s32, 2")
    a("s_and_b32 s33, s32, 1")
    a("s_lshl_b32 s62, s31, 1")
    a("s_add_u32 s62, s62, s33")
    a("s_lshr_b32 s63, s32, 1")

def lin_dma(a, n, flag=" sc1", thr=None):
    L = uid("d")
    a(f"s_mov_b32 s37, {n}")
    a.label(L)
    a(f"buffer_load_dwordx4 v1, s[20:23], s39 offen{flag} lds")
    a(f"s_waitcnt vmcnt({thr or CFG['thr']})")
    a("s_add_u32 m0, m0, 4096")
    a("s_add_u32 s39, s39, 4096")
    a("s_sub_u32 s37, s37, 1")
    a("s_cmp_lg_u32 s37, 0")
    a(f"s_cbranch_scc1 {L}")

def helper_rest(a):
    a.label("Lh2")
    a(f"s_setprio {CFG['hp']}")
    ids(a)
    a("v_lshlrev_b32 v1, 4, v0")
    a("s_lshl_b32 s54, s28, 8")
    a("s_add_u32 s54, s54, s2")
    relayout_task(a)
    srd(a, 16, PW1, 640 * 3456)
    a("s_lshl_b32 s38, s28, 10")
    a(f"s_mul_i32 s39, s29, {UNIT}")
    a(f"s_add_u32 s39, s39, {32*UNIT}")
    a("s_add_u32 s39, s39, s38")
    a("s_mov_b32 m0, s38")
    a("s_mul_i32 s33, s29, 20")
    a("s_add_u32 s34, s33, 19")
    a("s_lshr_b32 s33, s33, 7")
    a("s_lshr_b32 s34, s34, 7")
    a("s_sub_u32 s34, s34, s33")
    fpl = CFG["fpl"]; lg = fpl.bit_length() - 1; lb = 4 - lg
    a(f"v_bfe_u32 v3, v0, {lb}, 1")
    a("v_mul_u32_u24 v3, s34, v3")
    a(f"v_lshrrev_b32 v4, {lb+1}, v0")
    if fpl == 1:
        a("s_lshl_b32 s35, s28, 1")
        a("v_add_u32 v4, s35, v4")
        a("v_min_u32 v4, 2, v4")
    a("v_mul_u32_u24 v4, 5, v4")
    a("v_add3_u32 v3, v3, v4, s33")
    a(f"v_lshlrev_b32 v3, {11-lg}, v3")
    a(f"v_and_b32 v4, {(1<<lb)-1}, v0")
    a("v_lshlrev_b32 v4, 7, v4")
    a(f"v_add_u32 v15, {F1}, v4")
    a("v_add_u32 v3, v3, v15")
    stamp(a, 1)
    a("s_barrier")
    stamp(a, 2)
    a(f"s_cmp_gt_u32 s28, {1 if fpl == 1 else 0}")
    a("s_cbranch_scc1 Lh2s")
    poll(a, 3, min(64, 96 // fpl), fpl, sleep=CFG["sl1"])
    a.label("Lh2s")
    stamp(a, 3)
    a("s_barrier")
    def dma(n):
        for i in range(n):
            a(f"buffer_load_dwordx4 v1, s[20:23], s39 offen sc1 lds")
            a("s_add_u32 m0, m0, 4096")
            a("s_add_u32 s39, s39, 4096")
    dma(6)
    a("s_waitcnt vmcnt(3)")
    a("s_barrier")
    dma(10)
    a("s_waitcnt vmcnt(6)")
    a("s_barrier")
    lin_dma(a, 24, thr=20)
    a("s_lshl_b32 s57, s2, 7")
    a(f"s_add_u32 s57, s57, {F2H}")
    a("v_mov_b32 v2, 0")
    a("buffer_load_dword v18, v2, s[20:23], s57 offen sc1")
    a("s_cmp_ge_u32 s54, 592")
    a("s_cbranch_scc1 Lh2n")
    relayout_load(a)
    relayout_store(a)
    a("s_branch Lh2a")
    a.label("Lh2n")
    relayout_w1(a)
    a.label("Lh2a")
    signal(a, 57, 2)
    stamp(a, 10)
    def pollsp():
        a(f"v_add_u32 v3, {15*2048//fpl}, v15")
        poll(a, 3, 16 // fpl, fpl, sleep=8)
    only_h0(a, pollsp)
    a("s_lshl_b32 s33, s30, 7")
    a(f"s_add_u32 s33, s33, {F2H}")
    a("v_lshl_add_u32 v3, v0, 10, s33")
    poll(a, 3, 32, 4, sleep=8)
    a("v_and_b32 v2, 31, v0")
    a("s_lshl_b32 s33, s29, 12")
    a(f"s_add_u32 s33, s33, {F4}")
    a("v_lshl_add_u32 v10, v2, 7, s33")
    a(f"v_add_u32 v11, {FR}, v10")
    a(f"v_add_u32 v12, {2*FR}, v10")
    if CFG["pt"]:
        a("s_min_u32 s33, s28, 2")
        a(f"s_mul_i32 s33, s33, {FR}")
        a("buffer_load_dword v4, v10, s[20:23], s33 offen sc1")
        a("v_bfe_u32 v3, v0, 2, 1")
        a(f"v_mul_u32_u24 v3, {FR}, v3")
        a("v_and_b32 v2, 3, v0")
        a(f"v_mul_u32_u24 v2, {CFG['ls']}, v2")
        a("v_add_u32 v2, v2, v3")
        a(f"s_mul_i32 s33, s29, {4*CFG['ls']}")
        a(f"s_add_u32 s33, s33, {F2}")
        a("buffer_load_dword v4, v2, s[20:23], s33 offen sc1")
    STH = 20
    a(f"s_mul_i32 s55, s30, {54*5120}")
    a(f"s_add_u32 s55, s55, {OFF_W2}")
    a("s_add_u32 s55, s55, s38")
    a("s_mov_b32 s39, s55")
    stamp(a, 7)
    for i in range(58):
        a(f"buffer_load_dwordx4 {vr(STH+4*i,4)}, v1, s[20:23], s39 offen sc1")
        a(f"s_add_u32 s39, s39, {4096 if i != 29 else 4096 + 40960}")
    stamp(a, 8)
    a("s_mul_i32 s33, s63, 20")
    a("s_add_u32 s33, s33, 592")
    a("s_cmp_ge_u32 s63, 6")
    a(f"s_cselect_b32 s34, 20, 0")
    a(f"s_add_u32 s34, s34, {912-20}")
    a("v_add_u32 v2, s33, v0")
    a("v_cmp_gt_u32 vcc, 20, v0")
    a("v_add_u32 v3, s34, v0")
    a("s_nop 0")
    a("v_cndmask_b32 v3, v3, v2, vcc")
    a("v_and_b32 v3, 255, v3")
    a("v_lshlrev_b32 v3, 7, v3")
    a(f"v_add_u32 v3, {F2H}, v3")
    poll(a, 3, 40, 4, sleep=8)
    if CFG["pf"]:
        a("s_and_b32 s33, s32, 1")
        a("s_lshl_b32 s33, s33, 2")
        a("s_add_u32 s33, s33, s28")
        a(f"s_mul_i32 s34, s33, {86016//8}")
        a(f"s_mul_i32 s33, s63, {W1T}")
        a("s_add_u32 s34, s34, s33")
        a(f"s_add_u32 s34, s34, {OFF_W1 + 57344}")
        a("v_lshlrev_b32 v2, 7, v0")
        a("v_min_u32 v3, 2432, v2")
        a("buffer_load_dword v4, v2, s[20:23], s34 offen sc1")
        a("s_add_u32 s34, s34, 8192")
        a("buffer_load_dword v4, v3, s[20:23], s34 offen sc1")
    stamp(a, 11)
    if CFG["hp3"] != 3: a(f"s_setprio {CFG['hp3']}")
    a(f"s_mul_i32 s39, s30, {20*5120}")
    a(f"s_add_u32 s39, s39, {OFF_WO}")
    a("s_add_u32 s39, s39, s38")
    a("s_mov_b32 m0, s38")
    a("s_barrier")
    lin_dma(a, 25, thr=20)
    a("s_waitcnt vmcnt(0)")
    a(f"s_mul_i32 s39, s63, {W1T}")
    a(f"s_add_u32 s39, s39, {OFF_W1}")
    a("s_add_u32 s39, s39, s38")
    a("s_add_u32 m0, s38, 102400")
    stamp(a, 14)
    a("s_barrier")
    lin_dma(a, 14, thr=20)
    a("s_barrier")
    a("s_mov_b32 m0, s38")
    a("s_waitcnt vmcnt(0)")
    stamp(a, 4)
    a("s_barrier")
    lin_dma(a, 21, thr=20)
    a("s_waitcnt vmcnt(0)")
    stamp(a, 5)
    a("s_barrier")
    a(f"s_add_u32 s39, s55, {6*20480}")
    a(f"s_add_u32 m0, s38, {6*20480}")
    a("v_add_u32 v8, s38, v1")
    a("v_add_u32 v9, 61440, v8")
    def put(i, slotpiece):
        a(f"ds_write_b128 v{8 + slotpiece // 15}, {vr(STH+4*i,4)} offset:{(slotpiece % 15) * 4096}")
    if CFG["hp4"] != CFG["hp3"]: a(f"s_setprio {CFG['hp4']}")
    a("s_barrier")
    for i in range(30):
        if i % 3 == 0: dma(1)
        put(i, i)
    a("s_waitcnt lgkmcnt(0)")
    stamp(a, 6)
    a("s_or_b32 s33, s31, s32")
    a("s_or_b32 s33, s33, s28")
    a("s_cbranch_scc1 Lh5")
    srd(a, 24, PDBG, 256)
    a("v_lshlrev_b32 v2, 2, v0")
    a("v_mov_b32 v3, 0")
    a("buffer_store_dword v3, v2, s[24:27], 0 offen sc1")
    a.label("Lh5")
    a("s_setprio 3")
    a("s_waitcnt vmcnt(0)")
    only_h0(a, lambda: poll(a, 10, 32, sleep=CFG["sl4"]))
    stamp(a, 12)
    a("s_barrier")
    only_h0(a, lambda: a("buffer_load_dword v13, v11, s[20:23], 0 offen sc1"))
    if CFG["hp5"] != 3: a(f"s_setprio {CFG['hp5']}")
    for s in range(1, 14):
        if s in (2, 6):
            def lv():
                L = uid("k")
                a("s_waitcnt vmcnt(0)")
                tagcheck(a, 13, 1)
                a(f"s_cbranch_scc0 {L}")
                poll(a, 11 if s == 2 else 12, 32)
                a.label(L)
            only_h0(a, lv)
            if s == 2: stamp(a, 13)
        a("s_barrier")
        if s == 3: only_h0(a, lambda: a("buffer_load_dword v13, v12, s[20:23], 0 offen sc1"))
        if s >= 2:
            ks = [k for k in range(28) if 2 + k // 3 == s]
            for k in ks:
                if CFG["w64"]:
                    for e in range(2):
                        a(f"ds_write_b64 v{8 + k // 15}, {vr(STH+4*(30+k)+2*e,2)} offset:{(k % 15) * 4096 + 8*e}")
                        if CFG["wsl"]: a(f"s_sleep {CFG['wsl']}") if CFG["wsl"] < 8 else a(f"s_nop {CFG['wsl']}")
                else:
                    put(30 + k, k)
                    if CFG["wsl"]: a(f"s_sleep {CFG['wsl']}") if CFG["wsl"] < 8 else a(f"s_nop {CFG['wsl']}")
            if s >= 7: a(f"s_waitcnt lgkmcnt({len(ks) * (2 if CFG['w64'] else 1)})")
    finish(a)

def compute_rest(a):
    QA = [4, 8]; QB = 12; QBA = [12, 14]; QBB = [16, 18]
    IDX, AK, AV = 20, 21, 23
    O = [24, 40]
    S = [56, 72, 88, 104]
    KA = [120, 128]; KB = [136, 140]; V = [144, 160]
    T = 176
    a.label("Lc2")
    a("s_barrier")
    only_h0(a, lambda: ssignal(a, 58))
    ids(a)
    RES, XR = 232, 220
    a("v_and_b32 v4, 15, v0")
    a("v_lshrrev_b32 v5, 4, v0")
    a("v_mul_u32_u24 v252, 1280, v4")
    a("v_lshl_add_u32 v253, v5, 3, v252")
    a("v_lshl_add_u32 v252, v5, 5, v252")
    a("v_lshlrev_b32 v230, 5, v5")
    a("v_lshlrev_b32 v231, 3, v5")
    a("s_lshl_b32 s33, s29, 2")
    a("s_add_u32 s33, s33, s28")
    a("s_mul_i32 s59, s33, 20480")
    a("s_mul_i32 s38, s30, 160")
    a("s_add_u32 s59, s59, s38")
    srd(a, 12, PX, 2048 * 1280)
    srd(a, 16, PB2, 1280)
    a("s_mov_b32 s42, s38")
    a("v_and_b32 v2, 31, v0")
    a("v_lshrrev_b32 v1, 5, v0")
    a("v_lshlrev_b32 v3, 4, v2")
    a(f"v_lshl_add_u32 v{AK}, v1, 11, v3")
    a(f"v_lshlrev_b32 v22, 4, v0")
    a(f"v_and_b32 v{AV}, 28, v0")
    a(f"v_lshl_add_u32 v{AV}, v{AV}, 4, v3")
    a(f"v_lshl_add_u32 v{AV}, v1, 6, v{AV}")
    a(f"s_mul_i32 s33, s29, {UNIT}")
    a("s_lshl_b32 s34, s30, 1")
    a("s_lshr_b32 s35, s28, 1")
    a("s_add_u32 s34, s34, s35")
    a("s_mul_i32 s34, s34, 10240")
    a("s_add_u32 s34, s34, s33")
    a("s_and_b32 s35, s28, 1")
    a("s_lshl_b32 s36, s35, 10")
    a("s_add_u32 s36, s36, s34")
    a("s_lshl_b32 s37, s35, 9")
    a("s_add_u32 s37, s37, s34")
    a("s_add_u32 s37, s37, 4096")
    a(f"v_mov_b32 v{IDX}, 0xdddddddd")
    a("s_mov_b32 s40, 0xfffff")
    a("s_mov_b32 s41, 0xfffff")
    for i in range(32): a(f"v_mov_b32 v{O[0]+i}, 0")
    for i in range(16): a(f"v_mov_b32 v{S[3]+i}, 0")
    a(f"v_and_b32 v{T}, 27, v0")
    a(f"v_cmp_eq_u32 vcc, 24, v{T}")
    a(f"v_mov_b32 v{T}, 0x3f803f80")
    a("s_mov_b32 s43, 4")
    a(f"v_cndmask_b32 v{V[0]}, v{O[0]}, v{T}, vcc")
    for i in range(1, 32): a(f"v_mov_b32 v{V[0]+i}, v{V[0]}")
    a("v_cmp_gt_u32 vcc, 32, v0")
    a("s_barrier")
    stamp(a, 5)
    for q in range(2):
        a(f"buffer_load_dwordx4 {vr(QA[q],4)}, v{AK}, s[20:23], s36 offen offset:{512*q} sc1")
    a(f"buffer_load_dwordx4 {vr(QB,4)}, v3, s[20:23], s37 offen sc1")
    a("s_waitcnt vmcnt(0)")
    for i in range(4):
        a(f"v_cndmask_b32 v{QBB[0]+i}, v{QB+i}, v{O[0]}, vcc")
        a(f"v_cndmask_b32 v{QB+i}, v{O[0]}, v{QB+i}, vcc")
    def ka_off(t): return (t >> 2) * 10240 + (t & 3) * 512
    def kb_off(b): return b * 10240 + 4096
    def v_off(t, g): return (t >> 2) * 10240 + 5120 + (2 * (t & 3) + g) * 640
    def batch(p):
        r = [f"ds_read_b128 {vr(KA[p&1],4)}, v{AK} offset:{ka_off(2*p)}"]
        if p % 2 == 0:
            r.append(f"ds_read_b128 {vr(KB[(p>>1)&1],4)}, v22 offset:{kb_off(p>>1)}")
        r.append(f"ds_read_b128 {vr(KA[p&1]+4,4)}, v{AK} offset:{ka_off(2*p+1)}")
        r.append("s_mov_b64 exec, s[40:41]")
        for j in range(4):
            r.append(f"ds_read_b128 {vr(V[p&1]+4*j,4)}, v{AV} offset:{v_off(2*p+(j>>1), j&1)}")
        r.append("s_mov_b64 exec, -1")
        return r
    def sync(it, op="lg"):
        L = uid("n")
        a(f"s_cmp_{op}_u32 s43, {it}")
        a(f"s_cbranch_scc1 {L}")
        a("s_barrier")
        a.label(L)
    def qk16(u):
        t, q = u >> 1, u & 1
        return f"v_mfma_f32_32x32x16_bf16 {vr(S[u&3],16)}, {vr(KA[(t>>1)&1]+4*(t&1),4)}, {vr(QA[q],4)}, 0"
    def qk8(u):
        t, q = u >> 1, u & 1
        return f"v_mfma_f32_32x32x8_bf16 {vr(S[u&3],16)}, {vr(KB[(t>>2)&1]+2*(t&1),2)}, {vr((QBB if t&2 else QBA)[q],2)}, {vr(S[u&3],16)}"
    def pv(u, g):
        t, q = u >> 1, u & 1
        return f"v_smfmac_f32_32x32x32_bf16 {vr(O[q],16)}, {vr(V[(t>>1)&1]+8*(t&1)+4*g,4)}, {vr(S[u&3]+8*g,8)}, v{IDX}"
    a("s_barrier")
    stamp(a, 6)
    for r in batch(0): a(r)
    a("s_waitcnt lgkmcnt(4)")
    a(qk16(0)); a(qk8(0))
    a("s_waitcnt lgkmcnt(0)")
    a("s_nop 9")
    a(".p2align 6")
    a.label("Lattn")
    for u in range(32):
        s = S[u & 3]
        if u == CFG["fr"]: sync(1)
        if u == 5: sync(4)
        if u == CFG["ru"]:
            a("s_cmp_lg_u32 s43, 1")
            a("s_cbranch_scc1 Lnores")
            a(f"buffer_load_dwordx4 {vr(XR,4)}, v252, s[12:15], s59 offen")
            a(f"buffer_load_dwordx4 {vr(XR+4,4)}, v252, s[12:15], s59 offen offset:16")
            a(f"buffer_load_dwordx2 {vr(XR+8,2)}, v253, s[12:15], s59 offen offset:128")
            a(f"buffer_load_dwordx4 {vr(RES,4)}, v230, s[16:19], s42 offen")
            a(f"buffer_load_dwordx4 {vr(RES+4,4)}, v230, s[16:19], s42 offen offset:16")
            a(f"buffer_load_dwordx2 {vr(RES+8,2)}, v231, s[16:19], s42 offen offset:128")
            a.label("Lnores")
        if u == 29: sync(4)
        if u % 4 == 3: a("s_waitcnt lgkmcnt(0)")
        a(qk16(u + 1))
        if u % 4 == 1:
            for r in batch((u + 3) // 4): a(r)
        for i in range(0, 4): a(f"v_exp_f32 v{s+i}, v{s+i}")
        a(qk8(u + 1))
        for i in range(4, 8): a(f"v_exp_f32 v{s+i}, v{s+i}")
        a(pv(u - 1, 0))
        for i in range(8, 12): a(f"v_exp_f32 v{s+i}, v{s+i}")
        a(pv(u - 1, 1))
        if u == 31:
            a(f"v_add_u32 v{AK}, 40960, v{AK}")
            a(f"v_add_u32 v22, 40960, v22")
            a(f"v_add_u32 v{AV}, 40960, v{AV}")
            if CFG["prof"] == 3:
                a("s_memtime s[98:99]")
                a("s_waitcnt lgkmcnt(0)")
                a("s_mov_b32 m0, s43")
                a("s_nop 0")
                a("v_writelane_b32 v230, s98, m0")
            a("s_sub_u32 s43, s43, 1")
            a("s_cmp_lg_u32 s43, 0")
        for i in range(12, 16): a(f"v_exp_f32 v{s+i}, v{s+i}")
    a("s_cbranch_scc1 Lattn")
    a("s_nop 0")
    a(pv(31, 0)); a(pv(31, 1))
    stamp(a, 7)
    a("s_mov_b64 s[46:47], -1")
    kappa(a, T, T + 1)
    a(f"v_lshrrev_b32 v{T+1}, 4, v{T}")
    a(f"v_mul_u32_u24 v{T+1}, 20480, v{T+1}")
    a(f"v_and_b32 v{T}, 15, v{T}")
    a(f"v_lshl_add_u32 v{T+2}, v{T}, 4, v{T+1}")
    a(f"v_lshl_add_u32 v{T}, v{T}, 3, v{T+1}")
    a(f"v_lshl_add_u32 v{T+1}, v1, 8, v{T+2}")
    a("s_lshl_b32 s33, s30, 4")
    a("s_lshl_b32 s34, s28, 2")
    a("s_add_u32 s33, s33, s34")
    a("s_mul_i32 s33, s33, 20480")
    a(f"s_add_u32 s33, s33, {OFF_O}")
    a("s_lshl_b32 s34, s29, 9")
    a("s_add_u32 s34, s34, s33")
    a("s_lshr_b32 s35, s29, 3")
    a("s_lshl_b32 s35, s35, 10")
    a("s_and_b32 s36, s29, 2")
    a("s_lshl_b32 s36, s36, 8")
    a("s_add_u32 s35, s35, s36")
    a("s_and_b32 s36, s29, 4")
    a("s_lshl_b32 s36, s36, 6")
    a("s_add_u32 s35, s35, s36")
    a("s_and_b32 s36, s29, 1")
    a("s_lshl_b32 s36, s36, 7")
    a("s_add_u32 s35, s35, s36")
    a("s_add_u32 s35, s35, s33")
    a("s_add_u32 s35, s35, 16384")
    a("s_add_u32 s38, s34, 40960")
    a("s_add_u32 s39, s35, 40960")
    a(f"s_mov_b32 s36, {f32(2.0**-64)}")
    a(f"s_mov_b32 s37, {f32(2.0**100)}")
    a.label("Lchk")
    for q in range(2):
        a(f"v_rcp_f32 v{T+2+2*q}, v{O[q]+12}")
        a(f"v_pk_add_f32 {vr(T+6,2)}, {vr(O[q],2)}, {vr(O[q]+2,2)}")
        for i in range(4, 12, 2):
            a(f"v_pk_add_f32 {vr(T+6,2)}, {vr(T+6,2)}, {vr(O[q]+i,2)}")
        a(f"v_add_f32 v{T+6}, v{T+6}, v{T+7}")
        a(f"v_fma_f32 v{T+6}, v{T+6}, 0, v{O[q]+12}")
        a(f"v_cmp_nle_f32 s[{50+4*q}:{51+4*q}], s36, v{T+6}")
        a(f"v_cmp_nge_f32 s[{52+4*q}:{53+4*q}], s37, v{T+6}")
    a("s_or_b64 s[50:51], s[50:51], s[52:53]")
    a("s_or_b64 s[54:55], s[54:55], s[56:57]")
    a("s_or_b64 s[50:51], s[50:51], s[54:55]")
    a("s_and_b64 s[50:51], s[50:51], s[46:47]")
    a("s_cbranch_scc1 Lfallback")
    for q in range(2):
        for i in range(0, 12, 2):
            a(f"v_pk_mul_f32 {vr(O[q]+i,2)}, {vr(O[q]+i,2)}, {vr(T+2+2*q,2)} op_sel_hi:[1,0]")
        for i in range(6):
            a(f"v_cvt_pk_bf16_f32 v{S[1]+8*q+i}, v{O[q]+2*i}, v{O[q]+2*i+1}")
        a(f"buffer_store_dwordx4 {vr(S[1]+8*q,4)}, v{T+1}, s[20:23], s{34+4*q} offen sc1")
    a("s_mov_b32 exec_hi, 0")
    for q in range(2):
        a(f"buffer_store_dwordx2 {vr(S[1]+8*q+4,2)}, v{T}, s[20:23], s{35+4*q} offen sc1")
    a("s_mov_b64 exec, -1")
    a("s_barrier")
    a("s_lshl_b32 s33, s30, 2")
    a("s_add_u32 s33, s33, s28")
    a("s_lshl_b32 s33, s33, 2")
    a("s_lshr_b32 s34, s29, 3")
    a("s_add_u32 s33, s33, s34")
    a(f"s_mul_i32 s33, s33, {CFG['ls']//4}")
    a("s_and_b32 s34, s29, 7")
    a("s_add_u32 s33, s33, s34")
    a("s_lshl_b32 s33, s33, 2")
    a(f"s_add_u32 s33, s33, {F2}")
    ssignal(a, 33, 20)
    stamp(a, 8)

    ACC, AR, WF, RS = 12, 32, 112, 192
    a("v_lshlrev_b32 v1, 4, v0")
    a("v_and_b32 v4, 15, v0")
    a("v_lshrrev_b32 v5, 4, v0")
    a("s_lshl_b32 s33, s29, 2")
    a("s_add_u32 s33, s33, s28")
    a("s_mul_i32 s34, s33, 20480")
    a(f"s_add_u32 s34, s34, {OFF_O}")
    a("v_add_u32 v6, 61440, v1")
    a("v_lshlrev_b32 v7, 3, v0")
    a("v_lshlrev_b32 v8, 4, v4")
    a("v_lshl_add_u32 v9, v5, 9, v8")
    a("v_lshrrev_b32 v10, 1, v5")
    a("v_lshl_add_u32 v8, v10, 8, v8")
    a("v_and_b32 v10, 1, v5")
    a("v_lshl_add_u32 v8, v10, 3, v8")
    a("s_mul_i32 s35, s33, 20480")
    a("s_mul_i32 s36, s30, 2560")
    a("s_add_u32 s35, s35, s36")
    a(f"s_add_u32 s35, s35, {OFF_H}")
    a("v_lshlrev_b32 v10, 3, v4")
    a("s_lshl_b32 s37, s33, 10")
    a("s_lshl_b32 s39, s30, 7")
    a("s_add_u32 s37, s37, s39")
    a(f"s_add_u32 s37, s37, {OFF_ST}")
    a("v_mov_b32 v11, 0x3f803f80")
    def wreads(t, R, ads):
        s, st = t >> 2, t & 3
        sl = s % R
        F = WF + 20 * (t & 3)
        return [f"ds_read_b128 {vr(F+4*tt,4)}, v{ads[sl//3]} offset:{(sl%3)*20480+st*5120+1024*tt}" for tt in range(5)]
    for t in range(2):
        for r in wreads(t, 5, (1, 6)): a(r)
    for i in range(10):
        a(f"v_lshlrev_b32 v{ACC+2*i}, 16, v{XR+i}")
        a(f"v_and_b32 v{ACC+2*i+1}, 0xffff0000, v{XR+i}")
        a(f"v_and_b32 v{RES+19-2*i}, 0xffff0000, v{RES+9-i}")
        a(f"v_lshlrev_b32 v{RES+18-2*i}, 16, v{RES+9-i}")
    a(f"s_mul_i32 s33, s29, {4*CFG['ls']}")
    a(f"s_add_u32 s33, s33, {F2}")
    only_h0(a, lambda: spoll(a, 33, [8, 8, 8, 8]))
    a("s_barrier")
    stamp(a, 9)
    vq = []
    def aload(i):
        if i < 16:
            r = [f"buffer_load_dwordx4 {vr(AR+4*i,4)}, v1, s[20:23], s34 offen offset:{1024*(i&3)} sc1"]
        else:
            r = [f"buffer_load_dwordx2 {vr(AR+4*i+2*e,2)}, v7, s[20:23], s34 offen offset:{1024*(i&3)+512*e} sc1" for e in range(2)]
        vq.extend([i] * len(r))
        if i & 3 == 3: r.append("s_add_u32 s34, s34, 4096")
        return r
    N0 = 11
    for i in range(N0):
        for x in aload(i): a(x)
    for t in range(20):
        F = WF + 20 * (t & 3)
        a(f"s_waitcnt vmcnt({sum(1 for x in vq if x > t)}) lgkmcnt({5 if t < 19 else 0})")
        rd = wreads(t + 2, 5, (1, 6)) if t < 18 else []
        for tt in range(5):
            d = vr(ACC + 4 * tt, 4)
            a(f"v_mfma_f32_16x16x32_bf16 {d}, {vr(F+4*tt,4)}, {vr(AR+4*t,4)}, {d}")
            if rd: a(rd[tt])
            if tt == 0 and t + N0 < 20:
                for x in aload(t + N0): a(x)
    stamp(a, 10)
    a("v_mov_b32 v2, 0")
    a("v_mov_b32 v3, 0")
    a("s_nop 2")
    for i in range(10):
        a(f"v_cvt_pk_bf16_f32 v{RS+i}, v{ACC+2*i}, v{ACC+2*i+1}")
        if i == 3: a(f"buffer_store_dwordx4 {vr(RS,4)}, v9, s[20:23], s35 offen sc1")
        if i == 7: a(f"buffer_store_dwordx4 {vr(RS+4,4)}, v9, s[20:23], s35 offen offset:256 sc1")
    a(f"buffer_store_dwordx2 {vr(RS+8,2)}, v8, s[20:23], s35 offen offset:2048 sc1")
    for i in range(10):
        a(f"v_dot2_f32_bf16 v2, v{RS+i}, v11, v2")
        a(f"v_dot2_f32_bf16 v3, v{RS+i}, v{RS+i}, v3")
    a("s_nop 2")
    for sw in ("v_permlane32_swap_b32", "v_permlane16_swap_b32"):
        a("v_mov_b32 v4, v2")
        a("v_mov_b32 v5, v3")
        a("s_nop 1")
        a(f"{sw} v2, v4")
        a(f"{sw} v3, v5")
        a("v_add_f32 v2, v2, v4")
        a("v_add_f32 v3, v3, v5")
    a("s_mov_b64 exec, 0xffff")
    a("buffer_store_dwordx2 v[2:3], v10, s[20:23], s37 offen sc1")
    a("s_mov_b64 exec, -1")
    a("s_barrier")
    for i in range(10):
        a(f"v_lshlrev_b32 v4, 16, v{RS+i}")
        a(f"v_and_b32 v5, 0xffff0000, v{RS+i}")
        a(f"v_pk_add_f32 {vr(RES+2*i,2)}, {vr(RES+2*i,2)}, v[4:5]")
    a("s_lshl_b32 s33, s29, 2")
    a("s_add_u32 s33, s33, s28")
    a(f"s_mul_i32 s33, s33, {CFG['ls']//4}")
    a("s_add_u32 s33, s33, s30")
    a("s_lshl_b32 s33, s33, 2")
    a(f"s_add_u32 s33, s33, {F3}")
    ssignal(a, 33, 21)
    stamp(a, 11)
    ACC, AR, NA, WF, NW, CO, SP = 32, 88, 7, 144, 12, 192, 208
    a("v_add_u32 v12, 102400, v1")
    a("v_add_u32 v13, 57344, v1")
    a("v_and_b32 v2, 15, v0")
    a("v_lshrrev_b32 v3, 4, v0")
    a("v_lshlrev_b32 v6, 3, v2")
    a("v_lshl_add_u32 v8, v3, 8, v6")
    a("s_mul_i32 s56, s63, 768")
    a(f"s_add_u32 s56, s56, {OFF_CO}")
    a("s_lshl_b32 s57, s63, 7")
    a(f"s_add_u32 s57, s57, {OFF_CO + 1536*8}")
    a("s_lshl_b32 s33, s62, 2")
    a("s_add_u32 s33, s33, s28")
    a("s_mul_i32 s34, s33, 40960")
    a(f"s_add_u32 s34, s34, {OFF_H}")
    a("s_add_u32 s35, s34, 20480")
    a("s_lshl_b32 s38, s33, 11")
    a(f"s_add_u32 s38, s38, {OFF_ST}")
    a(f"s_mul_i32 s36, s33, {2*54*1024}")
    a(f"s_add_u32 s36, s36, {OFF_G}")
    a("s_lshl_b32 s37, s63, 9")
    a("s_add_u32 s39, s36, s37")
    a(f"s_add_u32 s39, s39, {48*1024}")
    a("s_lshl_b32 s37, s63, 10")
    a("s_add_u32 s36, s36, s37")
    a("s_lshl_b32 s58, s33, 4")
    a("s_add_u32 s58, s58, s63")
    a("s_lshl_b32 s58, s58, 7")
    a(f"s_add_u32 s58, s58, {F4}")
    k0 = -2 * math.sqrt(2 / math.pi) * math.log2(math.e)
    def w1read(m):
        t, tt = divmod(m, 7)
        ad, o = (12, t) if t < 8 else ((1, t - 8) if t < 16 else (13, t - 16))
        return f"ds_read_b128 {vr(WF+4*(m%NW),4)}, v{ad} offset:{o*7168+tt*1024}"
    PD = CFG["pd4"]
    WG = {0: 4, 4: 3} if CFG["wg4"] == 2 else ({0: 2, 2: 2, 4: 3} if CFG["wg4"] == 3 else {i: 1 for i in range(7)})
    for m in range(PD): a(w1read(m))
    a(f"s_mul_i32 s37, s33, {2*CFG['ls']}")
    a(f"s_add_u32 s37, s37, {F3}")
    spoll(a, 37, [8, 8])
    a(f"s_mov_b32 s44, {f32(k0)}")
    a(f"s_mov_b32 s45, {f32(k0 * 0.044715)}")
    stamp(a, 12)
    vq = []
    def hload(i, h):
        r = [f"buffer_load_dwordx4 {vr(AR+8*(i%NA)+4*h,4)}, v1, s[20:23], s{34+h} offen offset:{1024*(i&3)} sc1"]
        if i & 3 == 3: r.append(f"s_add_u32 s{34+h}, s{34+h}, 4096")
        vq.append(i)
        return r
    N0 = NA - 1
    for i in range(N0):
        for x in hload(i, 0) + hload(i, 1): a(x)
    extra = [f"buffer_load_dwordx2 {vr(SP+10*h+2*j,2)}, v8, s[20:23], s38 offen offset:{1024*h+128*j} sc1" for h in range(2) for j in range(2)]
    extra += [f"buffer_load_dwordx2 {vr(CO+2*tt,2)}, v6, s[20:23], s56 offen offset:{128*tt} sc1" for tt in range(6)]
    extra += [f"buffer_load_dwordx2 {vr(CO+12,2)}, v6, s[20:23], s57 offen sc1"]
    fin = Asm()
    for h in range(2):
        P = SP + 10 * h
        fin(f"v_add_f32 v{P}, v{P}, v{P+2}")
        fin(f"v_add_f32 v{P+1}, v{P+1}, v{P+3}")
        for sw in ("v_permlane32_swap_b32", "v_permlane16_swap_b32"):
            fin(f"v_mov_b32 v{P+2}, v{P}")
            fin(f"v_mov_b32 v{P+3}, v{P+1}")
            fin(f"{sw} v{P}, v{P+2}")
            fin(f"{sw} v{P+1}, v{P+3}")
            fin(f"v_add_f32 v{P}, v{P}, v{P+2}")
            fin(f"v_add_f32 v{P+1}, v{P+1}, v{P+3}")
        ln_final(fin, P, P + 1, P + 2, P + 4, f32(0.25))
        fin(f"v_mul_f32 v{P+8}, 4.0, v{P+1}")
        fin(f"v_mul_f32 v{P+6}, s44, v{P+4}")
        fin(f"v_mul_f32 v{P+7}, v{P+4}, v{P+4}")
        fin(f"v_mul_f32 v{P+7}, v{P+7}, v{P+4}")
        fin(f"v_mul_f32 v{P+7}, s45, v{P+7}")
    fin = list(fin.lines)
    for m in range(140):
        t, tt = divmod(m, 7)
        if m + PD == 56: a("s_barrier")
        if tt in WG:
            w = f"lgkmcnt({min(PD - WG[tt], 140 - m - WG[tt])})"
            if tt == 0 and not CFG["x4"] & 1:
                last = max(i for i, x in enumerate(vq) if x == t)
                w = f"vmcnt({len(vq) - 1 - last}) " + w
            a(f"s_waitcnt {w}")
        if t in (2, 10) and tt == 0: stamp(a, {2: 29, 10: 30}[t])
        if m == 139: a("s_barrier")
        for h in range(2):
            d = vr(ACC + 28 * h + 4 * tt, 4)
            a(f"v_mfma_f32_16x16x32_bf16 {d}, {vr(WF+4*(m%NW),4)}, {vr(AR+8*(t%NA)+4*h,4)}, {'0' if t == 0 else d}")
            if h == 0 and m + PD < 140: a(w1read(m + PD))
        if tt in (1, 4) and t + N0 < 20:
            for x in hload(t + N0, tt // 4): a(x)
        elif tt in (0, 2, 3, 5, 6) and t >= 1 and extra:
            a(extra.pop(0)); vq.append(-1)
        elif t >= 8 and fin:
            a(fin.pop(0))
    assert not fin
    corr = [f"v_mfma_f32_16x16x16_bf16 {vr(ACC+28*h+4*tt,4)}, {vr(CO+2*tt,2)}, {vr(SP+10*h+2,2)}, {vr(ACC+28*h+4*tt,4)}"
            for h, tt in [(h, 2 * p + e) for p in range(3) for h in range(2) for e in range(2)] + [(0, 6), (1, 6)]]
    a("s_nop 0")
    for _ in range(4): a(corr.pop(0))
    stamp(a, 13)
    a("s_nop 4")
    pr = lambda q: vr(q, 2)
    def gelu(regs, consts, T0, t):
        for i in range(4): a(f"v_pk_mul_f32 {pr(T0+2*i)}, {pr(regs[i])}, {pr(regs[i])}")
        for i in range(4): a(f"v_pk_fma_f32 {pr(T0+2*i)}, {pr(T0+2*i)}, {pr(consts[i]+6)}, {pr(consts[i]+6)} op_sel:[0,1,0] op_sel_hi:[1,1,0]")
        for i in range(4): a(f"v_pk_mul_f32 {pr(T0+2*i)}, {pr(T0+2*i)}, {pr(regs[i])}")
        for i in range(8):
            a(f"v_exp_f32 v{T0+i}, v{T0+i}")
            if i in (1, 5) and corr: a(corr.pop(0))
        for i in range(4): a(f"v_pk_fma_f32 {pr(T0+2*i)}, {pr(T0+2*i)}, {pr(consts[i]+8)}, {pr(consts[i]+8)} op_sel_hi:[1,0,0]")
        for i in range(8): a(f"v_rcp_f32 v{T0+i}, v{T0+i}")
        for i in range(4): a(f"v_pk_mul_f32 {pr(regs[i])}, {pr(regs[i])}, {pr(T0+2*i)}")
        for i in range(4): a(f"v_cvt_pk_bf16_f32 v{t+i}, v{regs[i]}, v{regs[i]+1}")
    a(f"s_add_u32 s37, s36, {54*1024}")
    for p in range(3):
        for h in range(2):
            r = ACC + 28 * h + 8 * p
            t = 112 + 4 * ((2 * p + h) & 3)
            gelu([r, r + 2, r + 4, r + 6], [SP + 10 * h] * 4, 96 + 8 * h, t)
            a(f"buffer_store_dwordx4 {vr(t,4)}, v1, s[20:23], s{36+h} offen sc1")
            a(f"s_add_u32 s{36+h}, s{36+h}, 16384")
            if 2 * p + h == CFG["sp0"]:
                if CFG["ss0"]: ssignal(a, 58, n=CFG["sp0"] - 1)
                else: vsignal(a, 58, CFG["sp0"] - 1)
                stamp(a, 18)
    a("s_cmp_ge_u32 s63, 12")
    a("s_cbranch_scc1 Lc4e")
    r = ACC + 24
    gelu([r, r + 2, r + 28, r + 30], [SP, SP, SP + 10, SP + 10], 96, 120)
    a("buffer_store_dwordx2 v[120:121], v7, s[20:23], s39 offen sc1")
    a(f"s_add_u32 s39, s39, {54*1024}")
    a("buffer_store_dwordx2 v[122:123], v7, s[20:23], s39 offen sc1")
    stamp(a, 14)
    a("s_waitcnt vmcnt(4)")
    a("s_branch Lc4f")
    a.label("Lc4e")
    a("s_waitcnt vmcnt(2)")
    a.label("Lc4f")
    a(f"s_add_u32 s58, s58, {FR}")
    ssignal(a, 58, n=4)
    a.label("Lc5")
    stamp(a, 15)

    AR, NA, WF, OTH = 32, 8, 112, 172
    a("s_and_b32 s36, s28, 1")
    a("s_mul_i32 s37, s36, 5120")
    a("v_mov_b32 v20, v7")
    a("v_add_u32 v5, s37, v1")
    a("v_add_u32 v6, 61440, v5")
    a("v_add_u32 v7, 122880, v5")
    a("s_lshl_b32 s33, s29, 2")
    a("s_add_u32 s33, s33, s28")
    a(f"s_mul_i32 s34, s33, {54*1024}")
    a("s_xor_b32 s33, s33, 1")
    a(f"s_mul_i32 s35, s33, {54*1024}")
    a("s_lshl_b32 s36, s36, 10")
    a(f"s_add_u32 s36, s36, {OFF_G}")
    a("s_add_u32 s34, s34, s36")
    a("s_add_u32 s35, s35, s36")
    a("s_mul_i32 s36, s28, 5120")
    a(f"s_add_u32 s36, s36, {6*20480}")
    a("v_add_u32 v8, s36, v1")
    a("s_xor_b32 s36, s28, 1")
    a("s_mul_i32 s36, s36, 5120")
    a(f"s_add_u32 s36, s36, {6*20480}")
    a("v_add_u32 v9, s36, v1")
    srd(a, 16, POUT, 2048 * 1280)
    a("s_mul_i32 s36, s28, 2816")
    a(f"s_add_u32 s36, s36, {7*20480}")
    a("v_and_b32 v2, 15, v0")
    a("v_lshrrev_b32 v3, 4, v0")
    a("v_mul_u32_u24 v2, 176, v2")
    a("v_add_u32 v2, s36, v2")
    a("v_lshl_add_u32 v10, v3, 5, v2")
    a("v_lshl_add_u32 v11, v3, 3, v2")
    for i in range(3):
        a(f"v_add_u32 v2, {64*i}, v0")
        a("v_mul_u32_u24 v3, 52429, v2")
        a("v_lshrrev_b32 v3, 19, v3")
        a("v_mul_u32_u24 v4, 10, v3")
        a("v_sub_u32 v2, v2, v4")
        a("v_lshlrev_b32 v2, 4, v2")
        a("v_mul_u32_u24 v4, 176, v3")
        a(f"v_add3_u32 v{12+i}, v4, v2, s36")
        a("v_mul_u32_u24 v4, 1280, v3")
        a(f"v_add_u32 v{16+i}, v4, v2")
    vq = []
    def gload(i):
        if i < 24:
            r = [[f"buffer_load_dwordx4 {vr(AR+8*(i%NA)+4*h,4)}, v1, s[20:23], s{34+h} offen offset:{2048*(i&1)} sc1"] for h in range(2)]
        else:
            r = [[f"buffer_load_dwordx2 {vr(AR+8*(i%NA)+4*h+2*e,2)}, v20, s[20:23], s{34+h} offen offset:{2048*(i&1)+512*e} sc1" for e in range(2)] for h in range(2)]
        vq.extend([i] * (len(r[0]) * 2))
        if i & 1: r[1] += ["s_add_u32 s34, s34, 4096", "s_add_u32 s35, s35, 4096"]
        return r
    def w2reads(i):
        sl = (i >> 1) % 8
        F = WF + 20 * (i % 3)
        return [f"ds_read_b128 {vr(F+4*tt,4)}, v{5+sl//3} offset:{(sl%3)*20480+(i&1)*10240+1024*tt}" for tt in range(5)]
    a(f"s_add_u32 s58, s58, {FR}")
    ssignal(a, 58)
    a("s_barrier")
    stamp(a, 16)
    N0 = CFG["n5"]
    for i in range(N0):
        for x in sum(gload(i), []): a(x)
    for r in w2reads(0) + w2reads(1): a(r)
    for i in range(27):
        F = WF + 20 * (i % 3)
        if i == 14: stamp(a, 26)
        if i + 2 < 27 and (i & 1) == 0: a("s_barrier")
        if i in (4, 14, 20): stamp(a, {4: 25, 14: 27, 20: 28}[i])
        a(f"s_waitcnt vmcnt({sum(1 for x in vq if x > i)}) lgkmcnt({5 if i < 26 else 0})")
        rd = w2reads(i + 2) if i < 25 else []
        gl = gload(i + N0) if i + N0 < 27 else []
        for h in (1, 0):
            for tt in range(5):
                d = vr((RES if h == 0 else OTH) + 4 * tt, 4)
                c = "0" if (h == 1 and i == 0) else d
                a(f"v_mfma_f32_16x16x32_bf16 {d}, {vr(F+4*tt,4)}, {vr(AR+8*(i%NA)+4*h,4)}, {c}")
                if h == 1 and rd: a(rd[tt])
                if h == 0 and gl and tt in (0, 2):
                    for x in gl[tt // 2]: a(x)
    stamp(a, 17)
    a("s_nop 2")
    for tt in range(5): a(f"ds_write_b128 v8, {vr(OTH+4*tt,4)} offset:{1024*tt}")
    a("s_waitcnt lgkmcnt(0)")
    a("s_barrier")
    for tt in range(5): a(f"ds_read_b128 {vr(OTH+4*tt,4)}, v9 offset:{1024*tt}")
    for tt in range(5):
        a(f"s_waitcnt lgkmcnt({4-tt})")
        for j in (0, 2): a(f"v_pk_add_f32 {vr(RES+4*tt+j,2)}, {vr(RES+4*tt+j,2)}, {vr(OTH+4*tt+j,2)}")
    for i in range(10):
        a(f"v_cvt_pk_bf16_f32 v{RS+i}, v{RES+2*i}, v{RES+2*i+1}")
        if i == 3: a(f"ds_write_b128 v10, {vr(RS,4)}")
        if i == 7: a(f"ds_write_b128 v10, {vr(RS+4,4)} offset:16")
    a(f"ds_write_b64 v11, {vr(RS+8,2)} offset:128")
    a("s_waitcnt lgkmcnt(0)")
    for i in range(3): a(f"ds_read_b128 {vr(RS+12+4*i,4)}, v{12+i}")
    for i in range(3):
        a(f"s_waitcnt lgkmcnt({2-i})")
        if i == 2: a("s_mov_b32 exec_hi, 0")
        a(f"buffer_store_dwordx4 {vr(RS+12+4*i,4)}, v{16+i}, s[16:19], s59 offen{' sc1' if CFG['so'] else ''}")
    finish(a, True)

    a.label("Lfallback")
    C = 188
    a("s_mov_b64 s[46:47], 0")
    a(f"v_subrev_u32 v{AK}, {4*40960}, v{AK}")
    a(f"v_subrev_u32 v22, {4*40960}, v22")
    a(f"v_subrev_u32 v{AV}, {4*40960}, v{AV}")
    a(f"v_add_u32 v{T+8}, 5120, v{AV}")
    a(f"v_add_u32 v{T+9}, {5120+2560}, v{AV}")
    a(f"v_add_u32 v22, 4096, v22")
    for ps in range(2):
        a(f"s_mul_i32 s42, s29, {UNIT}")
        a(f"s_add_u32 s42, s42, {32*UNIT}")
        a("s_mov_b32 s43, 16")
        if ps == 0:
            a(f"v_mov_b32 v{T+6}, 0xff800000")
            a(f"v_mov_b32 v{T+7}, 0xff800000")
        else:
            for i in range(32): a(f"v_mov_b32 v{O[0]+i}, 0")
        a.label(f"Lfb{ps}")
        for t in range(4):
            a(f"buffer_load_dwordx4 {vr(KA[0]+4*t,4)}, v{AK}, s[20:23], s42 offen offset:{512*t} sc1")
        a(f"buffer_load_dwordx4 {vr(KB[0],4)}, v22, s[20:23], s42 offen sc1")
        if ps:
            a("s_mov_b64 exec, s[40:41]")
            for j in range(8):
                a(f"buffer_load_dwordx4 {vr(V[0]+4*j,4)}, v{T+8+(j>>2)}, s[20:23], s42 offen offset:{640*(j&3)} sc1")
            a("s_mov_b64 exec, -1")
        a("s_waitcnt vmcnt(0)")
        for q in range(2):
            for t in range(4):
                d = vr(S[t], 16)
                a(f"v_mfma_f32_32x32x16_bf16 {d}, {vr(KA[0]+4*t,4)}, {vr(QA[q],4)}, {vr(C+16*q,16) if ps else '0'}")
                a(f"v_mfma_f32_32x32x8_bf16 {d}, {vr(KB[0]+2*(t&1),2)}, {vr((QBB if t&2 else QBA)[q],2)}, {d}")
            a("s_nop 15")
            if ps == 0:
                for i in range(32):
                    a(f"v_max3_f32 v{T+6+q}, v{T+6+q}, v{S[0]+2*i}, v{S[0]+2*i+1}")
            else:
                for i in range(64): a(f"v_exp_f32 v{S[0]+i}, v{S[0]+i}")
                a("s_nop 1")
                for j in range(8):
                    a(f"v_smfmac_f32_32x32x32_bf16 {vr(O[q],16)}, {vr(V[0]+4*j,4)}, {vr(S[0]+8*j,8)}, v{IDX}")
        a("s_add_u32 s42, s42, 10240")
        a("s_sub_u32 s43, s43, 1")
        a("s_cmp_lg_u32 s43, 0")
        a(f"s_cbranch_scc1 Lfb{ps}")
        if ps == 0:
            for q in range(2):
                a(f"v_mov_b32 v{T+2}, v{T+6+q}")
                a("s_nop 1")
                a(f"v_permlane32_swap_b32 v{T+6+q}, v{T+2}")
                a(f"v_max_f32 v{T+6+q}, v{T+6+q}, v{T+2}")
                for i in range(16):
                    a(f"v_sub_f32 v{C+16*q+i}, 0, v{T+6+q}")
    a("s_nop 15")
    a("s_branch Lchk")

def build():
    a = Asm()
    a(f".globl {KN}")
    a(".p2align 8")
    a(f".type {KN},@function")
    a.label(KN)
    a("s_cmp_ge_u32 s2, 256")
    a("s_cbranch_scc1 Lend")
    a("s_load_dwordx16 s[64:79], s[0:1], 0")
    a("s_load_dwordx4 s[80:83], s[0:1], 64")
    a("s_load_dwordx2 s[84:85], s[0:1], 80")
    a("v_lshrrev_b32 v1, 6, v0")
    a("v_and_b32 v0, 63, v0")
    a("s_getreg_b32 s60, hwreg(HW_REG_XCC_ID, 0, 4)")
    a("v_readfirstlane_b32 s3, v1")
    a(f"v_mov_b32 v201, {IDS}")
    if CFG["db"] >= 0:
        a("s_mov_b32 s96, 0")
        a("s_mov_b32 s98, 0")
    if CFG["prof"]:
        a("v_mov_b32 v255, 0")
    stamp(a, 0)
    if CFG["cp0"]:
        CFG["_hi"][KN] = -1
        a("s_cmp_lg_u32 s3, 7")
        a("s_cbranch_scc1 Lnocp")
        code_prefetch(a, KN, CFG["cp0"], 204)
        a.label("Lnocp")
    a("s_and_b32 s28, s3, 3")
    a("s_cmp_lg_u32 s3, 0")
    a("s_waitcnt lgkmcnt(0)")
    a("s_cbranch_scc1 Lnoask")
    ticket_ask(a)
    a.label("Lnoask")
    srd(a, 20, PWS, WS_SIZE)
    a("s_cmp_lt_u32 s3, 4")
    a("s_cbranch_scc1 Lc1")
    p1_helper(a)
    a("s_branch Lh2")
    a.label("Lc1")
    CFG["_c"] = 1
    p1_compute(a)
    compute_rest(a)
    CFG["_c"] = 0
    helper_rest(a)
    a.label("Lend")
    a("s_endpgm")
    p1_spare(a)
    a.label("Lcode_end")
    errs = check(a.lines)
    for e in errs: print(e, file=sys.stderr)
    head = open(f"cdna_kernels/{NAME}.s.ref").read().split("; Override")[0]
    head += "; @launch grid=(256,1,1) block=(512,1,1) lds=163840\n"
    d = f""".section .rodata,"a"
.p2align 6
.amdhsa_kernel {KN}
  .amdhsa_next_free_vgpr 256
  .amdhsa_next_free_sgpr 102
  .amdhsa_accum_offset 256
  .amdhsa_group_segment_fixed_size 0
  .amdhsa_kernarg_size 88
  .amdhsa_user_sgpr_count 2
  .amdhsa_user_sgpr_kernarg_segment_ptr 1
  .amdhsa_system_sgpr_workgroup_id_x 1
.end_amdhsa_kernel
"""
    return head + '.amdgcn_target "amdgcn-amd-amdhsa--gfx950"\n.text\n' + a.text() + d, errs

if __name__ == "__main__":
    out = sys.argv[1] if len(sys.argv) > 1 else f"cdna_kernels/{NAME}.s"
    for kv in sys.argv[2:]:
        k, v = kv.split("=")
        if k == "light": LIGHT.extend(int(x) for x in v.split(","))
        else: CFG[k] = int(v)
    txt, errs = build()
    open(out, "w").write(txt)
    print("written", out, len(txt), "bytes; hazards:", len(errs))
```

```python
import sys, math, struct
from asmlib import Asm, vr, sr, check

NAME = "sequential_preLN__softmax_full_mha__dense_activation_gelu__prompt"
KN = NAME + "_kernel"
UNIT = 163840
OFF_O = 64 * UNIT
OFF_H = OFF_O + 2621440
OFF_G = OFF_H + 2621440
OFF_WO = OFF_G + 128 * 54 * 1024
OFF_W2 = OFF_WO + 640 * 1280
OFF_W1 = OFF_W2 + 1728 * 1280
W1T = 143360
OFF_ST = OFF_W1 + 16 * W1T
OFF_CO = OFF_ST + 2048 * 64
OFF_TS = OFF_CO + 16384
OFF_CP = OFF_TS + 32768
OFF_F = OFF_CP + 16 * 7680
F2H, F0 = [OFF_F + 32768 * i for i in range(2)]
FR = 131072
F1, F2, F3, F4 = [OFF_F + 65536 + FR * i for i in range(4)]
WS_END = F4 + 3 * FR
WS_SIZE = WS_END + 65536
OFF_PROF = 64 << 20
PX, PWQKV, PWO, PW1, PB1, PW2, PB2, POUT, PDBG, PWS = 64, 66, 68, 72, 74, 76, 78, 80, 82, 84
SPIN = 200000

CFG = dict(rot1=0, prof=0, n01=20, prio=1, pf=1, thr=8, cpf=1, ps=6, sl1=0, fpl=1, ru=28, xpf=0, n5=6, ls=128, sl4=2, pt=1, cp0=2, x1=0, l2a=1, pp4=0, pg4=3, ppq=0, sg1=1, pfl=0, qv=1, sv=0, pw=0, k0=40, k1=1, q1=2, cu=29, x2=0, w16=0, d2=0, e2=0, d3=0, e3=4, pt1=1, w64=0, wsl=0, hp5=0, hp3=0, hp4=0, pre=16, fr=7, ss0=1, sp0=3, x4=0, pd4=10, wg4=2, hp=3, so=0, da=0, db=-1, sg=6, _hi={})

def f32(x):
    return "0x%08x" % struct.unpack("<I", struct.pack("<f", x))[0]

def srd(a, d, p, size, off=0):
    if off:
        a(f"s_add_u32 s{d}, s{p}, {off}")
        a(f"s_addc_u32 s{d+1}, s{p+1}, 0")
    else:
        a(f"s_mov_b32 s{d}, s{p}")
        a(f"s_mov_b32 s{d+1}, s{p+1}")
    a(f"s_mov_b32 s{d+2}, {size}")
    a(f"s_mov_b32 s{d+3}, 0x20000")

LREG = [96, 98, 94, 92, 90, 88]
LIGHT = []
def stamp(a, i):
    if LIGHT:
        if i in LIGHT and CFG.get("_c"):
            r = LREG[LIGHT.index(i)]
            a(f"s_memtime s[{r}:{r+1}]")
        return
    if CFG["db"] >= 0:
        if i == CFG["da"]: a("s_memrealtime s[96:97]")
        if i == CFG["db"]: a("s_memrealtime s[98:99]")
    if CFG["prof"]:
        a("s_memrealtime s[96:97]")
        a("s_memtime s[98:99]")
        a("s_waitcnt lgkmcnt(0)")
        a(f"v_writelane_b32 v255, s96, {i}")
        a(f"v_writelane_b32 v255, s98, {32+i}")

def finish(a, c=False):
    if LIGHT:
        if c:
            a("s_waitcnt vmcnt(0)")
            stamp(a, 31)
            a("s_waitcnt lgkmcnt(0)")
            a("s_mov_b64 exec, -1")
            for k, r in enumerate(LREG[:len(LIGHT)]): a(f"v_writelane_b32 v255, s{r}, {k}")
            srd(a, 24, PWS, "0x8000000")
            a("s_lshl_b32 s33, s2, 3")
            a("s_add_u32 s33, s33, s3")
            a("s_lshl_b32 s33, s33, 8")
            a(f"s_add_u32 s33, s33, {OFF_PROF}")
            a("v_lshlrev_b32 v254, 2, v0")
            a("buffer_store_dword v255, v254, s[24:27], s33 offen")
        a("s_endpgm")
        return
    if CFG["db"] >= 0 and c:
        if CFG["db"] == 31:
            a("s_waitcnt vmcnt(0)")
            stamp(a, 31)
        a("s_memrealtime s[92:93]")
        a("s_waitcnt lgkmcnt(0)")
        a("s_sub_u32 s98, s98, s96")
        a("s_cmp_gt_u32 s98, 5000")
        a("s_cselect_b32 s98, 0, s98")
        a("s_lshl_b32 s98, s98, 2")
        a.label("Ldiag")
        a("s_memrealtime s[94:95]")
        a("s_waitcnt lgkmcnt(0)")
        a("s_sub_u32 s94, s94, s92")
        a("s_cmp_lt_u32 s94, s98")
        a("s_cbranch_scc1 Ldiag")
    if CFG["prof"]:
        a("s_waitcnt vmcnt(0)")
        stamp(a, 31)
        a("s_mov_b64 exec, -1")
        srd(a, 92, PWS, "0x8000000")
        a("s_lshl_b32 s96, s2, 3")
        a("s_add_u32 s96, s96, s3")
        a("s_lshl_b32 s96, s96, 8")
        a(f"s_add_u32 s96, s96, {OFF_PROF}")
        a("v_lshlrev_b32 v254, 2, v0")
        a("buffer_store_dword v255, v254, s[92:95], s96 offen")
        if CFG["prof"] > 1:
            a("s_add_u32 s96, s96, 0x80000")
            a(f"buffer_store_dword v{230 if c else 253}, v254, s[92:95], s96 offen")
    a("s_endpgm")

def bf16_round(a, dst, src):
    a(f"v_cvt_pk_bf16_f32 v{dst}, v{src}, v{src}")
    a(f"v_lshlrev_b32 v{dst}, 16, v{dst}")

_uid = [0]
def uid(p):
    _uid[0] += 1
    return f"U{p}{_uid[0]}"

def signal(a, sflag, vt, st=None):
    a(f"v_mov_b32 v{vt}, s100")
    a(f"v_lshlrev_b32 v{vt+1}, 2, s28")
    if st is not None: stamp(a, st)
    a("s_waitcnt vmcnt(0)")
    a("s_mov_b64 exec, 1")
    a(f"buffer_store_dword v{vt}, v{vt+1}, s[20:23], s{sflag} offen sc1")
    a("s_mov_b64 exec, -1")

def ssignal(a, sflag, st=None, n=0):
    if st is not None: stamp(a, st)
    a(f"s_waitcnt vmcnt({n})")
    a(f"s_atomic_swap s100, s[{PWS}:{PWS+1}], s{sflag}")

def PF():
    return ["sc1", "sc0 sc1", "sc1 nt", "sc0 sc1 nt"][CFG["pfl"]]

def vsignal(a, sflag, n):
    a(f"s_waitcnt vmcnt({n})")
    a("s_mov_b64 exec, 1")
    a(f"buffer_store_dword v30, v31, s[20:23], s{sflag} offen sc1")
    a("s_mov_b64 exec, -1")

def poll(a, va, nl, width=1, vd=4, sleep=0):
    L, E = uid("p"), uid("e")
    a(f"s_mov_b32 s60, {SPIN}")
    m = (1 << nl) - 1
    if nl < 64:
        a(f"s_mov_b32 exec_lo, {hex(m & 0xffffffff)}")
        a(f"s_mov_b32 exec_hi, {hex(m >> 32)}")
    a.label(L)
    if sleep: a(f"s_sleep {sleep}")
    op = {1: "dword", 2: "dwordx2", 4: "dwordx4"}[width]
    a(f"buffer_load_{op} {vr(vd,width)}, v{va}, s[20:23], 0 offen {PF()}")
    a("s_sub_u32 s60, s60, 1")
    a(f"s_cbranch_scc1 {E}")
    a("s_waitcnt vmcnt(0)")
    tagcheck(a, vd, width)
    a(f"s_cbranch_scc1 {L}")
    a.label(E)
    a("s_waitcnt vmcnt(0)")
    a("s_mov_b64 exec, -1")

def ppoll(a, va, nl, vd, depth, gap):
    L, E = uid("p"), uid("e")
    a(f"s_mov_b32 s60, {SPIN}")
    m = (1 << nl) - 1
    if nl < 64:
        a(f"s_mov_b32 exec_lo, {hex(m & 0xffffffff)}")
        a(f"s_mov_b32 exec_hi, {hex(m >> 32)}")
    for i in range(depth - 1):
        a(f"buffer_load_dword v{vd+i}, v{va}, s[20:23], 0 offen sc1")
        a(f"s_sleep {gap}")
    a.label(L)
    for i in range(depth):
        a(f"buffer_load_dword v{vd+(i+depth-1)%depth}, v{va}, s[20:23], 0 offen sc1")
        a(f"s_waitcnt vmcnt({depth-1})")
        a(f"v_cmp_ne_u32 vcc, s100, v{vd+i}")
        a("s_nop 1")
        a("s_cmp_eq_u64 vcc, 0")
        a(f"s_cbranch_scc1 {E}")
    a("s_sub_u32 s60, s60, 1")
    a(f"s_cbranch_scc0 {L}")
    a.label(E)
    a("s_mov_b64 exec, -1")

def tagcheck(a, vd, width):
    for i in range(width):
        a(f"v_xor_b32 v{vd+i}, s100, v{vd+i}")
    if width == 2: a(f"v_or_b32 v{vd}, v{vd}, v{vd+1}")
    if width == 4:
        a(f"v_or3_b32 v{vd}, v{vd}, v{vd+1}, v{vd+2}")
        a(f"v_or_b32 v{vd}, v{vd}, v{vd+3}")
    a(f"v_cmp_ne_u32 vcc, 0, v{vd}")
    a("s_nop 1")
    a("s_cmp_lg_u64 vcc, 0")

def spoll(a, soff, counts, pre=0, sleep=0):
    L, E = uid("p"), uid("e")
    regs = [4, 40, 48, 12]
    a(f"s_add_u32 s86, s{PWS}, s{soff}")
    a(f"s_addc_u32 s87, s{PWS+1}, 0")
    a(f"s_mov_b32 s60, {SPIN}")
    if pre: a(f"s_sleep {pre}")
    a.label(L)
    if sleep: a(f"s_sleep {sleep}")
    if counts[0] == 16:
        regs = [40, 4]
        for i in range(len(counts)):
            a(f"s_load_dwordx16 s[{regs[i]}:{regs[i]+15}], s[86:87], {CFG['ls']*i} glc")
    for i in range(len(counts) if counts[0] < 16 else 0):
        a(f"s_load_dwordx8 s[{regs[i]}:{regs[i]+7}], s[86:87], {CFG['ls']*i} glc")
    a("s_sub_u32 s60, s60, 1")
    a(f"s_cbranch_scc1 {E}")
    a("s_waitcnt lgkmcnt(0)")
    for i, n in enumerate(counts):
        for j in range(0, n, 2):
            a(f"s_cmp_lg_u64 s[{regs[i]+j}:{regs[i]+j+1}], s[100:101]")
            a(f"s_cbranch_scc1 {L}")
    a.label(E)
    a("s_waitcnt lgkmcnt(0)")

def tag_load(a):
    srd(a, 24, PDBG, 256)
    a("v_mov_b32 v205, 0")
    a("buffer_load_dword v204, v205, s[24:27], 0 offen sc1")

def tag_take(a):
    L, E = uid("z"), uid("z")
    a(f"s_mov_b32 s60, {SPIN}")
    a.label(L)
    a("v_readfirstlane_b32 s100, v204")
    a("s_nop 0")
    a("s_cmp_lg_u32 s100, 0")
    a(f"s_cbranch_scc1 {E}")
    a("buffer_load_dword v204, v205, s[24:27], 0 offen sc1")
    a("s_waitcnt vmcnt(0)")
    a("s_sub_u32 s60, s60, 1")
    a(f"s_cbranch_scc0 {L}")
    a.label(E)
    a("s_mov_b32 s101, s100")

def only_h0(a, body):
    L = uid("h")
    a("s_cmp_lg_u32 s28, 0")
    a(f"s_cbranch_scc1 {L}")
    body()
    a.label(L)

def relayout_task(a):
    a("s_and_b32 s34, s54, 7")
    a("s_lshr_b32 s35, s54, 3")
    a("s_mul_i32 s49, s35, 21846")
    a("s_lshr_b32 s49, s49, 16")
    a("s_mul_i32 s48, s49, 3")
    a("s_sub_u32 s48, s35, s48")
    a("s_lshl_b32 s48, s48, 4")
    a("s_add_u32 s48, s48, s49")
    a("s_cmp_ge_u32 s35, 48")
    a("s_cselect_b32 s48, s35, s48")
    a("s_sub_u32 s36, s35, 54")
    a("s_cselect_b32 s48, s48, s36")
    a(f"s_cselect_b32 s12, s{PW2}, s{PWO}")
    a(f"s_cselect_b32 s13, s{PW2+1}, s{PWO+1}")
    a(f"s_mov_b32 s14, {640*1280}")
    a(f"s_cselect_b32 s14, {1728*1280}, s14")
    a("s_mov_b32 s15, 0x20000")
    a("s_cselect_b32 s35, s35, s36")
    a("s_cselect_b32 s37, 54, 20")
    a(f"s_mov_b32 s56, {OFF_WO}")
    a(f"s_cselect_b32 s56, {OFF_W2}, s56")
    a("s_cselect_b32 s44, 8, 20")
    a("s_cselect_b32 s47, 16, 8")
    a("s_cselect_b32 s45, 32, 40")
    a("s_mul_i32 s37, s37, s34")
    a("s_add_u32 s37, s37, s48")
    a("s_mul_i32 s37, s37, 5120")
    a("s_add_u32 s56, s56, s37")
    a("s_cmp_ge_u32 s54, 560")
    a("s_cselect_b32 s44, 80, s44")
    a("s_cselect_b32 s45, 160, s45")
    a("s_cselect_b32 s46, 20, 4")
    a("s_cselect_b32 s47, 40, s47")
    a("s_cselect_b32 s36, -2544, 0")
    a("s_mul_i32 s50, s35, s45")
    a("s_add_u32 s50, s50, s36")
    a("s_add_u32 s51, s50, s47")
    a("s_mul_i32 s50, s50, 1280")
    a("s_mul_i32 s51, s51, 1280")
    a("s_mul_i32 s34, s34, 160")
    a("s_add_u32 s50, s50, s34")
    a("s_add_u32 s51, s51, s34")
    a("v_lshrrev_b32 v2, 5, v0")
    a("v_mul_u32_u24 v2, s44, v2")
    a("v_bfe_u32 v3, v0, 4, 1")
    a("v_mul_u32_u24 v3, s46, v3")
    a("v_add_u32 v2, v2, v3")
    a("v_mul_u32_u24 v2, 1280, v2")
    a("v_and_b32 v3, 15, v0")
    a("v_lshl_add_u32 v9, v3, 1, v2")
    a("v_bfe_u32 v3, v0, 2, 2")
    a("v_mul_u32_u24 v3, 24, v3")
    a("v_add_u32 v8, v9, v3")

def cbar(a):
    a(f"s_waitcnt vmcnt({CFG['pre'] + 1})")
    stamp(a, 9)
    a("s_barrier")

def relayout_w1(a):
    R = 32
    a("s_sub_u32 s34, s54, 592")
    a("s_min_u32 s34, s34, 359")
    a("s_mul_i32 s35, s34, 3277")
    a("s_lshr_b32 s35, s35, 16")
    a("s_mul_i32 s36, s35, 20")
    a("s_sub_u32 s34, s34, s36")
    a(f"s_mul_i32 s50, s34, {32*3456}")
    a("s_mul_i32 s36, s35, 192")
    a("s_add_u32 s50, s50, s36")
    for i in range(1, 4): a(f"s_add_u32 s{50+i}, s50, {2*3456*i}")
    a(f"s_mul_i32 s56, s35, {W1T}")
    a("s_sub_u32 s36, s35, 16")
    a(f"s_mul_i32 s36, s36, {6*W1T}")
    a("s_add_u32 s36, s36, 6144")
    a("s_cmp_lt_u32 s35, 16")
    a("s_cselect_b32 s56, s56, s36")
    a(f"s_mov_b32 s37, {W1T}")
    a("s_cselect_b32 s37, 1024, s37")
    a("s_mul_i32 s34, s34, 7168")
    a("s_add_u32 s56, s56, s34")
    a(f"s_add_u32 s56, s56, {OFF_W1}")
    a("v_lshrrev_b32 v2, 4, v0")
    a(f"v_mul_u32_u24 v2, {8*3456}, v2")
    a("v_and_b32 v3, 15, v0")
    a("v_lshl_add_u32 v8, v3, 1, v2")
    a("s_cmp_ge_u32 s54, 952")
    a("s_cbranch_scc0 Lrw1")
    a("s_waitcnt vmcnt(0)")
    a("s_barrier")
    a("s_branch Lh2a")
    a.label("Lrw1")
    for i in range(6):
        for e in range(8):
            op = "buffer_load_short_d16_hi" if e & 1 else "buffer_load_ushort"
            if 8 * i + e == CFG["pre"]: cbar(a)
            a(f"{op} v{R+8*i+4*(e&1)+(e>>1)}, v8, s[16:19], s{50+(e>>1)} offen offset:{3456*(e&1)+32*i}")
    a("s_mov_b32 s33, 0xffff0000")
    for i in range(6):
        a(f"s_waitcnt vmcnt({40-7*i})")
        for p in range(4):
            a(f"v_and_or_b32 v{R+8*i+p}, v{R+8*i+4+p}, s33, v{R+8*i+p}")
        a(f"buffer_store_dwordx4 {vr(R+8*i,4)}, v1, s[20:23], s56 offen sc1")
        a("s_add_u32 s56, s56, s37")

def relayout_load(a):
    R = 32
    for tt in range(5):
        for e in range(8):
            op = "buffer_load_short_d16_hi" if e & 1 else "buffer_load_ushort"
            va, o = (8, 8 * tt) if tt < 4 else (9, 128)
            if 8 * tt + e == CFG["pre"]: cbar(a)
            a(f"{op} v{R+8*tt+4*(e&1)+(e>>1)}, v{va}, s[12:15], s{50+(e>>2)} offen offset:{1280*(e&3)+o}")

def relayout_store(a):
    R = 32
    a("v_add_u32 v2, 4096, v1")
    a("s_mov_b32 s33, 0xffff0000")
    for tt in range(5):
        a(f"s_waitcnt vmcnt({32-7*tt})")
        for p in range(4):
            a(f"v_and_or_b32 v{R+8*tt+p}, v{R+8*tt+4+p}, s33, v{R+8*tt+p}")
        if tt < 4: a(f"buffer_store_dwordx4 {vr(R+8*tt,4)}, v1, s[20:23], s56 offen offset:{1024*tt} sc1")
        else: a(f"buffer_store_dwordx4 {vr(R+8*tt,4)}, v2, s[20:23], s56 offen sc1")

STAT = 131072
IDS = STAT + 3072

def ticket(a):
    L, E, X = uid("t"), uid("t"), uid("t")
    a("s_cmp_lg_u32 s3, 0")
    a(f"s_cbranch_scc1 {X}")
    a("s_mov_b32 s61, 7")
    a.label(L)
    a("s_waitcnt lgkmcnt(0)")
    a("s_cmp_lt_u32 s57, 32")
    a(f"s_cbranch_scc1 {E}")
    a("s_sub_u32 s61, s61, 1")
    a(f"s_cbranch_scc1 {E}")
    a("s_add_u32 s60, s60, 1")
    ticket_ask(a)
    a(f"s_branch {L}")
    a.label(E)
    a("s_and_b32 s57, s57, 31")
    a("s_lshl_b32 s57, s57, 3")
    a("s_add_u32 s57, s57, s60")
    a("v_mov_b32 v200, s57")
    a("ds_write_b32 v201, v200")
    a("s_waitcnt lgkmcnt(0)")
    a.label(X)
    a("s_barrier")
    a("ds_read_b32 v200, v201")
    a("s_waitcnt lgkmcnt(0)")
    a("v_readfirstlane_b32 s32, v200")
    a("s_nop 0")
    if CFG["prof"]:
        a("s_nop 2")
        a("v_writelane_b32 v255, s32, 36")
    a("s_and_b32 s31, s32, 7")
    a("s_lshr_b32 s32, s32, 3")
    a("s_and_b32 s33, s31, 1")
    a("s_mul_i32 s33, s33, 30")
    a("s_add_u32 s33, s33, s32")
    a("s_lshr_b32 s30, s33, 2")
    a("s_and_b32 s33, s33, 3")
    a("s_lshr_b32 s29, s31, 1")
    a("s_lshl_b32 s29, s29, 2")
    a("s_add_u32 s29, s29, s33")

def ticket_ask(a):
    a("s_and_b32 s60, s60, 7")
    a("s_lshl_b32 s57, s60, 5")
    a(f"s_add_u32 s86, s{PDBG}, s57")
    a(f"s_addc_u32 s87, s{PDBG+1}, 0")
    a("s_mov_b32 s57, 1")
    a("s_atomic_add s57, s[86:87], 16 glc")

def stats_issue(a):
    a("s_cmp_ge_u32 s3, 2")
    a("s_cbranch_scc1 Lst_w")
    srd(a, 12, PX, 2048 * 1280)
    a("v_lshrrev_b32 v228, 4, v0")
    a("v_and_b32 v229, 15, v0")
    a("v_mul_u32_u24 v230, 1280, v228")
    a("v_lshl_add_u32 v230, v229, 4, v230")
    a("s_lshl_b32 s33, s2, 1")
    a("s_add_u32 s33, s33, s3")
    a("s_mul_i32 s34, s33, 5120")
    for i in range(5):
        a(f"buffer_load_dwordx4 {vr(208+4*i,4)}, v230, s[12:15], s34 offen offset:{256*i}")
    a("s_branch Lst_i")
    a.label("Lst_w")
    srd(a, 12, PWQKV, 640 * 3840)
    a("v_lshrrev_b32 v228, 3, v0")
    a("v_and_b32 v229, 7, v0")
    a("v_mul_u32_u24 v230, 3840, v228")
    a("v_lshl_add_u32 v230, v229, 4, v230")
    a("s_and_b32 s33, s2, 7")
    a("s_lshl_b32 s33, s33, 1")
    a("s_add_u32 s33, s33, s3")
    a("s_sub_u32 s33, s33, 2")
    a(f"s_mul_i32 s34, s33, {40*3840}")
    a("s_lshr_b32 s35, s2, 3")
    a("s_min_u32 s35, s35, 29")
    a("s_lshl_b32 s36, s35, 7")
    a("s_add_u32 s34, s34, s36")
    for i in range(5):
        a(f"buffer_load_dwordx4 {vr(208+4*i,4)}, v230, s[12:15], s34 offen")
        a(f"s_add_u32 s34, s34, {8*3840}")
    a.label("Lst_i")
    a("s_mov_b32 s52, s33")
    a("s_mov_b32 s53, s35")

def stats_finish(a):
    W_, E_ = uid("w"), uid("w")
    a("s_cmp_ge_u32 s3, 2")
    a(f"s_cbranch_scc1 {W_}")
    a("v_mov_b32 v234, 0x3f803f80")
    for i in range(4): a(f"v_mov_b32 v{226+10+i}, 0")
    a("s_waitcnt vmcnt(0)")
    for i in range(20):
        a(f"v_dot2_f32_bf16 v{226+10+(i&1)}, v{208+i}, v234, v{226+10+(i&1)}")
        a(f"v_dot2_f32_bf16 v{226+12+(i&1)}, v{208+i}, v{208+i}, v{226+12+(i&1)}")
    a("s_nop 2")
    a("v_add_f32 v236, v236, v237")
    a("v_add_f32 v238, v238, v239")
    for r in (8, 4, 2, 1):
        a("s_nop 1")
        a(f"v_add_f32_dpp v236, v236, v236 row_ror:{r} row_mask:0xf bank_mask:0xf")
        a(f"v_add_f32_dpp v238, v238, v238 row_ror:{r} row_mask:0xf bank_mask:0xf")
    ln_final(a, 236, 238, 244, 246)
    a("v_and_b32 v230, 48, v0")
    a("s_lshl_b32 s54, s52, 6")
    a(f"s_add_u32 s54, s54, {OFF_TS}")
    a("s_mov_b32 exec_lo, 0x00010001")
    a("s_mov_b32 exec_hi, 0x00010001")
    a("buffer_store_dwordx4 v[244:247], v230, s[20:23], s54 offen sc1")
    a("s_mov_b64 exec, -1")
    a(f"s_branch {E_}")
    a.label(W_)
    a("v_mov_b32 v234, 0x3f80")
    a("v_mov_b32 v235, 0x3f800000")
    for i in range(8): a(f"v_mov_b32 v{226+10+i}, 0")
    a("s_waitcnt vmcnt(0)")
    for i in range(5):
        for j in range(4):
            a(f"v_dot2_f32_bf16 v{226+10+2*j}, v{208+4*i+j}, v234, v{226+10+2*j}")
            a(f"v_dot2_f32_bf16 v{226+11+2*j}, v{208+4*i+j}, v235, v{226+11+2*j}")
    a("s_nop 2")
    for j in range(4): a(f"v_permlane32_swap_b32 v{226+10+j}, v{226+14+j}")
    for j in range(4): a(f"v_add_f32 v{226+10+j}, v{226+10+j}, v{226+14+j}")
    a("s_nop 0")
    for j in range(2): a(f"v_permlane16_swap_b32 v{226+10+j}, v{226+12+j}")
    for j in range(2): a(f"v_add_f32 v{226+10+j}, v{226+10+j}, v{226+12+j}")
    a("v_and_b32 v230, 7, v0")
    a("v_lshlrev_b32 v230, 5, v230")
    for j in range(2): a(f"v_add_f32_dpp v{226+10+j}, v{226+10+j}, v{226+10+j} row_ror:8 row_mask:0xf bank_mask:0xf")
    a("v_lshrrev_b32 v231, 4, v0")
    a("v_lshl_add_u32 v230, v231, 3, v230")
    a("s_mul_i32 s54, s52, 7680")
    a("s_lshl_b32 s55, s53, 8")
    a("s_add_u32 s54, s54, s55")
    a(f"s_add_u32 s54, s54, {OFF_CP}")
    a("buffer_store_dwordx2 v[236:237], v230, s[20:23], s54 offen sc1")
    a.label(E_)
    tag_load(a)

def stats_signal(a):
    a("s_waitcnt vmcnt(0)")
    tag_take(a)
    a("s_lshl_b32 s33, s2, 7")
    a(f"s_add_u32 s33, s33, {F0}")
    signal(a, 33, 202)

def code_prefetch(a, l0, n, v):
    P = uid("c")
    a("s_getpc_b64 s[90:91]")
    a.label(P)
    a(f"s_add_u32 s90, s90, {l0}-{P}")
    a(f"s_addc_u32 s91, s91, {CFG['_hi'].get(l0, 0)}")
    a(f"v_lshlrev_b32 v{v+3}, 7, v0")
    for i in range(n):
        a(f"v_min_u32 v{v}, Lcode_end-{l0}-4, v{v+3}")
        a(f"v_mov_b32 v{v+1}, s91")
        a(f"v_add_co_u32 v{v}, vcc, s90, v{v}")
        a(f"v_add_u32 v{v+3}, 8192, v{v+3}")
        a("s_nop 0")
        a(f"v_addc_co_u32 v{v+1}, vcc, 0, v{v+1}, vcc")
        a(f"global_load_dword v{v+2}, v[{v}:{v+1}], off")

def p1_spare(a):
    a.label("Lspare_h")
    tag_load(a)
    a("s_waitcnt vmcnt(0)")
    tag_take(a)
    a("s_branch Lspare")
    a.label("Lspare_c")
    stats_finish(a)
    stats_signal(a)
    a.label("Lspare")
    a("s_sub_u32 s29, s32, 30")
    a("s_lshl_b32 s29, s29, 3")
    a("s_add_u32 s29, s29, s31")
    a("s_cmp_ge_u32 s29, 14")
    a("s_cbranch_scc1 Lsp_done")
    srd(a, 12, PW1, 640 * 3456)
    srd(a, 16, PB1, 1728 * 2)
    a("v_lshrrev_b32 v2, 4, v0")
    a("v_and_b32 v3, 15, v0")
    a("v_mul_u32_u24 v2, 3456, v2")
    a("v_lshl_add_u32 v2, v3, 4, v2")
    a(f"s_mul_i32 s33, s3, {80*3456}")
    a("s_lshl_b32 s34, s29, 8")
    a("s_add_u32 s33, s33, s34")
    for i in range(20):
        a(f"buffer_load_dwordx4 {vr(96+4*i,4)}, v2, s[12:15], s33 offen")
        a(f"s_add_u32 s33, s33, {4*3456}")
    a("v_lshlrev_b32 v4, 1, v0")
    a("s_lshl_b32 s35, s3, 7")
    a("s_add_u32 s35, s35, s34")
    a("buffer_load_ushort v90, v4, s[16:19], s35 offen")
    a("v_mov_b32 v88, 0x3f80")
    a("v_mov_b32 v89, 0x3f800000")
    for i in range(8): a(f"v_mov_b32 v{80+i}, 0")
    for i in range(20):
        a(f"s_waitcnt vmcnt({20-i})")
        for j in range(4):
            a(f"v_dot2_f32_bf16 v{80+2*j}, v{96+4*i+j}, v88, v{80+2*j}")
            a(f"v_dot2_f32_bf16 v{81+2*j}, v{96+4*i+j}, v89, v{81+2*j}")
    a("v_lshlrev_b32 v4, 5, v0")
    a("s_lshl_b32 s33, s3, 11")
    a("v_add_u32 v4, s33, v4")
    a("s_nop 0")
    a("ds_write_b128 v4, v[80:83]")
    a("ds_write_b128 v4, v[84:87] offset:16")
    a("s_waitcnt lgkmcnt(0)")
    a("s_barrier")
    a("s_cmp_ge_u32 s3, 2")
    a("s_cbranch_scc1 Lsp_done")
    a("v_lshlrev_b32 v4, 2, v0")
    a("s_lshl_b32 s33, s3, 8")
    a("v_add_u32 v4, s33, v4")
    for h in range(4):
        for i in range(8): a(f"ds_read_b32 v{96+8*h+i}, v4 offset:{512*(8*h+i)}")
        a("s_waitcnt lgkmcnt(0)")
    for i in range(1, 32): a(f"v_add_f32 v96, v96, v{96+i}")
    bf16_round(a, 97, 96)
    a("v_sub_f32 v96, v96, v97")
    a("v_cvt_pk_bf16_f32 v92, v97, v96")
    a("s_waitcnt vmcnt(0)")
    a("v_mov_b32 v93, v90")
    a("v_lshlrev_b32 v4, 3, v0")
    a("s_lshl_b32 s35, s35, 2")
    a(f"s_add_u32 s35, s35, {OFF_CO}")
    a("buffer_store_dwordx2 v[92:93], v4, s[20:23], s35 offen sc1")
    a.label("Lsp_done")
    a("s_waitcnt vmcnt(0)")
    a("s_barrier")
    a("s_cmp_ge_u32 s3, 4")
    a("s_cbranch_scc1 Lh2")
    a("s_mov_b32 s30, 15")
    f1_addr(a, 30)
    a(f"s_add_u32 s58, s58, {F1}")
    a("s_branch Lc2")

def p1_helper(a):
    WS = 3840
    a("v_lshrrev_b32 v2, 3, v0")
    a("v_and_b32 v3, 7, v0")
    a("v_lshrrev_b32 v4, 4, v0")
    a("v_xor_b32 v3, v3, v4")
    a("v_mul_u32_u24 v2, 1280, v2")
    a("v_lshl_add_u32 v10, v3, 4, v2")
    a("v_xor_b32 v5, 64, v10")
    a(f"v_add_u32 v11, {10240-1024}, v5")
    a(f"v_add_u32 v12, {2*(10240-1024)}, v10")
    a(f"v_add_u32 v13, {3*(10240-1024)}, v5")
    a("v_and_b32 v3, 15, v0")
    a("v_lshlrev_b32 v5, 2, v4")
    a("v_xor_b32 v3, v3, v5")
    a(f"v_mul_u32_u24 v14, {WS}, v4")
    a("v_lshl_add_u32 v14, v3, 4, v14")
    for i in range(1, 4):
        a(f"v_add_u32 v{14+i}, {i*(4*WS-1024)}, v14")
    srd(a, 12, PX, 2048 * 1280)
    srd(a, 16, PWQKV, 640 * 3840)
    if CFG["xpf"]:
        a("s_getreg_b32 s33, hwreg(HW_REG_HW_ID, 8, 3)")
        a("s_getreg_b32 s34, hwreg(HW_REG_HW_ID, 13, 2)")
        a("s_lshl_b32 s34, s34, 3")
        a("s_add_u32 s33, s33, s34")
        a("s_lshl_b32 s33, s33, 2")
        a("s_add_u32 s33, s33, s28")
        a("s_mul_i32 s34, s33, 40")
        a("v_min_u32 v6, 39, v0")
        a("v_add_u32 v6, s34, v6")
        a("v_and_b32 v7, 511, v6")
        a("v_lshrrev_b32 v6, 9, v6")
        a("v_mul_u32_u24 v7, 1280, v7")
        a("v_lshl_add_u32 v6, v6, 7, v7")
        a("s_bfe_u32 s34, s60, 0x20001")
        a(f"s_mul_i32 s34, s34, {512*1280}")
        a(f"v_mul_u32_u24 v7, {WS}, v4")
        a("v_and_b32 v8, 15, v0")
        a("v_lshl_add_u32 v7, v8, 7, v7")
        a(f"s_mul_i32 s35, s33, {5*WS}")
        a("s_and_b32 s36, s60, 1")
        a("s_mul_i32 s36, s36, 1792")
        a("s_add_u32 s35, s35, s36")
        a(f"s_add_u32 s36, s35, {4*WS}")
        a("v_lshlrev_b32 v8, 7, v8")
        a("buffer_load_dword v9, v7, s[16:19], s35 offen")
        a("buffer_load_dword v9, v6, s[12:15], s34 offen")
        a("buffer_load_dword v9, v8, s[16:19], s36 offen")
    a("s_or_b32 s33, s2, s28")
    a("s_cbranch_scc1 Lh_nz")
    a("s_memrealtime s[34:35]")
    a("s_waitcnt lgkmcnt(0)")
    a("s_or_b32 s34, s34, 1")
    a(f"s_atomic_swap s34, s[{PDBG}:{PDBG+1}], 0")
    a.label("Lh_nz")
    if CFG["cpf"]:
        CFG["_hi"][KN] = -1
        a("s_getreg_b32 s33, hwreg(HW_REG_HW_ID, 9, 7)")
        a("s_lshl_b32 s33, s33, 2")
        a("s_add_u32 s33, s33, s28")
        a("s_cmp_lg_u32 s33, 7")
        a("s_cbranch_scc1 Lh_np")
        code_prefetch(a, "Lc1e", 5, 204) if CFG["cp0"] else code_prefetch(a, KN, 7, 204)
        a.label("Lh_np")
    ticket(a)
    a("s_cmp_ge_u32 s32, 30")
    a("s_cbranch_scc1 Lspare_h")
    a("s_mul_i32 s34, s29, 163840")
    a("s_mul_i32 s33, s28, 40960")
    a("s_add_u32 s34, s34, s33")
    a("s_lshl_b32 s35, s30, 8")
    a(f"s_mul_i32 s33, s28, {16*WS}")
    a("s_add_u32 s35, s35, s33")
    rot = CFG["rot1"]
    if rot:
        a("s_mul_i32 s38, s29, 3")
        a("s_add_u32 s38, s38, s30")
        a("s_mul_i32 s33, s38, 6554")
        a("s_lshr_b32 s33, s33, 16")
        a("s_mul_i32 s33, s33, 10")
        a("s_sub_u32 s38, s38, s33")
        a("s_lshl_b32 s36, s38, 7")
        a("s_add_u32 s36, s36, s34")
        a(f"s_mul_i32 s37, s38, {64*WS}")
        a("s_add_u32 s37, s37, s35")
    else:
        a("s_mov_b32 s36, s34")
        a("s_mov_b32 s37, s35")
    a("s_lshl_b32 s39, s28, 12")
    stream = []
    for s in range(10):
        slot = (s & 3) * 32768
        for i in range(4):
            g = [f"s_add_u32 m0, s39, {slot}", "s_nop 0"] if i == 0 else []
            g.append(f"buffer_load_dwordx4 v{10+i}, s[12:15], s36 offen offset:{1024*i} lds")
            stream.append(g)
        for i in range(4):
            g = [f"s_add_u32 m0, s39, {slot+16384}", "s_add_u32 s36, s36, 128"] if i == 0 else []
            g.append(f"buffer_load_dwordx4 v{14+i}, s[16:19], s37 offen offset:{1024*i} lds")
            if i == 3:
                g.append(f"s_add_u32 s37, s37, {64*WS}")
                if rot:
                    g += ["s_add_u32 s38, s38, 1", "s_cmp_eq_u32 s38, 10", "s_cselect_b32 s36, s34, s36", "s_cselect_b32 s37, s35, s37"]
            stream.append(g)
    issued = [0]; q = []
    def issue(n=1):
        for _ in range(n):
            if issued[0] < 80:
                for x in stream[issued[0]]: a(x)
                q.append(issued[0] // 8)
                issued[0] += 1
    def wait(tag):
        last = max(i for i, t in enumerate(q) if t == tag)
        a(f"s_waitcnt vmcnt({len(q) - 1 - last})")
    issue(CFG["n01"])
    srd(a, 24, PDBG, 256)
    a("v_mov_b32 v205, 0")
    a("v_and_b32 v2, 31, v0")
    a("v_lshrrev_b32 v3, 5, v0")
    a("s_lshl_b32 s33, s29, 2")
    a("s_add_u32 s33, s33, s28")
    a("s_lshl_b32 s40, s33, 2")
    a("s_lshl_b32 s41, s30, 1")
    a("s_lshr_b32 s42, s28, 1")
    a("s_add_u32 s41, s41, s42")
    a("s_lshl_b32 s41, s41, 3")
    a("s_sub_u32 s41, s41, 4")
    a("v_min_u32 v4, 11, v0")
    a("v_add_u32 v5, s40, v4")
    a("v_cmp_gt_u32 vcc, 4, v4")
    a("v_add_u32 v4, s41, v4")
    a("s_lshl_b32 s40, s33, 9")
    a("v_cndmask_b32 v4, v4, v5, vcc")
    a("v_cndmask_b32 v5, 8, v205, vcc")
    a("v_lshl_add_u32 v4, v4, 7, v5")
    a(f"v_add_u32 v20, {F0}, v4")
    a(f"s_add_u32 s40, s40, {OFF_TS}")
    a("v_lshlrev_b32 v21, 4, v2")
    a(f"v_mul_u32_u24 v22, {8*7680}, v3")
    a("v_lshl_add_u32 v22, v2, 2, v22")
    a("s_lshl_b32 s41, s30, 2")
    a("s_add_u32 s41, s41, s28")
    a("s_lshl_b32 s41, s41, 7")
    a(f"s_add_u32 s41, s41, {OFF_CP}")
    a("v_mov_b32 v45, 0")
    a("s_lshl_b32 s33, s28, 5")
    a("v_add_u32 v2, s33, v2")
    a("v_lshlrev_b32 v26, 3, v2")
    a(f"v_add_u32 v26, {STAT}, v26")
    a("v_lshlrev_b32 v27, 2, v2")
    a(f"v_add_u32 v27, {STAT+1024}, v27")
    PS = CFG["ps"]
    for s in range(10):
        wait(s)
        if CFG["prof"] > 1:
            a(f"s_memtime s[{4+0}:{5+0}]")
        a("s_barrier")
        if CFG["prof"] > 1:
            a("s_memtime s[6:7]")
            a("s_waitcnt lgkmcnt(0)")
            a(f"v_writelane_b32 v253, s4, {s}")
            a(f"v_writelane_b32 v253, s6, {16+s}")
        if s == PS:
            a("buffer_load_dword v204, v205, s[24:27], 0 offen sc1"); q.append("p")
            a("buffer_load_dwordx2 v[24:25], v20, s[20:23], 0 offen sc1"); q.append("p")
        if s == PS + 2:
            wait("p")
            tag_take(a)
            tagcheck(a, 24, 2)
            a("s_cbranch_scc0 Lh_ok")
            poll(a, 20, 64, 2)
            a.label("Lh_ok")
            a("buffer_load_dwordx4 v[40:43], v21, s[20:23], s40 offen sc1"); q.append("d")
            for i in range(8):
                a(f"buffer_load_dword v{48+i}, v22, s[20:23], s41 offen sc1"); q.append("d")
                a("s_add_u32 s41, s41, 7680")
        issue(8)
    a("s_setprio 3")
    a("s_waitcnt vmcnt(0)")
    for i in range(4): a(f"v_add_f32 v{48+i}, v{48+i}, v{52+i}")
    for i in range(2): a(f"v_add_f32 v{48+i}, v{48+i}, v{50+i}")
    a("v_add_f32 v36, v48, v49")
    a("v_mov_b32 v37, v36")
    a("s_nop 1")
    a("v_permlane32_swap_b32 v36, v37")
    a("v_add_f32 v36, v36, v37")
    bf16_round(a, 37, 36)
    a("v_sub_f32 v36, v36, v37")
    a("v_cvt_pk_bf16_f32 v44, v37, v36")
    a("ds_write_b64 v26, v[40:41]")
    a("ds_write_b32 v27, v42")
    a("ds_write_b64 v26, v[44:45] offset:2048")
    a("s_waitcnt lgkmcnt(0)")
    a("s_barrier")

def ln_final(a, vs, vq, vo, vr_, f="0.5"):
    a(f"v_mul_f32 v{vs}, {f32(1/640)}, v{vs}")
    a(f"v_mul_f32 v{vq}, {f32(1/640)}, v{vq}")
    a(f"v_fma_f32 v{vq}, -v{vs}, v{vs}, v{vq}")
    a(f"v_max_f32 v{vq}, 0, v{vq}")
    bf16_round(a, vq, vq)
    a(f"v_add_f32 v{vq}, {f32(1e-5)}, v{vq}")
    bf16_round(a, vq, vq)
    a(f"v_sqrt_f32 v{vq}, v{vq}")
    a(f"v_mul_f32 v{vs}, {f}, v{vs}")
    bf16_round(a, vq, vq)
    a(f"v_cvt_pk_bf16_f32 v{vo}, -v{vs}, -v{vs}")
    a(f"v_rcp_f32 v{vr_}, v{vq}")
    a(f"v_mul_f32 v{vq}, {f}, v{vq}")
    a(f"v_lshrrev_b32 v{vo+1}, 16, v{vq}")

def f1_addr(a, sn):
    a(f"s_lshl_b32 s58, s{sn}, 1")
    a("s_lshr_b32 s33, s28, 1")
    a("s_add_u32 s58, s58, s33")
    a("s_lshl_b32 s58, s58, 4")
    a("s_add_u32 s58, s58, s29")
    a("s_lshl_b32 s58, s58, 1")
    a("s_and_b32 s33, s28, 1")
    a("s_add_u32 s58, s58, s33")
    a("s_lshl_b32 s58, s58, 7")

def kappa(a, d, t):
    a(f"v_and_b32 v{d}, 19, v0")
    a(f"v_bfe_u32 v{t}, v0, 2, 1")
    a(f"v_lshl_add_u32 v{d}, v{t}, 3, v{d}")
    a(f"v_bfe_u32 v{t}, v0, 3, 1")
    a(f"v_lshl_add_u32 v{d}, v{t}, 2, v{d}")

def p1_compute(a):
    ACC = 64
    FRB = [32, 48, 176]
    AD = 128
    stats_issue(a)
    a("s_and_b32 s34, s28, 1")
    a("s_lshr_b32 s35, s28, 1")
    a("v_and_b32 v2, 31, v0")
    a("v_lshrrev_b32 v3, 5, v0")
    a("v_bfe_u32 v4, v0, 1, 3")
    a("v_xor_b32 v4, v4, v3")
    a("v_lshlrev_b32 v4, 4, v4")
    a("v_lshl_add_u32 v4, v2, 7, v4")
    a("s_lshl_b32 s33, s34, 13")
    a("v_add_u32 v10, s33, v4")
    for i in range(1, 4):
        a(f"v_xor_b32 v{10+i}, {32*i}, v10")
    for i in range(4):
        a(f"v_add_u32 v{14+i}, 0x10000, v{10+i}")
    a("v_bfe_u32 v4, v0, 2, 2")
    a("v_lshl_add_u32 v5, v3, 3, v4")
    a("v_lshlrev_b32 v5, 8, v5")
    a("v_bfe_u32 v6, v0, 4, 1")
    a("v_lshl_add_u32 v5, v6, 5, v5")
    a("v_and_b32 v6, 3, v0")
    a("v_lshl_add_u32 v5, v6, 3, v5")
    a("v_add_u32 v5, 16384, v5")
    a("s_lshl_b32 s33, s35, 1")
    a("v_xor_b32 v4, s33, v4")
    a("v_lshl_add_u32 v18, v4, 6, v5")
    a("v_xor_b32 v19, 64, v18")
    a("v_add_u32 v20, 0x10000, v18")
    a("v_add_u32 v21, 0x10000, v19")
    a("s_lshl_b32 s33, s34, 6")
    a("v_add_u32 v22, s33, v2")
    a("v_lshlrev_b32 v23, 2, v22")
    a(f"v_add_u32 v23, {STAT+1024}, v23")
    a("v_lshlrev_b32 v22, 3, v22")
    a(f"v_add_u32 v22, {STAT}, v22")
    a("s_lshl_b32 s33, s35, 6")
    a("v_add_u32 v24, s33, v2")
    a("v_lshlrev_b32 v24, 3, v24")
    a(f"v_add_u32 v24, {STAT+2048}, v24")
    ticket(a)
    stamp(a, 22)
    a("s_cmp_ge_u32 s32, 30")
    a("s_cbranch_scc1 Lspare_c")
    f1_addr(a, 30)
    a(f"s_add_u32 s58, s58, {F1}")
    if CFG["pt1"]:
        a("v_mov_b32 v206, 0")
        a(f"buffer_load_dword v207, v206, s[20:23], s58 offen {PF()}")

    def reads(t):
        s, st = t >> 2, t & 3
        se = (s >> 1) & 1
        io = (s & 1) * 32768
        F = FRB[t % 3]
        return [f"ds_read_b128 {vr(F,4)}, v{10+4*se+st} offset:{io}",
                f"ds_read_b64_tr_b16 {vr(F+8,2)}, v{18+2*se} offset:{io+st*4096}",
                f"ds_read_b64_tr_b16 {vr(F+10,2)}, v{18+2*se} offset:{io+st*4096+1024}",
                f"ds_read_b64_tr_b16 {vr(F+12,2)}, v{19+2*se} offset:{io+st*4096}",
                f"ds_read_b64_tr_b16 {vr(F+14,2)}, v{19+2*se} offset:{io+st*4096+1024}",
                f"ds_read_b128 {vr(F+4,4)}, v{10+4*se+st} offset:{io+4096}"]
    def mainloop(T, fill=()):
        fill = list(fill)
        stamp(a, 19)
        stats_finish(a)
        stamp(a, 23)
        a("s_barrier")
        stamp(a, 1)
        for r in reads(0) + reads(1): a(r)
        for t in range(40):
            F = FRB[t % 3]
            if (t & 3) == 2:
                a("s_waitcnt lgkmcnt(0)")
                if t == CFG["sg"]: stats_signal(a)
                a("s_barrier")
            elif t < 39:
                a("s_waitcnt lgkmcnt(6)")
            rd = reads(t + 2) if t < 38 else []
            if t == 38:
                rd = ["ds_read_b64 v[192:193], v22", "ds_read_b64 v[194:195], v22 offset:256",
                      "ds_read_b64 v[196:197], v24", "ds_read_b64 v[198:199], v24 offset:256"]
                if T: rd += ["ds_read_b32 v26, v23", "ds_read_b32 v28, v23 offset:128"]
                else: rd += [f"ds_read_b128 {vr(144+16*x+4*j,4)}, v25 offset:{128*x+32*j}" for x in range(2) for j in range(4)]
            n = len(rd) // 3
            for i, (x, w) in enumerate(((0, 0), (0, 1), (1, 0), (1, 1)) if t < 39 else ((0, 0), (1, 0), (0, 1), (1, 1))):
                d = vr(ACC + 32 * x + 16 * w, 16)
                xa, wa = vr(F + 4 * x, 4), vr(F + 8 + 4 * w, 4)
                c = "0" if t == 0 else d
                if T: a(f"v_mfma_f32_32x32x16_bf16 {d}, {wa}, {xa}, {c}")
                else: a(f"v_mfma_f32_32x32x16_bf16 {d}, {xa}, {wa}, {c}")
                if i < 3:
                    for r in rd[n*i:n*i+n]: a(r)
                if t >= 8:
                    for _ in range(1 if i < 3 else 3):
                        if fill: a(fill.pop(0))
                if t == 39 and x == 1:
                    if w == 0: a("s_waitcnt lgkmcnt(0)")
                    for y in range(2):
                        d = vr(ACC + 32 * y + 16 * w, 16)
                        xa, wa = vr(192 + 2 * y, 2), vr(196 + 2 * w, 2)
                        if T: a(f"v_mfma_f32_32x32x8_bf16 {d}, {wa}, {xa}, {d}")
                        else: a(f"v_mfma_f32_32x32x8_bf16 {d}, {xa}, {wa}, {d}")
        assert not fill
        stamp(a, 2)

    a("s_mul_i32 s36, s29, 10240")
    a("s_cmp_ge_u32 s30, 10")
    a("s_cbranch_scc1 Lc1v")
    kappa(a, 4, 5)
    a(f"v_lshlrev_b32 v4, 4, v4")
    a(f"v_lshl_add_u32 v{AD}, v3, 9, v4")
    a(f"v_mul_u32_u24 v5, {UNIT}, v3")
    a(f"v_add_u32 v{AD+1}, v5, v4")
    a("s_lshl_b32 s37, s30, 4")
    a("s_lshl_b32 s33, s35, 3")
    a("s_add_u32 s37, s37, s33")
    a("s_mov_b32 s57, s37")
    late = Asm()
    late("s_mov_b32 s59, 0")
    for q in range(8):
        late(f"s_add_u32 s56, s57, {q}")
        late("s_mul_i32 s38, s56, 52429")
        late("s_lshr_b32 s38, s38, 18")
        late("s_mul_i32 s39, s38, 5")
        late("s_sub_u32 s39, s56, s39")
        late(f"s_mul_i32 s38, s38, {2*UNIT}")
        late("s_add_u32 s38, s38, s36")
        late("s_lshl_b32 s56, s39, 11")
        late("s_add_u32 s38, s38, s56")
        late("s_cmp_gt_u32 s39, 2")
        late(f"s_cselect_b32 s56, {UNIT - 3*2048}, 0")
        late("s_add_u32 s38, s38, s56")
        late("s_cmp_eq_u32 s39, 2")
        late("s_cselect_b32 s56, 9, 10")
        late(f"s_cselect_b32 s39, {1 << q}, 0")
        late("s_lshl_b32 s56, s34, s56")
        late(f"s_add_u32 s{40+q}, s38, s56")
        late("s_or_b32 s59, s59, s39")
    c = (20 ** -0.5) * math.log2(math.e)
    a("s_cmp_lt_u32 s30, 5")
    a(f"s_cselect_b32 s37, {f32(c)}, 1.0")
    mainloop(True, list(late.lines))
    a("v_mul_f32 v26, s37, v26")
    a("v_mul_f32 v28, s37, v28")
    a("s_nop 5")
    for q in range(8):
        w, j = q >> 2, q & 3
        t = 44 + 4 * (q & 3)
        for x in range(2):
            b = ACC + 32 * x + 16 * w + 4 * j
            for i in (0, 2):
                a(f"v_pk_mul_f32 {vr(b+i,2)}, {vr(b+i,2)}, {vr(26+2*x,2)} op_sel_hi:[1,0]")
            a(f"v_cvt_pk_bf16_f32 v{t+2*x}, v{b}, v{b+1}")
            a(f"v_cvt_pk_bf16_f32 v{t+2*x+1}, v{b+2}, v{b+3}")
        L1, L2 = uid("s"), uid("s")
        a(f"s_bitcmp1_b32 s59, {q}")
        a(f"s_cbranch_scc1 {L1}")
        a(f"v_permlane32_swap_b32 v{t}, v{t+2}")
        a(f"v_permlane32_swap_b32 v{t+1}, v{t+3}")
        a(f"buffer_store_dwordx4 {vr(t,4)}, v{AD}, s[20:23], s{40+q} offen sc1")
        a(f"s_branch {L2}")
        a.label(L1)
        a(f"buffer_store_dwordx4 {vr(t,4)}, v{AD+1}, s[20:23], s{40+q} offen sc1")
        a.label(L2)
    a("s_branch Lc1e")
    a.label("Lc1v")
    a("s_sub_u32 s33, s30, 10")
    a("s_lshl_b32 s33, s33, 7")
    a("s_lshl_b32 s37, s35, 6")
    a("s_add_u32 s33, s33, s37")
    a("v_lshlrev_b32 v5, 6, v3")
    a("s_mul_i32 s37, s34, 2560")
    a(f"s_add_u32 s37, s37, {32*UNIT+5120}")
    a("v_add_u32 v5, s37, v5")
    for w in range(2):
        a(f"v_add_u32 v7, s33, v2")
        if w: a("v_add_u32 v7, 32, v7")
        a("v_mul_u32_u24 v9, 52429, v7")
        a("v_lshrrev_b32 v9, 20, v9")
        a("v_mul_u32_u24 v8, 20, v9")
        a("v_sub_u32 v8, v7, v8")
        a(f"v_mul_u32_u24 v9, {UNIT}, v9")
        a("v_lshl_add_u32 v9, v8, 4, v9")
        a("v_and_b32 v8, 28, v8")
        a("v_lshl_add_u32 v9, v8, 4, v9")
        a(f"v_add_u32 v{AD+w}, v9, v5")
    a("s_lshl_b32 s33, s34, 8")
    a(f"s_add_u32 s33, s33, {STAT+1024}")
    a("v_lshl_add_u32 v25, v3, 4, s33")
    mainloop(False)
    a("s_nop 6")
    for w in range(2):
        for x in range(2):
            b = ACC + 32 * x + 16 * w
            for g in range(2):
                for i in range(0, 8, 2):
                    a(f"v_pk_mul_f32 {vr(b+8*g+i,2)}, {vr(144+16*x+8*g+i,2)}, {vr(b+8*g+i,2)}")
                t = 44 + 4 * (g + 2 * x)
                for i in range(4):
                    a(f"v_cvt_pk_bf16_f32 v{t+i}, v{b+8*g+2*i}, v{b+8*g+2*i+1}")
                a(f"buffer_store_dwordx4 {vr(t,4)}, v{AD+w}, s[20:23], s36 offen offset:{1280*x+640*g} sc1")
    a.label("Lc1e")
    stamp(a, 3)
    a("s_nop 1")

def ids(a):
    a("s_and_b32 s33, s32, 3")
    a("s_lshl_b32 s29, s31, 2")
    a("s_add_u32 s29, s29, s33")
    a("s_lshr_b32 s30, s32, 2")
    a("s_and_b32 s33, s32, 1")
    a("s_lshl_b32 s62, s31, 1")
    a("s_add_u32 s62, s62, s33")
    a("s_lshr_b32 s63, s32, 1")

def lin_dma(a, n, flag=" sc1", thr=None):
    L = uid("d")
    a(f"s_mov_b32 s37, {n}")
    a.label(L)
    a(f"buffer_load_dwordx4 v1, s[20:23], s39 offen{flag} lds")
    a(f"s_waitcnt vmcnt({thr or CFG['thr']})")
    a("s_add_u32 m0, m0, 4096")
    a("s_add_u32 s39, s39, 4096")
    a("s_sub_u32 s37, s37, 1")
    a("s_cmp_lg_u32 s37, 0")
    a(f"s_cbranch_scc1 {L}")

def helper_rest(a):
    a.label("Lh2")
    a(f"s_setprio {CFG['hp']}")
    ids(a)
    a("v_lshlrev_b32 v1, 4, v0")
    a("s_lshl_b32 s54, s28, 8")
    a("s_add_u32 s54, s54, s2")
    relayout_task(a)
    srd(a, 16, PW1, 640 * 3456)
    a("s_lshl_b32 s38, s28, 10")
    a("s_mul_i32 s33, s29, 20")
    a("s_add_u32 s34, s33, 19")
    a("s_lshr_b32 s33, s33, 6")
    a("s_lshr_b32 s34, s34, 6")
    a("s_sub_u32 s34, s34, s33")
    a("s_add_u32 s33, s33, 10")
    a("v_bfe_u32 v3, v0, 1, 1")
    a("v_mul_u32_u24 v3, s34, v3")
    a("v_bfe_u32 v4, v0, 2, 1")
    a("v_mul_u32_u24 v4, 10, v4")
    a("v_add3_u32 v3, v3, v4, s33")
    a("v_bfe_u32 v4, v0, 3, 2")
    a("v_lshl_add_u32 v4, v4, 2, s28")
    a("v_lshl_add_u32 v3, v3, 4, v4")
    a("v_and_b32 v4, 1, v0")
    a("v_lshl_add_u32 v3, v3, 1, v4")
    a("v_lshlrev_b32 v3, 7, v3")
    a(f"v_add_u32 v3, {F1}, v3")
    a(f"s_mul_i32 s40, s29, {UNIT}")
    a(f"s_add_u32 s40, s40, {32*UNIT}")
    a("s_mul_i32 s41, s28, 10240")
    a("s_add_u32 s40, s40, s41")
    a("s_mov_b32 s42, 0x01010101")
    a("s_mov_b32 s43, 0")
    a(f"s_mov_b32 s60, {SPIN}")
    stamp(a, 1)
    if CFG["k0"]: a(f"s_sleep {CFG['k0']}")
    a.label("Lkv")
    a("s_cmp_lg_u32 s43, 0")
    a("s_cbranch_scc1 Lkv_go")
    a.label("Lkv_poll")
    a(f"s_sleep {CFG['k1']}")
    a("s_mov_b32 exec_hi, 0")
    a(f"buffer_load_dword v4, v3, s[20:23], 0 offen {PF()}")
    a("s_waitcnt vmcnt(0)")
    a("v_cmp_ne_u32 vcc, s100, v4")
    a("s_mov_b64 exec, -1")
    a("s_lshr_b32 s33, vcc_lo, 1")
    a("s_or_b32 s33, s33, vcc_lo")
    a("s_lshr_b32 s34, s33, 2")
    a("s_or_b32 s33, s33, s34")
    a("s_lshr_b32 s34, s33, 4")
    a("s_or_b32 s33, s33, s34")
    a("s_sub_u32 s60, s60, 1")
    a("s_cselect_b32 s33, 0, s33")
    a("s_andn2_b32 s43, s42, s33")
    a("s_cbranch_scc0 Lkv_poll")
    a.label("Lkv_go")
    a("s_ff1_i32_b32 s33, s43")
    a("s_bitset0_b32 s43, s33")
    a("s_bitset0_b32 s42, s33")
    a("s_mul_i32 s39, s33, 5120")
    a("s_add_u32 s39, s39, s40")
    for i in range(10):
        if i % 4 == 0:
            a(f"s_add_u32 m0, s41, {1024*i}")
            a(f"s_add_u32 s33, s39, {1024*i}")
        a(f"buffer_load_dwordx4 v1, s[20:23], s33 offen offset:{1024*(i%4)} sc1 lds")
    a("s_add_u32 s41, s41, 40960")
    a("s_cmp_ge_u32 s41, 81920")
    a("s_cbranch_scc1 Lkv_n")
    a("s_waitcnt vmcnt(0)")
    stamp(a, 3)
    a("s_barrier")
    a.label("Lkv_n")
    a("s_cmp_lg_u32 s42, 0")
    a("s_cbranch_scc1 Lkv")
    def dma(n):
        for i in range(n):
            a(f"buffer_load_dwordx4 v1, s[20:23], s39 offen sc1 lds")
            a("s_add_u32 m0, m0, 4096")
            a("s_add_u32 s39, s39, 4096")
    a("s_lshl_b32 s57, s2, 7")
    a(f"s_add_u32 s57, s57, {F2H}")
    a("v_mov_b32 v2, 0")
    a("buffer_load_dword v18, v2, s[20:23], s57 offen sc1")
    if CFG["x2"] & 1:
        a("s_waitcnt vmcnt(0)")
        a("s_barrier")
        a("s_branch Lh2a")
    a("s_cmp_ge_u32 s54, 592")
    a("s_cbranch_scc1 Lh2n")
    relayout_load(a)
    relayout_store(a)
    a("s_branch Lh2a")
    a.label("Lh2n")
    relayout_w1(a)
    a.label("Lh2a")
    signal(a, 57, 2)
    stamp(a, 10)
    def pollsp():
        a("v_lshlrev_b32 v3, 7, v0")
        a(f"v_add_u32 v3, {F1 + 960*128}, v3")
        poll(a, 3, 64, sleep=8)
    only_h0(a, pollsp)
    a("s_lshl_b32 s33, s30, 7")
    a(f"s_add_u32 s33, s33, {F2H}")
    a("v_lshl_add_u32 v3, v0, 10, s33")
    poll(a, 3, 32, 4, sleep=4)
    a("s_mul_i32 s33, s63, 20")
    a("s_add_u32 s33, s33, 592")
    a("s_cmp_ge_u32 s63, 6")
    a(f"s_cselect_b32 s34, 20, 0")
    a(f"s_add_u32 s34, s34, {912-20}")
    a("v_add_u32 v2, s33, v0")
    a("v_cmp_gt_u32 vcc, 20, v0")
    a("v_add_u32 v3, s34, v0")
    a("s_nop 0")
    a("v_cndmask_b32 v3, v3, v2, vcc")
    a("v_and_b32 v3, 255, v3")
    a("v_lshlrev_b32 v3, 7, v3")
    a(f"v_add_u32 v3, {F2H}, v3")
    poll(a, 3, 40, 4, sleep=4)
    a("v_and_b32 v2, 31, v0")
    a("s_lshl_b32 s33, s29, 12")
    a(f"s_add_u32 s33, s33, {F4}")
    a("v_lshl_add_u32 v10, v2, 7, s33")
    a(f"v_add_u32 v11, {FR}, v10")
    a(f"v_add_u32 v12, {2*FR}, v10")
    if CFG["pt"]:
        a("s_min_u32 s33, s28, 2")
        a(f"s_mul_i32 s33, s33, {FR}")
        a(f"buffer_load_dword v4, v10, s[20:23], s33 offen {PF()}")
        a("v_bfe_u32 v3, v0, 2, 1")
        a(f"v_mul_u32_u24 v3, {FR}, v3")
        a("v_and_b32 v2, 3, v0")
        a(f"v_mul_u32_u24 v2, {CFG['ls']}, v2")
        a("v_add_u32 v2, v2, v3")
        a(f"s_mul_i32 s33, s29, {4*CFG['ls']}")
        a(f"s_add_u32 s33, s33, {F2}")
        a(f"buffer_load_dword v4, v2, s[20:23], s33 offen {PF()}")
    if CFG["pw"]:
        a("s_and_b32 s33, s32, 3")
        a("s_lshl_b32 s33, s33, 2")
        a("s_add_u32 s33, s33, s28")
        a(f"s_mul_i32 s34, s33, {54*5120//16}")
        a(f"s_mul_i32 s35, s30, {54*5120}")
        a("s_add_u32 s34, s34, s35")
        a(f"s_add_u32 s34, s34, {OFF_W2}")
        a("v_lshlrev_b32 v2, 7, v0")
        a("v_min_u32 v3, 768, v2")
        a("buffer_load_dword v4, v2, s[20:23], s34 offen sc1")
        a("s_add_u32 s34, s34, 8192")
        a("buffer_load_dword v4, v2, s[20:23], s34 offen sc1")
        a("s_add_u32 s34, s34, 8192")
        a("buffer_load_dword v4, v3, s[20:23], s34 offen sc1")
    STH = 20
    a(f"s_mul_i32 s55, s30, {54*5120}")
    a(f"s_add_u32 s55, s55, {OFF_W2}")
    a("s_add_u32 s55, s55, s38")
    a("s_mov_b32 s39, s55")
    stamp(a, 7)
    for i in range(0 if CFG["x2"] & 2 else 58):
        a(f"buffer_load_dwordx4 {vr(STH+4*i,4)}, v1, s[20:23], s39 offen sc1")
        a(f"s_add_u32 s39, s39, {4096 if i != 29 else 4096 + 40960}")
    stamp(a, 8)
    if CFG["pf"]:
        a("s_and_b32 s33, s32, 1")
        a("s_lshl_b32 s33, s33, 2")
        a("s_add_u32 s33, s33, s28")
        a(f"s_mul_i32 s34, s33, {86016//8}")
        a(f"s_mul_i32 s33, s63, {W1T}")
        a("s_add_u32 s34, s34, s33")
        a(f"s_add_u32 s34, s34, {OFF_W1 + 57344}")
        a("v_lshlrev_b32 v2, 7, v0")
        a("v_min_u32 v3, 2432, v2")
        a("buffer_load_dword v4, v2, s[20:23], s34 offen sc1")
        a("s_add_u32 s34, s34, 8192")
        a("buffer_load_dword v4, v3, s[20:23], s34 offen sc1")
    if CFG["pw"]:
        a("s_and_b32 s33, s32, 3")
        a("s_lshl_b32 s33, s33, 2")
        a("s_add_u32 s33, s33, s28")
        a(f"s_mul_i32 s34, s33, {20*5120//16}")
        a(f"s_mul_i32 s35, s30, {20*5120}")
        a("s_add_u32 s34, s34, s35")
        a(f"s_add_u32 s34, s34, {OFF_WO}")
        a("v_min_u32 v3, 6272, v2")
        a("buffer_load_dword v4, v3, s[20:23], s34 offen sc1")
    stamp(a, 11)
    if CFG["hp3"] != 3: a(f"s_setprio {CFG['hp3']}")
    a(f"s_mul_i32 s39, s30, {20*5120}")
    a(f"s_add_u32 s39, s39, {OFF_WO}")
    a("s_add_u32 s39, s39, s38")
    a("s_mov_b32 m0, s38")
    a("s_barrier")
    if not CFG["x2"] & 8: lin_dma(a, 25, thr=20)
    a("s_waitcnt vmcnt(0)")
    a(f"s_mul_i32 s39, s63, {W1T}")
    a(f"s_add_u32 s39, s39, {OFF_W1}")
    a("s_add_u32 s39, s39, s38")
    a("s_add_u32 m0, s38, 102400")
    stamp(a, 14)
    a("s_barrier")
    lin_dma(a, 14, thr=20)
    a("s_barrier")
    a("s_mov_b32 m0, s38")
    a("s_waitcnt vmcnt(0)")
    stamp(a, 4)
    a("s_barrier")
    lin_dma(a, 21, thr=20)
    a("s_waitcnt vmcnt(0)")
    stamp(a, 5)
    a("s_barrier")
    a("s_or_b32 s33, s31, s32")
    a("s_or_b32 s33, s33, s28")
    a("s_cbranch_scc1 Lh5")
    for i in range(4):
        a("v_lshlrev_b32 v3, 7, v0")
        a(f"v_add_u32 v3, {F2H + 8192*i}, v3")
        poll(a, 3, 64)
    srd(a, 24, PDBG, 256)
    a("v_lshlrev_b32 v2, 2, v0")
    a("v_mov_b32 v3, 0")
    a("buffer_store_dword v3, v2, s[24:27], 0 offen sc1")
    a.label("Lh5")
    a(f"s_add_u32 s39, s55, {6*20480}")
    a(f"s_add_u32 m0, s38, {6*20480}")
    a("v_add_u32 v8, s38, v1")
    a("v_add_u32 v9, 61440, v8")
    def put(i, slotpiece):
        a(f"ds_write_b128 v{8 + slotpiece // 15}, {vr(STH+4*i,4)} offset:{(slotpiece % 15) * 4096}")
    if CFG["hp4"] != CFG["hp3"]: a(f"s_setprio {CFG['hp4']}")
    a("s_barrier")
    for i in range(30):
        if i % 3 == 0: dma(1)
        put(i, i)
    a("s_waitcnt lgkmcnt(0)")
    stamp(a, 6)
    a("s_setprio 3")
    a("s_waitcnt vmcnt(0)")
    only_h0(a, lambda: ppoll(a, 10, 32, 4, CFG["pp4"], CFG["pg4"]) if CFG["pp4"] else poll(a, 10, 32, sleep=CFG["sl4"]))
    stamp(a, 12)
    a("s_barrier")
    only_h0(a, lambda: a("buffer_load_dword v13, v11, s[20:23], 0 offen sc1"))
    if CFG["hp5"] != 3: a(f"s_setprio {CFG['hp5']}")
    for s in range(1, 14):
        if s in (2, 6):
            def lv():
                L = uid("k")
                a("s_waitcnt vmcnt(0)")
                tagcheck(a, 13, 1)
                a(f"s_cbranch_scc0 {L}")
                poll(a, 11 if s == 2 else 12, 32)
                a.label(L)
            only_h0(a, lv)
            if s == 2: stamp(a, 13)
        a("s_barrier")
        if s == 3: only_h0(a, lambda: a("buffer_load_dword v13, v12, s[20:23], 0 offen sc1"))
        if s >= 2:
            ks = [k for k in range(28) if 2 + k // 3 == s]
            for k in ks:
                if CFG["w64"]:
                    for e in range(2):
                        a(f"ds_write_b64 v{8 + k // 15}, {vr(STH+4*(30+k)+2*e,2)} offset:{(k % 15) * 4096 + 8*e}")
                        if CFG["wsl"]: a(f"s_sleep {CFG['wsl']}") if CFG["wsl"] < 8 else a(f"s_nop {CFG['wsl']}")
                else:
                    put(30 + k, k)
                    if CFG["wsl"]: a(f"s_sleep {CFG['wsl']}") if CFG["wsl"] < 8 else a(f"s_nop {CFG['wsl']}")
            if s >= 7: a(f"s_waitcnt lgkmcnt({len(ks) * (2 if CFG['w64'] else 1)})")
    finish(a)

def compute_rest(a):
    QA = [4, 8]; QB = 12; QBA = [12, 14]; QBB = [16, 18]
    IDX, AK, AV = 20, 21, 23
    O = [24, 40]
    S = [56, 72, 88, 104]
    KA = [120, 128]; KB = [136, 140]; V = [144, 160]
    T = 176
    a.label("Lc2")
    def sig1(k):
        if CFG["sg1"] == k:
            ssignal(a, 58)
            stamp(a, 24)
    sig1(0)
    ids(a)
    RES, XR = 232, 220
    a("v_and_b32 v4, 15, v0")
    a("v_lshrrev_b32 v5, 4, v0")
    a("v_mul_u32_u24 v252, 1280, v4")
    a("v_lshl_add_u32 v253, v5, 3, v252")
    a("v_lshl_add_u32 v252, v5, 5, v252")
    a("v_lshlrev_b32 v230, 5, v5")
    a("v_lshlrev_b32 v231, 3, v5")
    a("s_lshl_b32 s33, s29, 2")
    a("s_add_u32 s33, s33, s28")
    a("s_mul_i32 s59, s33, 20480")
    a("s_mul_i32 s38, s30, 160")
    a("s_add_u32 s59, s59, s38")
    srd(a, 12, PX, 2048 * 1280)
    srd(a, 16, PB2, 1280)
    a("s_mov_b32 s42, s38")
    a("v_and_b32 v2, 31, v0")
    a("v_lshrrev_b32 v1, 5, v0")
    a("v_lshlrev_b32 v3, 4, v2")
    a(f"v_lshl_add_u32 v{AK}, v1, 11, v3")
    a(f"v_lshlrev_b32 v22, 4, v0")
    a(f"v_and_b32 v{AV}, 28, v0")
    a(f"v_lshl_add_u32 v{AV}, v{AV}, 4, v3")
    a(f"v_lshl_add_u32 v{AV}, v1, 6, v{AV}")
    a(f"s_mul_i32 s33, s29, {UNIT}")
    a("s_lshl_b32 s34, s30, 1")
    a("s_lshr_b32 s35, s28, 1")
    a("s_add_u32 s34, s34, s35")
    a("s_mul_i32 s34, s34, 10240")
    a("s_add_u32 s34, s34, s33")
    a("s_and_b32 s35, s28, 1")
    a("s_lshl_b32 s36, s35, 10")
    a("s_add_u32 s36, s36, s34")
    a("s_lshl_b32 s37, s35, 9")
    a("s_add_u32 s37, s37, s34")
    a("s_add_u32 s37, s37, 4096")
    a(f"v_mov_b32 v{IDX}, 0xdddddddd")
    a("s_mov_b32 s40, 0xfffff")
    a("s_mov_b32 s41, 0xfffff")
    for i in range(32): a(f"v_mov_b32 v{O[0]+i}, 0")
    for i in range(16): a(f"v_mov_b32 v{S[3]+i}, 0")
    sig1(1)
    a(f"v_and_b32 v{T}, 27, v0")
    a(f"v_cmp_eq_u32 vcc, 24, v{T}")
    a(f"v_mov_b32 v{T}, 0x3f803f80")
    a("s_mov_b32 s43, 4")
    a(f"v_cndmask_b32 v{V[0]}, v{O[0]}, v{T}, vcc")
    for i in range(1, 32): a(f"v_mov_b32 v{V[0]+i}, v{V[0]}")
    sig1(2)
    a("s_mov_b64 s[46:47], -1")
    kappa(a, T, T + 1)
    a(f"v_lshrrev_b32 v{T+1}, 4, v{T}")
    a(f"v_mul_u32_u24 v{T+1}, 20480, v{T+1}")
    a(f"v_and_b32 v{T}, 15, v{T}")
    a(f"v_lshl_add_u32 v{T+2}, v{T}, 4, v{T+1}")
    a(f"v_lshl_add_u32 v{T}, v{T}, 3, v{T+1}")
    a(f"v_lshl_add_u32 v{T+1}, v1, 8, v{T+2}")
    a("s_lshl_b32 s33, s30, 4")
    a("s_lshl_b32 s44, s28, 2")
    a("s_add_u32 s33, s33, s44")
    a("s_mul_i32 s33, s33, 20480")
    a(f"s_add_u32 s33, s33, {OFF_O}")
    a("s_lshl_b32 s44, s29, 9")
    a("s_add_u32 s44, s44, s33")
    a("s_lshr_b32 s45, s29, 3")
    a("s_lshl_b32 s45, s45, 10")
    a("s_and_b32 s56, s29, 2")
    a("s_lshl_b32 s56, s56, 8")
    a("s_add_u32 s45, s45, s56")
    a("s_and_b32 s56, s29, 4")
    a("s_lshl_b32 s56, s56, 6")
    a("s_add_u32 s45, s45, s56")
    a("s_and_b32 s56, s29, 1")
    a("s_lshl_b32 s56, s56, 7")
    a("s_add_u32 s45, s45, s56")
    a("s_add_u32 s45, s45, s33")
    a("s_add_u32 s45, s45, 16384")
    a("s_add_u32 s48, s44, 40960")
    a("s_add_u32 s49, s45, 40960")
    sig1(3)
    a("s_lshl_b32 s58, s30, 2")
    a("s_add_u32 s58, s58, s28")
    a("s_lshl_b32 s58, s58, 2")
    a(f"s_lshr_b32 s56, s29, {4 if CFG['w16'] & 2 else 3}")
    a("s_add_u32 s58, s58, s56")
    a(f"s_mul_i32 s58, s58, {CFG['ls']//4}")
    a(f"s_and_b32 s56, s29, {15 if CFG['w16'] & 2 else 7}")
    a("s_add_u32 s58, s58, s56")
    a("s_lshl_b32 s58, s58, 2")
    a(f"s_add_u32 s58, s58, {F2}")
    a("v_cmp_gt_u32 vcc, 32, v0")
    a("s_mul_i32 s33, s29, 20")
    a("s_add_u32 s34, s33, 19")
    a("s_lshr_b32 s33, s33, 6")
    a("s_lshr_b32 s34, s34, 6")
    a("s_sub_u32 s34, s34, s33")
    a("s_lshl_b32 s34, s34, 12")
    a("s_lshl_b32 s33, s33, 3")
    a("s_add_u32 s33, s33, s30")
    a("s_lshl_b32 s33, s33, 2")
    a("s_add_u32 s33, s33, s28")
    a("s_lshl_b32 s33, s33, 7")
    a(f"s_add_u32 s33, s33, {F1}")
    a(f"v_mul_u32_u24 v{T+8}, s34, v0")
    a(f"v_add_u32 v{T+8}, s33, v{T+8}")
    if CFG["ppq"]: ppoll(a, T + 8, 2, S[0], CFG["ppq"], CFG["pg4"])
    else: poll(a, T + 8, 2, vd=QA[0], sleep=CFG["q1"])
    a("v_cmp_gt_u32 vcc, 32, v0")
    stamp(a, 5)
    for q in range(2):
        a(f"buffer_load_dwordx4 {vr(QA[q],4)}, v{AK}, s[20:23], s36 offen offset:{512*q} sc1")
    a(f"buffer_load_dwordx4 {vr(QB,4)}, v3, s[20:23], s37 offen sc1")
    a("s_waitcnt vmcnt(0)")
    for i in range(4):
        a(f"v_cndmask_b32 v{QBB[0]+i}, v{QB+i}, v{O[0]}, vcc")
        a(f"v_cndmask_b32 v{QB+i}, v{O[0]}, v{QB+i}, vcc")
    def ka_off(t): return (t >> 2) * 10240 + (t & 3) * 512
    def kb_off(b): return b * 10240 + 4096
    def v_off(t, g): return (t >> 2) * 10240 + 5120 + (2 * (t & 3) + g) * 640
    def batch(p):
        r = [f"ds_read_b128 {vr(KA[p&1],4)}, v{AK} offset:{ka_off(2*p)}"]
        if p % 2 == 0:
            r.append(f"ds_read_b128 {vr(KB[(p>>1)&1],4)}, v22 offset:{kb_off(p>>1)}")
        r.append(f"ds_read_b128 {vr(KA[p&1]+4,4)}, v{AK} offset:{ka_off(2*p+1)}")
        r.append("s_mov_b64 exec, s[40:41]")
        for j in range(4):
            r.append(f"ds_read_b128 {vr(V[p&1]+4*j,4)}, v{AV} offset:{v_off(2*p+(j>>1), j&1)}")
        r.append("s_mov_b64 exec, -1")
        return r
    def sync(it, op="lg"):
        L = uid("n")
        a(f"s_cmp_{op}_u32 s43, {it}")
        a(f"s_cbranch_scc1 {L}")
        a("s_barrier")
        a.label(L)
    def qk16(u):
        t, q = u >> 1, u & 1
        return f"v_mfma_f32_32x32x16_bf16 {vr(S[u&3],16)}, {vr(KA[(t>>1)&1]+4*(t&1),4)}, {vr(QA[q],4)}, 0"
    def qk8(u):
        t, q = u >> 1, u & 1
        return f"v_mfma_f32_32x32x8_bf16 {vr(S[u&3],16)}, {vr(KB[(t>>2)&1]+2*(t&1),2)}, {vr((QBB if t&2 else QBA)[q],2)}, {vr(S[u&3],16)}"
    def pv(u, g):
        t, q = u >> 1, u & 1
        return f"v_smfmac_f32_32x32x32_bf16 {vr(O[q],16)}, {vr(V[(t>>1)&1]+8*(t&1)+4*g,4)}, {vr(S[u&3]+8*g,8)}, v{IDX}"
    a("s_barrier")
    stamp(a, 6)
    for r in batch(0): a(r)
    a("s_waitcnt lgkmcnt(4)")
    a(qk16(0)); a(qk8(0))
    a("s_waitcnt lgkmcnt(0)")
    a("s_nop 9")
    a(".p2align 6")
    a.label("Lattn")
    for u in range(32):
        s = S[u & 3]
        if u == CFG["fr"]: sync(1)
        if u == CFG["ru"] and not CFG["x2"] & 4:
            a("s_cmp_lg_u32 s43, 1")
            a("s_cbranch_scc1 Lnores")
            a(f"buffer_load_dwordx4 {vr(XR,4)}, v252, s[12:15], s59 offen")
            a(f"buffer_load_dwordx4 {vr(XR+4,4)}, v252, s[12:15], s59 offen offset:16")
            a(f"buffer_load_dwordx2 {vr(XR+8,2)}, v253, s[12:15], s59 offen offset:128")
            a(f"buffer_load_dwordx4 {vr(RES,4)}, v230, s[16:19], s42 offen")
            a(f"buffer_load_dwordx4 {vr(RES+4,4)}, v230, s[16:19], s42 offen offset:16")
            a(f"buffer_load_dwordx2 {vr(RES+8,2)}, v231, s[16:19], s42 offen offset:128")
            a.label("Lnores")
        if u == CFG["cu"]: sync(4)
        if u % 4 == 3: a("s_waitcnt lgkmcnt(0)")
        a(qk16(u + 1))
        if u % 4 == 1:
            for r in batch((u + 3) // 4): a(r)
        for i in range(0, 4): a(f"v_exp_f32 v{s+i}, v{s+i}")
        a(qk8(u + 1))
        for i in range(4, 8): a(f"v_exp_f32 v{s+i}, v{s+i}")
        a(pv(u - 1, 0))
        for i in range(8, 12): a(f"v_exp_f32 v{s+i}, v{s+i}")
        a(pv(u - 1, 1))
        if u == 31:
            a(f"v_add_u32 v{AK}, 40960, v{AK}")
            a(f"v_add_u32 v22, 40960, v22")
            a(f"v_add_u32 v{AV}, 40960, v{AV}")
            if CFG["prof"] == 3:
                a("s_memtime s[98:99]")
                a("s_waitcnt lgkmcnt(0)")
                a("s_mov_b32 m0, s43")
                a("s_nop 0")
                a("v_writelane_b32 v230, s98, m0")
            a("s_sub_u32 s43, s43, 1")
            a("s_cmp_lg_u32 s43, 0")
        for i in range(12, 16): a(f"v_exp_f32 v{s+i}, v{s+i}")
    a("s_cbranch_scc1 Lattn")
    a("s_nop 0")
    a(pv(31, 0)); a(pv(31, 1))
    stamp(a, 7)
    a("s_nop 2")
    a.label("Lchk")
    for q in range(2):
        a(f"v_rcp_f32 v{T+2+2*q}, v{O[q]+12}")
        a("s_nop 0")
        for i in range(0, 12, 2):
            a(f"v_pk_mul_f32 {vr(O[q]+i,2)}, {vr(O[q]+i,2)}, {vr(T+2+2*q,2)} op_sel_hi:[1,0]")
        for i in range(6):
            a(f"v_cvt_pk_bf16_f32 v{S[1]+8*q+i}, v{O[q]+2*i}, v{O[q]+2*i+1}")
        a(f"buffer_store_dwordx4 {vr(S[1]+8*q,4)}, v{T+1}, s[20:23], s{44+4*q} offen sc1")
    a("s_mov_b32 exec_hi, 0")
    for q in range(2):
        a(f"buffer_store_dwordx2 {vr(S[1]+8*q+4,2)}, v{T}, s[20:23], s{45+4*q} offen sc1")
    a("s_mov_b64 exec, -1")
    a(f"s_mov_b32 s36, {f32(2.0**-64)}")
    a(f"s_mov_b32 s37, {f32(2.0**100)}")
    for q in range(2):
        a(f"v_pk_add_f32 {vr(T+6,2)}, {vr(O[q],2)}, {vr(O[q]+2,2)}")
        for i in range(4, 12, 2):
            a(f"v_pk_add_f32 {vr(T+6,2)}, {vr(T+6,2)}, {vr(O[q]+i,2)}")
        a(f"v_add_f32 v{T+6}, v{T+6}, v{T+7}")
        a(f"v_fma_f32 v{T+6}, v{T+6}, 0, v{O[q]+12}")
        a(f"v_cmp_nle_f32 s[{50+4*q}:{51+4*q}], s36, v{T+6}")
        a(f"v_cmp_nge_f32 s[{52+4*q}:{53+4*q}], s37, v{T+6}")
    a("s_or_b64 s[50:51], s[50:51], s[52:53]")
    a("s_or_b64 s[54:55], s[54:55], s[56:57]")
    a("s_or_b64 s[50:51], s[50:51], s[54:55]")
    a("s_and_b64 s[50:51], s[50:51], s[46:47]")
    a("s_cbranch_scc1 Lfallback")
    a("s_barrier")
    stamp(a, 20)
    ssignal(a, 58)
    stamp(a, 8)

    ACC, AR, WF, RS = 12, 32, 112, 192
    a("v_lshlrev_b32 v1, 4, v0")
    a("v_and_b32 v4, 15, v0")
    a("v_lshrrev_b32 v5, 4, v0")
    a("s_lshl_b32 s33, s29, 2")
    a("s_add_u32 s33, s33, s28")
    a("s_mul_i32 s34, s33, 20480")
    a(f"s_add_u32 s34, s34, {OFF_O}")
    a("v_add_u32 v6, 61440, v1")
    a("v_lshlrev_b32 v7, 3, v0")
    a("v_lshlrev_b32 v8, 4, v4")
    a("v_lshl_add_u32 v9, v5, 9, v8")
    a("v_lshrrev_b32 v10, 1, v5")
    a("v_lshl_add_u32 v8, v10, 8, v8")
    a("v_and_b32 v10, 1, v5")
    a("v_lshl_add_u32 v8, v10, 3, v8")
    a("s_mul_i32 s35, s33, 20480")
    a("s_mul_i32 s36, s30, 2560")
    a("s_add_u32 s35, s35, s36")
    a(f"s_add_u32 s35, s35, {OFF_H}")
    a("v_lshrrev_b32 v10, 1, v5")
    a("v_lshlrev_b32 v10, 2, v10")
    a("v_lshl_add_u32 v10, v4, 3, v10")
    a("s_lshl_b32 s37, s33, 10")
    a("s_lshl_b32 s39, s30, 7")
    a("s_add_u32 s37, s37, s39")
    a(f"s_add_u32 s37, s37, {OFF_ST}")
    a("v_mov_b32 v11, 0x3f803f80")
    def wreads(t, R, ads):
        s, st = t >> 2, t & 3
        sl = s % R
        F = WF + 20 * (t & 3)
        return [f"ds_read_b128 {vr(F+4*tt,4)}, v{ads[sl//3]} offset:{(sl%3)*20480+st*5120+1024*tt}" for tt in range(5)]
    for t in range(2):
        for r in wreads(t, 5, (1, 6)): a(r)
    for i in range(10):
        a(f"v_lshlrev_b32 v{ACC+2*i}, 16, v{XR+i}")
        a(f"v_and_b32 v{ACC+2*i+1}, 0xffff0000, v{XR+i}")
        a(f"v_and_b32 v{RES+19-2*i}, 0xffff0000, v{RES+9-i}")
        a(f"v_lshlrev_b32 v{RES+18-2*i}, 16, v{RES+9-i}")
    a(f"s_mul_i32 s33, s29, {4*CFG['ls']}")
    a(f"s_add_u32 s33, s33, {F2}")
    only_h0(a, lambda: spoll(a, 33, [16, 16] if CFG['w16'] & 2 else [8, 8, 8, 8], CFG['d2'], CFG['e2']))
    a("s_barrier")
    stamp(a, 9)
    vq = []
    def aload(i):
        if i < 16:
            r = [f"buffer_load_dwordx4 {vr(AR+4*i,4)}, v1, s[20:23], s34 offen offset:{1024*(i&3)} sc1"]
        else:
            r = [f"buffer_load_dwordx2 {vr(AR+4*i+2*e,2)}, v7, s[20:23], s34 offen offset:{1024*(i&3)+512*e} sc1" for e in range(2)]
        vq.extend([i] * len(r))
        if i & 3 == 3: r.append("s_add_u32 s34, s34, 4096")
        return r
    N0 = 11
    for i in range(N0):
        for x in aload(i): a(x)
    for t in range(20):
        F = WF + 20 * (t & 3)
        a(f"s_waitcnt vmcnt({sum(1 for x in vq if x > t)}) lgkmcnt({5 if t < 19 else 0})")
        rd = wreads(t + 2, 5, (1, 6)) if t < 18 else []
        for tt in range(5):
            d = vr(ACC + 4 * tt, 4)
            a(f"v_mfma_f32_16x16x32_bf16 {d}, {vr(F+4*tt,4)}, {vr(AR+4*t,4)}, {d}")
            if rd: a(rd[tt])
            if tt == 0 and t + N0 < 20:
                for x in aload(t + N0): a(x)
    stamp(a, 10)
    a("s_nop 3")
    for i in range(10):
        a(f"v_cvt_pk_bf16_f32 v{RS+i}, v{ACC+2*i}, v{ACC+2*i+1}")
        if i >= 1:
            a(f"v_dot2_f32_bf16 v2, v{RS+i-1}, v11, {'0' if i == 1 else 'v2'}")
            a(f"v_dot2_f32_bf16 v3, v{RS+i-1}, v{RS+i-1}, {'0' if i == 1 else 'v3'}")
        if i == 3: a(f"buffer_store_dwordx4 {vr(RS,4)}, v9, s[20:23], s35 offen sc1")
        if i == 7: a(f"buffer_store_dwordx4 {vr(RS+4,4)}, v9, s[20:23], s35 offen offset:256 sc1")
    a(f"v_dot2_f32_bf16 v2, v{RS+9}, v11, v2")
    a(f"v_dot2_f32_bf16 v3, v{RS+9}, v{RS+9}, v3")
    a(f"buffer_store_dwordx2 {vr(RS+8,2)}, v8, s[20:23], s35 offen offset:2048 sc1")
    a("s_nop 1")
    a("v_permlane32_swap_b32 v2, v3")
    a("v_add_f32 v2, v2, v3")
    a("v_mov_b32 v3, v2")
    a("s_nop 1")
    a("v_permlane16_swap_b32 v2, v3")
    a("v_add_f32 v2, v2, v3")
    a("buffer_store_dword v2, v10, s[20:23], s37 offen sc1")
    a("s_barrier")
    for i in range(10):
        a(f"v_lshlrev_b32 v4, 16, v{RS+i}")
        a(f"v_and_b32 v5, 0xffff0000, v{RS+i}")
        a(f"v_pk_add_f32 {vr(RES+2*i,2)}, {vr(RES+2*i,2)}, v[4:5]")
    a("s_lshl_b32 s55, s29, 2")
    a("s_add_u32 s55, s55, s28")
    if CFG["w16"] & 1:
        a("s_and_b32 s33, s55, 1")
        a("s_lshl_b32 s33, s33, 3")
        a("s_lshr_b32 s55, s55, 1")
        a(f"s_mul_i32 s55, s55, {2*CFG['ls']//4}")
        a("s_add_u32 s55, s55, s33")
    else:
        a(f"s_mul_i32 s55, s55, {CFG['ls']//4}")
    a("s_add_u32 s55, s55, s30")
    a("s_lshl_b32 s55, s55, 2")
    a(f"s_add_u32 s55, s55, {F3}")
    stamp(a, 21)
    ssignal(a, 55)
    stamp(a, 11)
    ACC, AR, NA, WF, NW, CO, SP = 32, 88, 7, 144, 12, 192, 208
    a("v_add_u32 v12, 102400, v1")
    a("v_add_u32 v13, 57344, v1")
    a("v_and_b32 v2, 15, v0")
    a("v_lshrrev_b32 v3, 4, v0")
    a("v_lshlrev_b32 v6, 3, v2")
    a("v_lshl_add_u32 v8, v3, 8, v6")
    a("s_mul_i32 s56, s63, 768")
    a(f"s_add_u32 s56, s56, {OFF_CO}")
    a("s_lshl_b32 s57, s63, 7")
    a(f"s_add_u32 s57, s57, {OFF_CO + 1536*8}")
    a("s_lshl_b32 s33, s62, 2")
    a("s_add_u32 s33, s33, s28")
    a("s_mul_i32 s34, s33, 40960")
    a(f"s_add_u32 s34, s34, {OFF_H}")
    a("s_add_u32 s35, s34, 20480")
    a("s_lshl_b32 s38, s33, 11")
    a(f"s_add_u32 s38, s38, {OFF_ST}")
    a(f"s_mul_i32 s36, s33, {2*54*1024}")
    a(f"s_add_u32 s36, s36, {OFF_G}")
    a("s_lshl_b32 s37, s63, 9")
    a("s_add_u32 s39, s36, s37")
    a(f"s_add_u32 s39, s39, {48*1024}")
    a("s_lshl_b32 s37, s63, 10")
    a("s_add_u32 s36, s36, s37")
    a("s_lshl_b32 s58, s33, 4")
    a("s_add_u32 s58, s58, s63")
    a("s_lshl_b32 s58, s58, 7")
    a(f"s_add_u32 s58, s58, {F4}")
    k0 = -2 * math.sqrt(2 / math.pi) * math.log2(math.e)
    def w1read(m):
        t, tt = divmod(m, 7)
        ad, o = (12, t) if t < 8 else ((1, t - 8) if t < 16 else (13, t - 16))
        return f"ds_read_b128 {vr(WF+4*(m%NW),4)}, v{ad} offset:{o*7168+tt*1024}"
    PD = CFG["pd4"]
    WG = {0: 4, 4: 3} if CFG["wg4"] == 2 else ({0: 2, 2: 2, 4: 3} if CFG["wg4"] == 3 else {i: 1 for i in range(7)})
    for m in range(PD): a(w1read(m))
    a(f"s_mul_i32 s37, s33, {2*CFG['ls']}")
    a(f"s_add_u32 s37, s37, {F3}")
    spoll(a, 37, [16] if CFG['w16'] & 1 else [8, 8], CFG['d3'], CFG['e3'])
    a(f"s_mov_b32 s44, {f32(k0)}")
    a(f"s_mov_b32 s45, {f32(k0 * 0.044715)}")
    stamp(a, 12)
    vq = []
    def hload(i, h):
        r = [f"buffer_load_dwordx4 {vr(AR+8*(i%NA)+4*h,4)}, v1, s[20:23], s{34+h} offen offset:{1024*(i&3)} sc1"]
        if i & 3 == 3: r.append(f"s_add_u32 s{34+h}, s{34+h}, 4096")
        vq.append(i)
        return r
    N0 = NA - 1
    for i in range(N0):
        for x in hload(i, 0) + hload(i, 1): a(x)
    extra = [f"buffer_load_dwordx2 {vr(SP+10*h+2*j,2)}, v8, s[20:23], s38 offen offset:{1024*h+128*j} sc1" for h in range(2) for j in range(2)]
    extra += [f"buffer_load_dwordx2 {vr(CO+2*tt,2)}, v6, s[20:23], s56 offen offset:{128*tt} sc1" for tt in range(6)]
    extra += [f"buffer_load_dwordx2 {vr(CO+12,2)}, v6, s[20:23], s57 offen sc1"]
    fin = Asm()
    for h in range(2):
        P = SP + 10 * h
        fin(f"v_add_f32 v{P}, v{P}, v{P+2}")
        fin(f"v_add_f32 v{P+1}, v{P+1}, v{P+3}")
        for sw in ("v_permlane32_swap_b32", "v_permlane16_swap_b32"):
            fin(f"v_mov_b32 v{P+2}, v{P}")
            fin(f"v_mov_b32 v{P+3}, v{P+1}")
            fin(f"{sw} v{P}, v{P+2}")
            fin(f"{sw} v{P+1}, v{P+3}")
            fin(f"v_add_f32 v{P}, v{P}, v{P+2}")
            fin(f"v_add_f32 v{P+1}, v{P+1}, v{P+3}")
        ln_final(fin, P, P + 1, P + 2, P + 4, f32(0.25))
        fin(f"v_mul_f32 v{P+8}, 4.0, v{P+1}")
        fin(f"v_mul_f32 v{P+6}, s44, v{P+4}")
        fin(f"v_mul_f32 v{P+7}, v{P+4}, v{P+4}")
        fin(f"v_mul_f32 v{P+7}, v{P+7}, v{P+4}")
        fin(f"v_mul_f32 v{P+7}, s45, v{P+7}")
    fin = list(fin.lines)
    for m in range(140):
        t, tt = divmod(m, 7)
        if m + PD == 56: a("s_barrier")
        if tt in WG:
            w = f"lgkmcnt({min(PD - WG[tt], 140 - m - WG[tt])})"
            if tt == 0 and not CFG["x4"] & 1:
                last = max(i for i, x in enumerate(vq) if x == t)
                w = f"vmcnt({len(vq) - 1 - last}) " + w
            a(f"s_waitcnt {w}")
        if t in (2, 10) and tt == 0: stamp(a, {2: 29, 10: 30}[t])
        if m == 139: a("s_barrier")
        for h in range(2):
            d = vr(ACC + 28 * h + 4 * tt, 4)
            a(f"v_mfma_f32_16x16x32_bf16 {d}, {vr(WF+4*(m%NW),4)}, {vr(AR+8*(t%NA)+4*h,4)}, {'0' if t == 0 else d}")
            if h == 0 and m + PD < 140: a(w1read(m + PD))
        if tt in (1, 4) and t + N0 < 20:
            for x in hload(t + N0, tt // 4): a(x)
        elif tt in (0, 2, 3, 5, 6) and t >= 1 and extra:
            a(extra.pop(0)); vq.append(-1)
        elif t >= 8 and fin:
            a(fin.pop(0))
    assert not fin
    corr = [f"v_mfma_f32_16x16x16_bf16 {vr(ACC+28*h+4*tt,4)}, {vr(CO+2*tt,2)}, {vr(SP+10*h+2,2)}, {vr(ACC+28*h+4*tt,4)}"
            for h, tt in [(h, 2 * p + e) for p in range(3) for h in range(2) for e in range(2)] + [(0, 6), (1, 6)]]
    a("s_nop 0")
    for _ in range(4): a(corr.pop(0))
    stamp(a, 13)
    a("s_nop 4")
    pr = lambda q: vr(q, 2)
    def gelu(regs, consts, T0, t):
        for i in range(4): a(f"v_pk_mul_f32 {pr(T0+2*i)}, {pr(regs[i])}, {pr(regs[i])}")
        for i in range(4): a(f"v_pk_fma_f32 {pr(T0+2*i)}, {pr(T0+2*i)}, {pr(consts[i]+6)}, {pr(consts[i]+6)} op_sel:[0,1,0] op_sel_hi:[1,1,0]")
        for i in range(4): a(f"v_pk_mul_f32 {pr(T0+2*i)}, {pr(T0+2*i)}, {pr(regs[i])}")
        for i in range(8):
            a(f"v_exp_f32 v{T0+i}, v{T0+i}")
            if i in (1, 5) and corr: a(corr.pop(0))
        for i in range(4): a(f"v_pk_fma_f32 {pr(T0+2*i)}, {pr(T0+2*i)}, {pr(consts[i]+8)}, {pr(consts[i]+8)} op_sel_hi:[1,0,0]")
        for i in range(8): a(f"v_rcp_f32 v{T0+i}, v{T0+i}")
        for i in range(4): a(f"v_pk_mul_f32 {pr(regs[i])}, {pr(regs[i])}, {pr(T0+2*i)}")
        for i in range(4): a(f"v_cvt_pk_bf16_f32 v{t+i}, v{regs[i]}, v{regs[i]+1}")
    a(f"s_add_u32 s37, s36, {54*1024}")
    for p in range(3):
        for h in range(2):
            r = ACC + 28 * h + 8 * p
            t = 112 + 4 * ((2 * p + h) & 3)
            gelu([r, r + 2, r + 4, r + 6], [SP + 10 * h] * 4, 96 + 8 * h, t)
            a(f"buffer_store_dwordx4 {vr(t,4)}, v1, s[20:23], s{36+h} offen sc1")
            a(f"s_add_u32 s{36+h}, s{36+h}, 16384")
            if 2 * p + h == CFG["sp0"]:
                if CFG["ss0"]: ssignal(a, 58, n=CFG["sp0"] - 1)
                else: vsignal(a, 58, CFG["sp0"] - 1)
                stamp(a, 18)
    a("s_cmp_ge_u32 s63, 12")
    a("s_cbranch_scc1 Lc4e")
    r = ACC + 24
    gelu([r, r + 2, r + 28, r + 30], [SP, SP, SP + 10, SP + 10], 96, 120)
    a("buffer_store_dwordx2 v[120:121], v7, s[20:23], s39 offen sc1")
    a(f"s_add_u32 s39, s39, {54*1024}")
    a("buffer_store_dwordx2 v[122:123], v7, s[20:23], s39 offen sc1")
    stamp(a, 14)
    a("s_waitcnt vmcnt(4)")
    a("s_branch Lc4f")
    a.label("Lc4e")
    a("s_waitcnt vmcnt(2)")
    a.label("Lc4f")
    a(f"s_add_u32 s58, s58, {FR}")
    ssignal(a, 58, n=4)
    a.label("Lc5")
    stamp(a, 15)

    AR, NA, WF, OTH = 32, 8, 112, 172
    a("s_and_b32 s36, s28, 1")
    a("s_mul_i32 s37, s36, 5120")
    a("v_mov_b32 v20, v7")
    a("v_add_u32 v5, s37, v1")
    a("v_add_u32 v6, 61440, v5")
    a("v_add_u32 v7, 122880, v5")
    a("s_lshl_b32 s33, s29, 2")
    a("s_add_u32 s33, s33, s28")
    a(f"s_mul_i32 s34, s33, {54*1024}")
    a("s_xor_b32 s33, s33, 1")
    a(f"s_mul_i32 s35, s33, {54*1024}")
    a("s_lshl_b32 s36, s36, 10")
    a(f"s_add_u32 s36, s36, {OFF_G}")
    a("s_add_u32 s34, s34, s36")
    a("s_add_u32 s35, s35, s36")
    a("s_mul_i32 s36, s28, 5120")
    a(f"s_add_u32 s36, s36, {6*20480}")
    a("v_add_u32 v8, s36, v1")
    a("s_xor_b32 s36, s28, 1")
    a("s_mul_i32 s36, s36, 5120")
    a(f"s_add_u32 s36, s36, {6*20480}")
    a("v_add_u32 v9, s36, v1")
    srd(a, 16, POUT, 2048 * 1280)
    a("s_mul_i32 s36, s28, 2816")
    a(f"s_add_u32 s36, s36, {7*20480}")
    a("v_and_b32 v2, 15, v0")
    a("v_lshrrev_b32 v3, 4, v0")
    a("v_mul_u32_u24 v2, 176, v2")
    a("v_add_u32 v2, s36, v2")
    a("v_lshl_add_u32 v10, v3, 5, v2")
    a("v_lshl_add_u32 v11, v3, 3, v2")
    for i in range(3):
        a(f"v_add_u32 v2, {64*i}, v0")
        a("v_mul_u32_u24 v3, 52429, v2")
        a("v_lshrrev_b32 v3, 19, v3")
        a("v_mul_u32_u24 v4, 10, v3")
        a("v_sub_u32 v2, v2, v4")
        a("v_lshlrev_b32 v2, 4, v2")
        a("v_mul_u32_u24 v4, 176, v3")
        a(f"v_add3_u32 v{12+i}, v4, v2, s36")
        a("v_mul_u32_u24 v4, 1280, v3")
        a(f"v_add_u32 v{16+i}, v4, v2")
    vq = []
    def gload(i):
        if i < 24:
            r = [[f"buffer_load_dwordx4 {vr(AR+8*(i%NA)+4*h,4)}, v1, s[20:23], s{34+h} offen offset:{2048*(i&1)} sc1"] for h in range(2)]
        else:
            r = [[f"buffer_load_dwordx2 {vr(AR+8*(i%NA)+4*h+2*e,2)}, v20, s[20:23], s{34+h} offen offset:{2048*(i&1)+512*e} sc1" for e in range(2)] for h in range(2)]
        vq.extend([i] * (len(r[0]) * 2))
        if i & 1: r[1] += ["s_add_u32 s34, s34, 4096", "s_add_u32 s35, s35, 4096"]
        return r
    def w2reads(i):
        sl = (i >> 1) % 8
        F = WF + 20 * (i % 3)
        return [f"ds_read_b128 {vr(F+4*tt,4)}, v{5+sl//3} offset:{(sl%3)*20480+(i&1)*10240+1024*tt}" for tt in range(5)]
    a(f"s_add_u32 s58, s58, {FR}")
    if not CFG["l2a"]: ssignal(a, 58)
    a("s_barrier")
    stamp(a, 16)
    N0 = CFG["n5"]
    for i in range(N0):
        for x in sum(gload(i), []): a(x)
    for r in w2reads(0) + w2reads(1): a(r)
    if CFG["l2a"]: ssignal(a, 58, n=2*N0)
    for i in range(27):
        F = WF + 20 * (i % 3)
        if i == 14: stamp(a, 26)
        if i + 2 < 27 and (i & 1) == 0: a("s_barrier")
        if i in (4, 14, 20): stamp(a, {4: 25, 14: 27, 20: 28}[i])
        a(f"s_waitcnt vmcnt({sum(1 for x in vq if x > i)}) lgkmcnt({5 if i < 26 else 0})")
        rd = w2reads(i + 2) if i < 25 else []
        gl = gload(i + N0) if i + N0 < 27 else []
        for h in (1, 0):
            for tt in range(5):
                d = vr((RES if h == 0 else OTH) + 4 * tt, 4)
                c = "0" if (h == 1 and i == 0) else d
                a(f"v_mfma_f32_16x16x32_bf16 {d}, {vr(F+4*tt,4)}, {vr(AR+8*(i%NA)+4*h,4)}, {c}")
                if h == 1 and rd: a(rd[tt])
                if h == 0 and gl and tt in (0, 2):
                    for x in gl[tt // 2]: a(x)
    stamp(a, 17)
    a("s_nop 2")
    for tt in range(5): a(f"ds_write_b128 v8, {vr(OTH+4*tt,4)} offset:{1024*tt}")
    a("s_waitcnt lgkmcnt(0)")
    a("s_barrier")
    for tt in range(5): a(f"ds_read_b128 {vr(OTH+4*tt,4)}, v9 offset:{1024*tt}")
    for tt in range(5):
        a(f"s_waitcnt lgkmcnt({4-tt})")
        for j in (0, 2): a(f"v_pk_add_f32 {vr(RES+4*tt+j,2)}, {vr(RES+4*tt+j,2)}, {vr(OTH+4*tt+j,2)}")
    for i in range(10):
        a(f"v_cvt_pk_bf16_f32 v{RS+i}, v{RES+2*i}, v{RES+2*i+1}")
        if i == 3: a(f"ds_write_b128 v10, {vr(RS,4)}")
        if i == 7: a(f"ds_write_b128 v10, {vr(RS+4,4)} offset:16")
    a(f"ds_write_b64 v11, {vr(RS+8,2)} offset:128")
    a("s_waitcnt lgkmcnt(0)")
    for i in range(3): a(f"ds_read_b128 {vr(RS+12+4*i,4)}, v{12+i}")
    for i in range(3):
        a(f"s_waitcnt lgkmcnt({2-i})")
        if i == 2: a("s_mov_b32 exec_hi, 0")
        a(f"buffer_store_dwordx4 {vr(RS+12+4*i,4)}, v{16+i}, s[16:19], s59 offen{' sc1' if CFG['so'] else ''}")
    finish(a, True)

    a.label("Lfallback")
    C = 188
    a("s_mov_b64 s[46:47], 0")
    a(f"v_subrev_u32 v{AK}, {4*40960}, v{AK}")
    a(f"v_subrev_u32 v22, {4*40960}, v22")
    a(f"v_subrev_u32 v{AV}, {4*40960}, v{AV}")
    a(f"v_add_u32 v{T+8}, 5120, v{AV}")
    a(f"v_add_u32 v{T+9}, {5120+2560}, v{AV}")
    a(f"v_add_u32 v22, 4096, v22")
    for ps in range(2):
        a(f"s_mul_i32 s42, s29, {UNIT}")
        a(f"s_add_u32 s42, s42, {32*UNIT}")
        a("s_mov_b32 s43, 16")
        if ps == 0:
            a(f"v_mov_b32 v{T+6}, 0xff800000")
            a(f"v_mov_b32 v{T+7}, 0xff800000")
        else:
            for i in range(32): a(f"v_mov_b32 v{O[0]+i}, 0")
        a.label(f"Lfb{ps}")
        for t in range(4):
            a(f"buffer_load_dwordx4 {vr(KA[0]+4*t,4)}, v{AK}, s[20:23], s42 offen offset:{512*t} sc1")
        a(f"buffer_load_dwordx4 {vr(KB[0],4)}, v22, s[20:23], s42 offen sc1")
        if ps:
            a("s_mov_b64 exec, s[40:41]")
            for j in range(8):
                a(f"buffer_load_dwordx4 {vr(V[0]+4*j,4)}, v{T+8+(j>>2)}, s[20:23], s42 offen offset:{640*(j&3)} sc1")
            a("s_mov_b64 exec, -1")
        a("s_waitcnt vmcnt(0)")
        for q in range(2):
            for t in range(4):
                d = vr(S[t], 16)
                a(f"v_mfma_f32_32x32x16_bf16 {d}, {vr(KA[0]+4*t,4)}, {vr(QA[q],4)}, {vr(C+16*q,16) if ps else '0'}")
                a(f"v_mfma_f32_32x32x8_bf16 {d}, {vr(KB[0]+2*(t&1),2)}, {vr((QBB if t&2 else QBA)[q],2)}, {d}")
            a("s_nop 15")
            if ps == 0:
                for i in range(32):
                    a(f"v_max3_f32 v{T+6+q}, v{T+6+q}, v{S[0]+2*i}, v{S[0]+2*i+1}")
            else:
                for i in range(64): a(f"v_exp_f32 v{S[0]+i}, v{S[0]+i}")
                a("s_nop 1")
                for j in range(8):
                    a(f"v_smfmac_f32_32x32x32_bf16 {vr(O[q],16)}, {vr(V[0]+4*j,4)}, {vr(S[0]+8*j,8)}, v{IDX}")
        a("s_add_u32 s42, s42, 10240")
        a("s_sub_u32 s43, s43, 1")
        a("s_cmp_lg_u32 s43, 0")
        a(f"s_cbranch_scc1 Lfb{ps}")
        if ps == 0:
            for q in range(2):
                a(f"v_mov_b32 v{T+2}, v{T+6+q}")
                a("s_nop 1")
                a(f"v_permlane32_swap_b32 v{T+6+q}, v{T+2}")
                a(f"v_max_f32 v{T+6+q}, v{T+6+q}, v{T+2}")
                for i in range(16):
                    a(f"v_sub_f32 v{C+16*q+i}, 0, v{T+6+q}")
    a("s_nop 15")
    a("s_branch Lchk")

def build():
    a = Asm()
    a(f".globl {KN}")
    a(".p2align 8")
    a(f".type {KN},@function")
    a.label(KN)
    a("s_cmp_ge_u32 s2, 256")
    a("s_cbranch_scc1 Lend")
    a("s_load_dwordx16 s[64:79], s[0:1], 0")
    a("s_load_dwordx4 s[80:83], s[0:1], 64")
    a("s_load_dwordx2 s[84:85], s[0:1], 80")
    a("v_lshrrev_b32 v1, 6, v0")
    a("v_and_b32 v0, 63, v0")
    a("s_getreg_b32 s60, hwreg(HW_REG_XCC_ID, 0, 4)")
    a("v_readfirstlane_b32 s3, v1")
    a(f"v_mov_b32 v201, {IDS}")
    if CFG["db"] >= 0:
        a("s_mov_b32 s96, 0")
        a("s_mov_b32 s98, 0")
    if CFG["prof"]:
        a("v_mov_b32 v255, 0")
    stamp(a, 0)
    if CFG["cp0"]:
        CFG["_hi"][KN] = -1
        a("s_cmp_lg_u32 s3, 7")
        a("s_cbranch_scc1 Lnocp")
        code_prefetch(a, KN, CFG["cp0"], 204)
        a.label("Lnocp")
    a("s_and_b32 s28, s3, 3")
    a("s_cmp_lg_u32 s3, 0")
    a("s_waitcnt lgkmcnt(0)")
    a("s_cbranch_scc1 Lnoask")
    ticket_ask(a)
    a.label("Lnoask")
    srd(a, 20, PWS, WS_SIZE)
    a("s_cmp_lt_u32 s3, 4")
    a("s_cbranch_scc1 Lc1")
    p1_helper(a)
    a("s_branch Lh2")
    a.label("Lc1")
    CFG["_c"] = 1
    p1_compute(a)
    compute_rest(a)
    CFG["_c"] = 0
    helper_rest(a)
    a.label("Lend")
    a("s_endpgm")
    p1_spare(a)
    a.label("Lcode_end")
    errs = check(a.lines)
    for e in errs: print(e, file=sys.stderr)
    head = open(f"cdna_kernels/{NAME}.s.ref").read().split("; Override")[0]
    head += "; @launch grid=(256,1,1) block=(512,1,1) lds=163840\n"
    d = f""".section .rodata,"a"
.p2align 6
.amdhsa_kernel {KN}
  .amdhsa_next_free_vgpr 256
  .amdhsa_next_free_sgpr 102
  .amdhsa_accum_offset 256
  .amdhsa_group_segment_fixed_size 0
  .amdhsa_kernarg_size 88
  .amdhsa_user_sgpr_count 2
  .amdhsa_user_sgpr_kernarg_segment_ptr 1
  .amdhsa_system_sgpr_workgroup_id_x 1
.end_amdhsa_kernel
"""
    return head + '.amdgcn_target "amdgcn-amd-amdhsa--gfx950"\n.text\n' + a.text() + d, errs

if __name__ == "__main__":
    out = sys.argv[1] if len(sys.argv) > 1 else f"cdna_kernels/{NAME}.s"
    for kv in sys.argv[2:]:
        k, v = kv.split("=")
        if k == "light": LIGHT.extend(int(x) for x in v.split(","))
        else: CFG[k] = int(v)
    txt, errs = build()
    open(out, "w").write(txt)
    print("written", out, len(txt), "bytes; hazards:", len(errs))
```
